```python
import torch

def _softmax(x, axis=-1):
    return torch.softmax(x, dim=axis)
def _gelu(x):
    return torch.nn.functional.gelu(x, approximate="tanh")
def _silu(x):
    return torch.nn.functional.silu(x)
def _sigmoid(x):
    return torch.sigmoid(x)
def _layernorm(x, axis=-1, eps=1e-5):
    m = x.mean(dim=axis, keepdim=True)
    v = x.var(dim=axis, keepdim=True, unbiased=False)
    return (x - m) / torch.sqrt(v + eps)
def _scatter_add(tgt, idx, src, axis=0):
    return tgt.clone().index_add_(axis, idx, src)
def _segment_sum(src, seg, n):
    out = torch.zeros((n,) + src.shape[1:], dtype=src.dtype)
    return out.index_add_(0, seg, src)
def _pad(x, pw):
    flat = tuple(v for pair in reversed(pw) for v in pair)
    return torch.nn.functional.pad(x, flat)

kernel_name = 'standalone__paged_block_table_kv_radixattention__decode'

def setup_inputs():

    _w = (lambda a: (lambda t: t.to(torch.bfloat16) if t.is_floating_point() else t)(torch.as_tensor(a)))
    B, H, Hkv, Dh = 1, 32, 16, 128
    Lk = 8192
    bs = 16
    nb = max(2, Lk // bs)
    P = max(1, nb // 2)
    n_phys = P + B * (nb - P)
    shared = torch.arange(P, dtype=torch.int64)
    priv = P + torch.arange(B * (nb - P), dtype=torch.int64).reshape(B, nb - P)
    bt = torch.cat([torch.tile(shared[None, :], (B, 1)), priv], dim=1)
    ctx = nb * bs - (torch.arange(1, B + 1, dtype=torch.int64) * 2654435761) % max(1, (nb * bs - P * bs) // 2)
    return {
        "q": _w((lambda *s: torch.randn(*s, dtype=torch.bfloat16) * 0.8)(B, H, Dh)),
        "k_cache": _w((lambda *s: torch.randn(*s, dtype=torch.bfloat16) * 0.8)(n_phys, bs, Hkv, Dh)),
        "v_cache": _w((lambda *s: torch.randn(*s, dtype=torch.bfloat16) * 0.05)(n_phys, bs, Hkv, Dh)),
        "block_table": _w(bt.to(torch.int64)),
        "ctx_lens": _w(torch.as_tensor(ctx).to(torch.int64)),
    }

def reference(q, k_cache, v_cache, block_table, ctx_lens):
    B, H, Dh = q.shape
    n_phys, bs, Hkv, _ = k_cache.shape
    nb = block_table.shape[1]
    Lk = nb * bs
    rep = H // Hkv
    k = k_cache[block_table].reshape(B, Lk, Hkv, Dh)
    v = v_cache[block_table].reshape(B, Lk, Hkv, Dh)
    k = (lambda x, n, axis: torch.repeat_interleave(x, n, dim=axis))(k, rep, axis=2)
    v = (lambda x, n, axis: torch.repeat_interleave(x, n, dim=axis))(v, rep, axis=2)
    scores = torch.einsum("bhd,bkhd->bhk", q, k) * (Dh ** -0.5)
    pos = torch.arange(Lk)
    valid = pos[None, :] < ctx_lens[:, None]
    scores = torch.where(valid[:, None, :], scores, -1e9)
    p = _softmax(scores, axis=-1)
    return torch.einsum("bhk,bkhd->bhd", p, v)
```

```python
import struct, sys, math, argparse

NAME = "standalone__paged_block_table_kv_radixattention__decode"

HEADER = """; Kernarg layout for this problem (64 bytes, ptrs only, base s[0:1]):
"""


def f32bits(x):
    return struct.unpack("<I", struct.pack("<f", x))[0]


LOG2E = 1.4426950408889634
SCALE = (128 ** -0.5) * LOG2E
TMASK = -998244352.0 * LOG2E
NEGINF = 0xFF800000


class Asm:
    def __init__(self):
        self.lines = []

    def __call__(self, s):
        for ln in s.strip("\n").split("\n"):
            self.lines.append(ln)

    def text(self):
        return "\n".join(self.lines) + "\n"


def descriptor(name, vgpr, sgpr):
    acc = (vgpr + 3) // 4 * 4
    return f"""
.section .rodata,"a"
.p2align 6
.amdhsa_kernel {name}
  .amdhsa_next_free_vgpr {vgpr}
  .amdhsa_next_free_sgpr {sgpr}
  .amdhsa_accum_offset {acc}
  .amdhsa_group_segment_fixed_size 0
  .amdhsa_kernarg_size 64
  .amdhsa_user_sgpr_count 2
  .amdhsa_user_sgpr_kernarg_segment_ptr 1
  .amdhsa_system_sgpr_workgroup_id_x 1
.end_amdhsa_kernel
"""


def gen(W=16, spec=True, kflags="", vflags="", tail="two", midbar=True):
    U = 32 // W
    NQ = 4 * U
    a = Asm()
    LDS_MAX, LDS_L, LDS_O = 0, 512, 1024
    lds_bytes = LDS_O + W * 1024
    NT = W * 64
    vKoff, vVoff, vG, vC, vLw, vM, vL, vTmp = 1, 2, 3, 4, 5, 6, 7, 30
    vQ = 8
    vAM = 12
    vO = 16
    vMV = 20
    vLr = 28
    vOw = 29
    vT = 32
    vK = vT + NQ
    vK = (vK + 3) // 4 * 4
    vV = vK + 4 * NQ
    nv = vV + 4 * NQ
    if nv < vK + 4 * W + 8:
        nv = vK + 4 * W + 8
    sW = 3
    sHead, sSplit = 26, 27
    sH256 = 28
    sB = 29
    sCtx = 30
    sNblk = 31
    sBT = 32
    sOff = 40
    sNR = 72
    sTmp = 80
    sMask = 84
    main = f"{NAME}_kernel"

    a(HEADER.rstrip("\n"))
    if tail == "two":
        a(f"; @launch kernel={main} grid=(256,1,1) block=({NT},1,1) lds={lds_bytes}")
        a(f"; @launch kernel=combine_kernel grid=(16,1,1) block=(64,1,1) lds=0")
    else:
        a(f"; @launch grid=(256,1,1) block=({NT},1,1) lds={lds_bytes}")
    a(f""".amdgcn_target "amdgcn-amd-amdhsa--gfx950"
.text
.globl {main}
.p2align 8
.type {main},@function
{main}:
    s_cmp_ge_u32 s2, 256
    s_cbranch_scc1 L_done
    s_load_dwordx2 s[8:9], s[0:1], 8            ; K
    s_load_dwordx4 s[16:19], s[0:1], 24
    s_load_dwordx2 s[12:13], s[0:1], 16         ; V
    s_load_dwordx2 s[4:5], s[0:1], 0            ; q
    s_load_dwordx2 s[24:25], s[0:1], 56         ; ws
    v_readfirstlane_b32 s{sW}, v0
    v_and_b32 v{vTmp}, 3, v0
    v_lshlrev_b32 v{vTmp}, 4, v{vTmp}
    v_and_b32 v{vG}, 48, v0
    v_lshl_or_b32 v{vTmp}, v{vG}, 2, v{vTmp}
    v_and_b32 v{vKoff}, 12, v0
    v_lshl_or_b32 v{vKoff}, v{vKoff}, 10, v{vTmp}  ; + ((l>>2)&3)*4096
    s_lshr_b32 s{sW}, s{sW}, 6
    s_and_b32 s{sHead}, s2, 15
    s_lshr_b32 s{sSplit}, s2, 4
    s_lshl4_add_u32 s{sB}, s{sW}, s{sSplit}         ; b0 = w*16 + split
    s_lshl_b32 s{sH256}, s{sHead}, 8
    s_lshl_b32 s{sOff}, s{sB}, 16
    s_add_u32 s{sOff}, s{sOff}, s{sH256}
    s_add_u32 s{sOff+1}, s{sOff}, 0x4000
    s_add_u32 s{sOff+2}, s{sOff}, 0x8000
    s_add_u32 s{sOff+3}, s{sOff}, 0xc000
    s_mov_b32 s10, 0x2000000
    s_mov_b32 s11, 0x20000
    s_lshl_b32 s{sTmp}, s{sB}, 2
    s_waitcnt lgkmcnt(0)""")
    if spec:
        for i in range(4):
            a(f"    buffer_load_dwordx4 v[{vK+4*i}:{vK+4*i+3}], v{vKoff}, s[8:11], s{sOff+i} offen {kflags}")
    for u in range(U):
        a(f"    s_load_dword s{sBT+u}, s[16:17], s{sTmp} offset:{u*W*16*4}")
    a(f"    s_load_dword s{sCtx}, s[18:19], 0")
    a(f"""
    v_and_b32 v{vVoff}, 8, v0
    v_lshl_or_b32 v{vTmp}, v{vVoff}, 5, v{vTmp}     ; + h*256
    s_lshl_b32 s{sTmp+1}, s{sHead}, 9
    v_add_u32 v{vTmp}, s{sTmp+1}, v{vTmp}
    global_load_dwordx4 v[{vQ}:{vQ+3}], v{vTmp}, s[4:5]
    v_and_b32 v{vVoff}, 15, v0
    v_lshlrev_b32 v{vVoff}, 4, v{vVoff}
    v_lshl_or_b32 v{vVoff}, v{vG}, 8, v{vVoff}      ; (l>>4)*4096 + (l&15)*16
    v_lshrrev_b32 v{vG}, 4, v{vG}                  ; g = l>>4
    s_mov_b32 s14, 0x2000000
    s_mov_b32 s15, 0x20000
    s_waitcnt lgkmcnt(0)
    s_max_i32 s{sCtx}, s{sCtx}, 0
    s_min_i32 s{sCtx}, s{sCtx}, 8192
    s_add_u32 s{sNblk}, s{sCtx}, 15
    s_lshr_b32 s{sNblk}, s{sNblk}, 4""")
    for u in range(U):
        a(f"    s_and_b32 s{sBT+u}, s{sBT+u}, 511")
    for u in range(U):
        a(f"    s_add_u32 s{sTmp}, s{sB}, {u*W*16}")
        a(f"    s_cmp_lt_u32 s{sTmp}, s{sNblk}")
        a(f"    s_cselect_b32 s{sNR+u}, 0x2000000, 0")
        a(f"    s_cselect_b32 s{sTmp+1}, 0x{f32bits(TMASK):08x}, 0x{NEGINF:08x}" if False else
          f"    s_mov_b32 s{sTmp+2}, 0x{NEGINF:08x}\n    s_cselect_b32 s{sTmp+1}, 0x{f32bits(TMASK):08x}, s{sTmp+2}")
        a(f"    v_mov_b32 v{vMV+u}, s{sTmp+1}")
    if spec:
        a(f"""    s_cmp_eq_u32 s{sBT}, s{sB}
    s_cbranch_scc1 L_spec_ok
    s_waitcnt vmcnt(0)
    s_lshl_b32 s{sOff}, s{sBT}, 16
    s_add_u32 s{sOff}, s{sOff}, s{sH256}
    s_add_u32 s{sOff+1}, s{sOff}, 0x4000
    s_add_u32 s{sOff+2}, s{sOff}, 0x8000
    s_add_u32 s{sOff+3}, s{sOff}, 0xc000""")
        for i in range(4):
            a(f"    buffer_load_dwordx4 v[{vK+4*i}:{vK+4*i+3}], v{vKoff}, s[8:11], s{sOff+i} offen {kflags}")
        a("L_spec_ok:")
    for u in range(0 if not spec else 1, U):
        o = sOff + 4 * u
        a(f"""    s_lshl_b32 s{o}, s{sBT+u}, 16
    s_add_u32 s{o}, s{o}, s{sH256}
    s_add_u32 s{o+1}, s{o}, 0x4000
    s_add_u32 s{o+2}, s{o}, 0x8000
    s_add_u32 s{o+3}, s{o}, 0xc000
    s_mov_b32 s10, s{sNR+u}""")
        for i in range(4):
            q = 4 * u + i
            a(f"    buffer_load_dwordx4 v[{vK+4*q}:{vK+4*q+3}], v{vKoff}, s[8:11], s{o+i} offen {kflags}")
    if midbar:
        a("    s_barrier")
    for u in range(U):
        o = sOff + 4 * u
        a(f"    s_mov_b32 s14, s{sNR+u}")
        for i in range(4):
            q = 4 * u + i
            a(f"    buffer_load_dwordx4 v[{vV+4*q}:{vV+4*q+3}], v{vVoff}, s[12:15], s{o+i} offen {vflags}")
    a(f"""
    v_mov_b32 v{vC}, 0x{f32bits(SCALE):08x}
    v_and_b32 v{vTmp}, 1, v0
    v_lshlrev_b32 v{vTmp}, 4, v{vTmp}
    s_mov_b32 s{sTmp}, 0xffff
    v_lshlrev_b32_e64 v{vTmp}, v{vTmp}, s{sTmp}        ; 0xffff << 16*(l&1)
    v_bfe_u32 v{vTmp+1}, v0, 1, 2
    v_cmp_eq_u32_e64 s[{sMask}:{sMask+1}], 0, v{vTmp+1}
    v_cmp_eq_u32_e64 s[{sMask+2}:{sMask+3}], 1, v{vTmp+1}
    v_cmp_eq_u32_e64 s[{sMask+4}:{sMask+5}], 2, v{vTmp+1}
    v_cmp_eq_u32_e64 s[{sMask+6}:{sMask+7}], 3, v{vTmp+1}
    v_and_b32 v{vLr}, 8, v0
    v_lshlrev_b32 v{vLr}, 5, v{vLr}                   ; h*256
    v_cndmask_b32_e64 v{vAM}, 0, v{vTmp}, s[{sMask}:{sMask+1}]
    v_cndmask_b32_e64 v{vAM+1}, 0, v{vTmp}, s[{sMask+2}:{sMask+3}]
    v_cndmask_b32_e64 v{vAM+2}, 0, v{vTmp}, s[{sMask+4}:{sMask+5}]
    v_cndmask_b32_e64 v{vAM+3}, 0, v{vTmp}, s[{sMask+6}:{sMask+7}]
    s_lshl_b32 s{sTmp}, s{sW}, 4
    v_lshl_add_u32 v{vLw}, v{vG}, 2, v{vLr}
    v_add_u32 v{vLw}, s{sTmp}, v{vLw}                ; h*256 + (w*4+g)*4
    v_and_b32 v{vTmp}, 7, v0
    v_lshl_add_u32 v{vLr}, v{vTmp}, {int(math.log2(W*2))}, v{vLr}   ; h*256 + e*(W/2 floats)
    v_lshlrev_b32 v{vOw}, 4, v0                     ; tid*16  (= w*1024 + l*16)
""")
    nV = NQ
    for u in range(U):
        later = (U - 1 - u) * 4 + nV
        a(f"    s_waitcnt vmcnt({later})")
        for i in range(4):
            q = 4 * u + i
            a(f"    v_mfma_f32_16x16x32_bf16 v[{vK+4*q}:{vK+4*q+3}], v[{vK+4*q}:{vK+4*q+3}], v[{vQ}:{vQ+3}], 0")
        a(f"    s_add_u32 s{sTmp}, s{sB}, {u*W*16}")
        a(f"    s_lshl_b32 s{sTmp}, s{sTmp}, 4")
        a(f"    s_sub_i32 s{sTmp}, s{sCtx}, s{sTmp}")
        for i in range(4):
            a(f"    v_cmp_gt_i32_e64 s[{sMask+2*i}:{sMask+2*i+1}], s{sTmp}, v{vG}")
            if i < 3:
                a(f"    s_sub_i32 s{sTmp}, s{sTmp}, 4")
        a("    s_nop 1")
        for step in range(4):
            for i in range(4):
                q = 4 * u + i
                op = "v_mul_f32_dpp" if step == 0 else "v_fmac_f32_dpp"
                a(f"    {op} v{vT+q}, v{vK+4*q+step}, v{vC} quad_perm:[{step},{step},{step},{step}] row_mask:0xf bank_mask:0xf")
        for i in range(4):
            q = 4 * u + i
            a(f"    v_cndmask_b32_e64 v{vT+q}, v{vMV+u}, v{vT+q}, s[{sMask+2*i}:{sMask+2*i+1}]")
    a(f"    s_mov_b32 s{sTmp}, 0x{f32bits(TMASK):08x}")
    a(f"    v_max3_f32 v{vM}, v{vT}, v{vT+1}, s{sTmp}")
    for q in range(2, NQ, 2):
        a(f"    v_max3_f32 v{vM}, v{vT+q}, v{vT+q+1}, v{vM}")
    a(f"""    ds_write_b32 v{vLw}, v{vM} offset:{LDS_MAX}
    s_waitcnt lgkmcnt(0)
    s_barrier""")
    nrd = W // 2
    r0 = vK
    if nrd == 8:
        a(f"""    ds_read_b128 v[{r0}:{r0+3}], v{vLr} offset:{LDS_MAX}
    ds_read_b128 v[{r0+4}:{r0+7}], v{vLr} offset:{LDS_MAX+16}
    s_waitcnt lgkmcnt(0)
    v_max3_f32 v{vM}, v{r0}, v{r0+1}, v{r0+2}
    v_max3_f32 v{vM}, v{vM}, v{r0+3}, v{r0+4}
    v_max3_f32 v{vM}, v{vM}, v{r0+5}, v{r0+6}
    v_max_f32 v{vM}, v{vM}, v{r0+7}""")
    elif nrd == 4:
        a(f"""    ds_read_b128 v[{r0}:{r0+3}], v{vLr} offset:{LDS_MAX}
    s_waitcnt lgkmcnt(0)
    v_max3_f32 v{vM}, v{r0}, v{r0+1}, v{r0+2}
    v_max_f32 v{vM}, v{vM}, v{r0+3}""")
    elif nrd == 2:
        a(f"""    ds_read_b64 v[{r0}:{r0+1}], v{vLr} offset:{LDS_MAX}
    s_waitcnt lgkmcnt(0)
    v_max_f32 v{vM}, v{r0}, v{r0+1}""")
    a(f"""    s_nop 1
    v_max_f32_dpp v{vM}, v{vM}, v{vM} quad_perm:[1,0,3,2] row_mask:0xf bank_mask:0xf
    s_nop 1
    v_max_f32_dpp v{vM}, v{vM}, v{vM} quad_perm:[2,3,0,1] row_mask:0xf bank_mask:0xf
    s_nop 1
    v_max_f32_dpp v{vM}, v{vM}, v{vM} row_half_mirror row_mask:0xf bank_mask:0xf""")
    for q in range(NQ):
        a(f"    v_sub_f32 v{vT+q}, v{vT+q}, v{vM}")
    for q in range(NQ):
        a(f"    v_exp_f32 v{vT+q}, v{vT+q}")
    a("    s_nop 0")
    a(f"    v_add_f32 v{vL}, v{vT}, v{vT+1}")
    for q in range(2, NQ):
        a(f"    v_add_f32 v{vL}, v{vL}, v{vT+q}")
    a(f"    ds_write_b32 v{vLw}, v{vL} offset:{LDS_L}")
    for q in range(NQ):
        a(f"    v_cvt_pk_bf16_f32 v{vT+q}, v{vT+q}, v{vT+q}")
    for q in range(NQ):
        for r in range(4):
            a(f"    v_and_b32 v{vK+4*q+r}, v{vAM+r}, v{vT+q}")
    a("    s_nop 1")
    for q in range(NQ):
        a(f"    s_waitcnt vmcnt({NQ-1-q})")
        c = "0" if q == 0 else f"v[{vO}:{vO+3}]"
        a(f"    v_mfma_f32_16x16x32_bf16 v[{vO}:{vO+3}], v[{vK+4*q}:{vK+4*q+3}], v[{vV+4*q}:{vV+4*q+3}], {c}")
    a(f"""    s_nop 7
    ds_write_b128 v{vOw}, v[{vO}:{vO+3}] offset:{LDS_O}
    s_waitcnt lgkmcnt(0)
    s_barrier
    s_cmp_lg_u32 s{sW}, 0
    s_cbranch_scc1 L_done""")
    rl = vT
    if nrd == 8:
        a(f"""    ds_read_b128 v[{rl}:{rl+3}], v{vLr} offset:{LDS_L}
    ds_read_b128 v[{rl+4}:{rl+7}], v{vLr} offset:{LDS_L+16}""")
    elif nrd == 4:
        a(f"    ds_read_b128 v[{rl}:{rl+3}], v{vLr} offset:{LDS_L}")
    else:
        a(f"    ds_read_b64 v[{rl}:{rl+1}], v{vLr} offset:{LDS_L}")
    for w in range(1, W):
        a(f"    ds_read_b128 v[{vK+4*w}:{vK+4*w+3}], v{vOw} offset:{LDS_O+1024*w}")
    a(f"    s_waitcnt lgkmcnt({min(15, W-1)})")
    a(f"    v_add_f32 v{vL}, v{rl}, v{rl+1}")
    for k in range(2, nrd):
        a(f"    v_add_f32 v{vL}, v{vL}, v{rl+k}")
    a(f"""    s_nop 1
    v_add_f32_dpp v{vL}, v{vL}, v{vL} quad_perm:[1,0,3,2] row_mask:0xf bank_mask:0xf
    s_nop 1
    v_add_f32_dpp v{vL}, v{vL}, v{vL} quad_perm:[2,3,0,1] row_mask:0xf bank_mask:0xf
    s_nop 1
    v_add_f32_dpp v{vL}, v{vL}, v{vL} row_half_mirror row_mask:0xf bank_mask:0xf""")
    for w in range(1, W):
        a(f"    s_waitcnt lgkmcnt({W-1-w})")
        a(f"    v_pk_add_f32 v[{vO}:{vO+1}], v[{vO}:{vO+1}], v[{vK+4*w}:{vK+4*w+1}]")
        a(f"    v_pk_add_f32 v[{vO+2}:{vO+3}], v[{vO+2}:{vO+3}], v[{vK+4*w+2}:{vK+4*w+3}]")
    if tail == "two":
        a(f"""    s_lshl_b32 s{sTmp}, s2, 11
    v_add_u32 v{vOw}, s{sTmp}, v{vOw}
    global_store_dwordx4 v{vOw}, v[{vO}:{vO+3}], s[24:25]
    v_and_b32 v{vTmp}, 8, v0
    v_add_u32 v{vTmp}, s{sTmp}, v{vTmp}
    global_store_dwordx2 v{vTmp}, v[{vM}:{vM+1}], s[24:25] offset:1024""")
    a("""L_done:
    s_endpgm""")
    if tail == "two":
        a(f"""
.globl combine_kernel
.p2align 8
.type combine_kernel,@function
combine_kernel:
    s_cmp_ge_u32 s2, 16
    s_cbranch_scc1 L_cdone
    s_load_dwordx2 s[8:9], s[0:1], 56
    s_load_dwordx2 s[4:5], s[0:1], 40
    v_lshlrev_b32 v1, 4, v0                 ; l*16
    v_lshrrev_b32 v2, 5, v0
    v_lshlrev_b32 v2, 3, v2                 ; h*8
    s_lshl_b32 s3, s2, 11
    s_mov_b32 s10, 0x80000
    s_mov_b32 s11, 0x20000
    s_waitcnt lgkmcnt(0)""")
        for p in range(16):
            a(f"    buffer_load_dwordx2 v[{96+2*p}:{97+2*p}], v2, s[8:11], s3 offen offset:1024")
            a(f"    buffer_load_dwordx4 v[{32+4*p}:{35+4*p}], v1, s[8:11], s3 offen")
            if p < 15:
                a(f"    s_add_u32 s3, s3, 0x8000")
        a(f"""    v_and_b32 v3, 15, v0
    v_lshlrev_b32 v3, 4, v3                 ; (l&15)*8*2 bytes
    v_bfe_u32 v4, v0, 4, 1
    v_lshl_add_u32 v3, v4, 3, v3            ; + ((l>>4)&1)*4*2
    v_lshrrev_b32 v4, 5, v0
    v_lshl_add_u32 v3, v4, 8, v3            ; + h*256
    s_lshl_b32 s3, s2, 9
    v_add_u32 v3, s3, v3
    s_waitcnt vmcnt(0)
    v_max3_f32 v5, v96, v98, v100""")
        for p in range(3, 15, 2):
            a(f"    v_max3_f32 v5, v5, v{96+2*p}, v{98+2*p}")
        a(f"    v_max_f32 v5, v5, v126")
        for p in range(16):
            a(f"    v_sub_f32 v{96+2*p}, v{96+2*p}, v5")
        for p in range(16):
            a(f"    v_exp_f32 v{96+2*p}, v{96+2*p}")
        a("    s_nop 0")
        a("    v_mul_f32 v6, v96, v97")
        for p in range(1, 16):
            a(f"    v_fmac_f32 v6, v{96+2*p}, v{97+2*p}")
        a("    v_rcp_f32 v6, v6")
        for r in range(4):
            a(f"    v_mul_f32 v{8+r}, v96, v{32+r}")
        for p in range(1, 16):
            for r in range(4):
                a(f"    v_fmac_f32 v{8+r}, v{96+2*p}, v{32+4*p+r}")
        for r in range(4):
            a(f"    v_mul_f32 v{8+r}, v{8+r}, v6")
        a("""    v_cvt_pk_bf16_f32 v8, v8, v9
    v_cvt_pk_bf16_f32 v9, v10, v11
    global_store_dwordx2 v3, v[8:9], s[4:5]
L_cdone:
    s_endpgm""")
    a(descriptor(main, nv, 96))
    if tail == "two":
        a(descriptor("combine_kernel", 128, 16))
    return a.text()


if __name__ == "__main__":
    ap = argparse.ArgumentParser()
    ap.add_argument("-o", default="/dev/stdout")
    ap.add_argument("--W", type=int, default=16)
    ap.add_argument("--nospec", action="store_true")
    ap.add_argument("--kflags", default="")
    ap.add_argument("--vflags", default="")
    ap.add_argument("--tail", default="two")
    ap.add_argument("--nomidbar", action="store_true")
    x = ap.parse_args()
    open(x.o, "w").write(gen(W=x.W, spec=not x.nospec, kflags=x.kflags, vflags=x.vflags,
                             tail=x.tail, midbar=not x.nomidbar))
```

```python
import struct, sys, math, argparse

NAME = "standalone__paged_block_table_kv_radixattention__decode"

HEADER = """; Kernarg layout for this problem (64 bytes, ptrs only, base s[0:1]):
"""


def f32bits(x):
    return struct.unpack("<I", struct.pack("<f", x))[0]


LOG2E = 1.4426950408889634
SCALE = (128 ** -0.5) * LOG2E
TMASK = -998244352.0 * LOG2E
NEGINF = 0xFF800000


class Asm:
    def __init__(self):
        self.lines = []

    def __call__(self, s):
        for ln in s.strip("\n").split("\n"):
            self.lines.append(ln)

    def text(self):
        return "\n".join(self.lines) + "\n"


def descriptor(name, vgpr, sgpr):
    acc = (vgpr + 3) // 4 * 4
    return f"""
.section .rodata,"a"
.p2align 6
.amdhsa_kernel {name}
  .amdhsa_next_free_vgpr {vgpr}
  .amdhsa_next_free_sgpr {sgpr}
  .amdhsa_accum_offset {acc}
  .amdhsa_group_segment_fixed_size 0
  .amdhsa_kernarg_size 64
  .amdhsa_user_sgpr_count 2
  .amdhsa_user_sgpr_kernarg_segment_ptr 1
  .amdhsa_system_sgpr_workgroup_id_x 1
.end_amdhsa_kernel
"""


def combine(a, ML, OP, fl, outp, shead):
    for p in range(16):
        a(f"    buffer_load_dwordx2 v[{ML+2*p}:{ML+1+2*p}], v2, s[8:11], s3 offen offset:1024 {fl}")
        a(f"    buffer_load_dwordx4 v[{OP+4*p}:{OP+3+4*p}], v1, s[8:11], s3 offen {fl}")
        if p < 15:
            a(f"    s_add_u32 s3, s3, 0x8000")
    a(f"""    v_and_b32 v3, 15, v0
    v_lshlrev_b32 v3, 4, v3                 ; (l&15)*8*2 bytes
    v_bfe_u32 v4, v0, 4, 1
    v_lshl_add_u32 v3, v4, 3, v3            ; + ((l>>4)&1)*4*2
    v_lshrrev_b32 v4, 5, v0
    v_lshl_add_u32 v3, v4, 8, v3            ; + h*256
    s_lshl_b32 s3, {shead}, 9
    v_add_u32 v3, s3, v3
    s_waitcnt vmcnt(0)
    v_max3_f32 v5, v{ML}, v{ML+2}, v{ML+4}""")
    for p in range(3, 15, 2):
        a(f"    v_max3_f32 v5, v5, v{ML+2*p}, v{ML+2+2*p}")
    a(f"    v_max_f32 v5, v5, v{ML+30}")
    for p in range(16):
        a(f"    v_sub_f32 v{ML+2*p}, v{ML+2*p}, v5")
    for p in range(16):
        a(f"    v_exp_f32 v{ML+2*p}, v{ML+2*p}")
    a("    s_nop 0")
    a(f"    v_mul_f32 v6, v{ML}, v{ML+1}")
    for p in range(1, 16):
        a(f"    v_fmac_f32 v6, v{ML+2*p}, v{ML+1+2*p}")
    a("    v_rcp_f32 v6, v6")
    for r in range(4):
        a(f"    v_mul_f32 v{OP+r}, v{ML}, v{OP+r}")
    for p in range(1, 16):
        for r in range(4):
            a(f"    v_fmac_f32 v{OP+r}, v{ML+2*p}, v{OP+4*p+r}")
    for r in range(4):
        a(f"    v_mul_f32 v{OP+r}, v{OP+r}, v6")
    a(f"""    v_cvt_pk_bf16_f32 v{OP}, v{OP}, v{OP+1}
    v_cvt_pk_bf16_f32 v{OP+1}, v{OP+2}, v{OP+3}
    global_store_dwordx2 v3, v[{OP}:{OP+1}], {outp}""")


def gen(W=16, spec=True, kflags="", vflags="", tail="two", midbar=True):
    U = 32 // W
    NQ = 4 * U
    a = Asm()
    LDS_MAX, LDS_L, LDS_O = 0, 512, 1024
    lds_bytes = LDS_O + W * 1024
    NT = W * 64
    vKoff, vVoff, vG, vC, vLw, vM, vL, vTmp = 1, 2, 3, 4, 5, 6, 7, 30
    vQ = 8
    vAM = 12
    vO = 16
    vMV = 20
    vLr = 28
    vOw = 29
    vT = 32
    vK = vT + NQ
    vK = (vK + 3) // 4 * 4
    vV = vK + 4 * NQ
    nv = vV + 4 * NQ
    if nv < vK + 4 * W + 8:
        nv = vK + 4 * W + 8
    sW = 3
    sHead, sSplit = 26, 27
    sH256 = 28
    sB = 29
    sCtx = 30
    sNblk = 31
    sBT = 32
    sOff = 40
    sNR = 72
    sTmp = 80
    sMask = 84
    main = f"{NAME}_kernel"

    a(HEADER.rstrip("\n"))
    if tail == "two":
        a(f"; @launch kernel={main} grid=(256,1,1) block=({NT},1,1) lds={lds_bytes}")
        a(f"; @launch kernel=combine_kernel grid=(16,1,1) block=(64,1,1) lds=0")
    else:
        a(f"; @launch grid=(256,1,1) block=({NT},1,1) lds={lds_bytes}")
    a(f""".amdgcn_target "amdgcn-amd-amdhsa--gfx950"
.text
.globl {main}
.p2align 8
.type {main},@function
{main}:
    s_cmp_ge_u32 s2, 256
    s_cbranch_scc1 L_done
    s_load_dwordx2 s[8:9], s[0:1], 8            ; K
    s_load_dwordx4 s[16:19], s[0:1], 24
    s_load_dwordx2 s[12:13], s[0:1], 16         ; V
    s_load_dwordx2 s[4:5], s[0:1], 0            ; q
    s_load_dwordx2 s[24:25], s[0:1], 56         ; ws
    s_load_dwordx4 s[20:23], s[0:1], 40
    v_readfirstlane_b32 s{sW}, v0
    v_and_b32 v{vTmp}, 3, v0
    v_lshlrev_b32 v{vTmp}, 4, v{vTmp}
    v_and_b32 v{vG}, 48, v0
    v_lshl_or_b32 v{vTmp}, v{vG}, 2, v{vTmp}
    v_and_b32 v{vKoff}, 12, v0
    v_lshl_or_b32 v{vKoff}, v{vKoff}, 10, v{vTmp}  ; + ((l>>2)&3)*4096
    s_lshr_b32 s{sW}, s{sW}, 6
    s_and_b32 s{sHead}, s2, 15
    s_lshr_b32 s{sSplit}, s2, 4
    s_lshl4_add_u32 s{sB}, s{sW}, s{sSplit}         ; b0 = w*16 + split
    s_lshl_b32 s{sH256}, s{sHead}, 8
    s_lshl_b32 s{sOff}, s{sB}, 16
    s_add_u32 s{sOff}, s{sOff}, s{sH256}
    s_add_u32 s{sOff+1}, s{sOff}, 0x4000
    s_add_u32 s{sOff+2}, s{sOff}, 0x8000
    s_add_u32 s{sOff+3}, s{sOff}, 0xc000
    s_mov_b32 s10, 0x2000000
    s_mov_b32 s11, 0x20000
    s_lshl_b32 s{sTmp}, s{sB}, 2
    s_waitcnt lgkmcnt(0)""")
    if spec:
        for i in range(4):
            a(f"    buffer_load_dwordx4 v[{vK+4*i}:{vK+4*i+3}], v{vKoff}, s[8:11], s{sOff+i} offen {kflags}")
    for u in range(U):
        a(f"    s_load_dword s{sBT+u}, s[16:17], s{sTmp} offset:{u*W*16*4}")
    a(f"    s_load_dword s{sCtx}, s[18:19], 0")
    a(f"""
    v_and_b32 v{vVoff}, 8, v0
    v_lshl_or_b32 v{vTmp}, v{vVoff}, 5, v{vTmp}     ; + h*256
    s_lshl_b32 s{sTmp+1}, s{sHead}, 9
    v_add_u32 v{vTmp}, s{sTmp+1}, v{vTmp}
    global_load_dwordx4 v[{vQ}:{vQ+3}], v{vTmp}, s[4:5]
    v_and_b32 v{vVoff}, 15, v0
    v_lshlrev_b32 v{vVoff}, 4, v{vVoff}
    v_lshl_or_b32 v{vVoff}, v{vG}, 8, v{vVoff}      ; (l>>4)*4096 + (l&15)*16
    v_lshrrev_b32 v{vG}, 4, v{vG}                  ; g = l>>4
    s_mov_b32 s14, 0x2000000
    s_mov_b32 s15, 0x20000
    s_waitcnt lgkmcnt(0)
    s_max_i32 s{sCtx}, s{sCtx}, 0
    s_min_i32 s{sCtx}, s{sCtx}, 8192
    s_add_u32 s{sNblk}, s{sCtx}, 15
    s_lshr_b32 s{sNblk}, s{sNblk}, 4""")
    for u in range(U):
        a(f"    s_and_b32 s{sBT+u}, s{sBT+u}, 511")
    for u in range(U):
        a(f"    s_add_u32 s{sTmp}, s{sB}, {u*W*16}")
        a(f"    s_cmp_lt_u32 s{sTmp}, s{sNblk}")
        a(f"    s_cselect_b32 s{sNR+u}, 0x2000000, 0")
        a(f"    s_cselect_b32 s{sTmp+1}, 0x{f32bits(TMASK):08x}, 0x{NEGINF:08x}" if False else
          f"    s_mov_b32 s{sTmp+2}, 0x{NEGINF:08x}\n    s_cselect_b32 s{sTmp+1}, 0x{f32bits(TMASK):08x}, s{sTmp+2}")
        a(f"    v_mov_b32 v{vMV+u}, s{sTmp+1}")
    if spec:
        a(f"""    s_cmp_eq_u32 s{sBT}, s{sB}
    s_cbranch_scc1 L_spec_ok
    s_waitcnt vmcnt(0)
    s_lshl_b32 s{sOff}, s{sBT}, 16
    s_add_u32 s{sOff}, s{sOff}, s{sH256}
    s_add_u32 s{sOff+1}, s{sOff}, 0x4000
    s_add_u32 s{sOff+2}, s{sOff}, 0x8000
    s_add_u32 s{sOff+3}, s{sOff}, 0xc000""")
        for i in range(4):
            a(f"    buffer_load_dwordx4 v[{vK+4*i}:{vK+4*i+3}], v{vKoff}, s[8:11], s{sOff+i} offen {kflags}")
        a("L_spec_ok:")
    for u in range(0 if not spec else 1, U):
        o = sOff + 4 * u
        a(f"""    s_lshl_b32 s{o}, s{sBT+u}, 16
    s_add_u32 s{o}, s{o}, s{sH256}
    s_add_u32 s{o+1}, s{o}, 0x4000
    s_add_u32 s{o+2}, s{o}, 0x8000
    s_add_u32 s{o+3}, s{o}, 0xc000
    s_mov_b32 s10, s{sNR+u}""")
        for i in range(4):
            q = 4 * u + i
            a(f"    buffer_load_dwordx4 v[{vK+4*q}:{vK+4*q+3}], v{vKoff}, s[8:11], s{o+i} offen {kflags}")
    if midbar:
        a("    s_barrier")
    for u in range(U):
        o = sOff + 4 * u
        a(f"    s_mov_b32 s14, s{sNR+u}")
        for i in range(4):
            q = 4 * u + i
            a(f"    buffer_load_dwordx4 v[{vV+4*q}:{vV+4*q+3}], v{vVoff}, s[12:15], s{o+i} offen {vflags}")
    a(f"""
    v_mov_b32 v{vC}, 0x{f32bits(SCALE):08x}
    v_and_b32 v{vTmp}, 1, v0
    v_lshlrev_b32 v{vTmp}, 4, v{vTmp}
    s_mov_b32 s{sTmp}, 0xffff
    v_lshlrev_b32_e64 v{vTmp}, v{vTmp}, s{sTmp}        ; 0xffff << 16*(l&1)
    v_bfe_u32 v{vTmp+1}, v0, 1, 2
    v_cmp_eq_u32_e64 s[{sMask}:{sMask+1}], 0, v{vTmp+1}
    v_cmp_eq_u32_e64 s[{sMask+2}:{sMask+3}], 1, v{vTmp+1}
    v_cmp_eq_u32_e64 s[{sMask+4}:{sMask+5}], 2, v{vTmp+1}
    v_cmp_eq_u32_e64 s[{sMask+6}:{sMask+7}], 3, v{vTmp+1}
    v_and_b32 v{vLr}, 8, v0
    v_lshlrev_b32 v{vLr}, 5, v{vLr}                   ; h*256
    v_cndmask_b32_e64 v{vAM}, 0, v{vTmp}, s[{sMask}:{sMask+1}]
    v_cndmask_b32_e64 v{vAM+1}, 0, v{vTmp}, s[{sMask+2}:{sMask+3}]
    v_cndmask_b32_e64 v{vAM+2}, 0, v{vTmp}, s[{sMask+4}:{sMask+5}]
    v_cndmask_b32_e64 v{vAM+3}, 0, v{vTmp}, s[{sMask+6}:{sMask+7}]
    s_lshl_b32 s{sTmp}, s{sW}, 4
    v_lshl_add_u32 v{vLw}, v{vG}, 2, v{vLr}
    v_add_u32 v{vLw}, s{sTmp}, v{vLw}                ; h*256 + (w*4+g)*4
    v_and_b32 v{vTmp}, 7, v0
    v_lshl_add_u32 v{vLr}, v{vTmp}, {int(math.log2(W*2))}, v{vLr}   ; h*256 + e*(W/2 floats)
    v_lshlrev_b32 v{vOw}, 4, v0                     ; tid*16  (= w*1024 + l*16)
""")
    nV = NQ
    for u in range(U):
        later = (U - 1 - u) * 4 + nV
        a(f"    s_waitcnt vmcnt({later})")
        for i in range(4):
            q = 4 * u + i
            a(f"    v_mfma_f32_16x16x32_bf16 v[{vK+4*q}:{vK+4*q+3}], v[{vK+4*q}:{vK+4*q+3}], v[{vQ}:{vQ+3}], 0")
        a(f"    s_add_u32 s{sTmp}, s{sB}, {u*W*16}")
        a(f"    s_lshl_b32 s{sTmp}, s{sTmp}, 4")
        a(f"    s_sub_i32 s{sTmp}, s{sCtx}, s{sTmp}")
        for i in range(4):
            a(f"    v_cmp_gt_i32_e64 s[{sMask+2*i}:{sMask+2*i+1}], s{sTmp}, v{vG}")
            if i < 3:
                a(f"    s_sub_i32 s{sTmp}, s{sTmp}, 4")
        a("    s_nop 1")
        for step in range(4):
            for i in range(4):
                q = 4 * u + i
                op = "v_mul_f32_dpp" if step == 0 else "v_fmac_f32_dpp"
                a(f"    {op} v{vT+q}, v{vK+4*q+step}, v{vC} quad_perm:[{step},{step},{step},{step}] row_mask:0xf bank_mask:0xf")
        for i in range(4):
            q = 4 * u + i
            a(f"    v_cndmask_b32_e64 v{vT+q}, v{vMV+u}, v{vT+q}, s[{sMask+2*i}:{sMask+2*i+1}]")
    a(f"    s_mov_b32 s{sTmp}, 0x{f32bits(TMASK):08x}")
    a(f"    v_max3_f32 v{vM}, v{vT}, v{vT+1}, s{sTmp}")
    for q in range(2, NQ, 2):
        a(f"    v_max3_f32 v{vM}, v{vT+q}, v{vT+q+1}, v{vM}")
    a(f"""    ds_write_b32 v{vLw}, v{vM} offset:{LDS_MAX}
    s_waitcnt lgkmcnt(0)
    s_barrier""")
    nrd = W // 2
    r0 = vK
    if nrd == 8:
        a(f"""    ds_read_b128 v[{r0}:{r0+3}], v{vLr} offset:{LDS_MAX}
    ds_read_b128 v[{r0+4}:{r0+7}], v{vLr} offset:{LDS_MAX+16}
    s_waitcnt lgkmcnt(0)
    v_max3_f32 v{vM}, v{r0}, v{r0+1}, v{r0+2}
    v_max3_f32 v{vM}, v{vM}, v{r0+3}, v{r0+4}
    v_max3_f32 v{vM}, v{vM}, v{r0+5}, v{r0+6}
    v_max_f32 v{vM}, v{vM}, v{r0+7}""")
    elif nrd == 4:
        a(f"""    ds_read_b128 v[{r0}:{r0+3}], v{vLr} offset:{LDS_MAX}
    s_waitcnt lgkmcnt(0)
    v_max3_f32 v{vM}, v{r0}, v{r0+1}, v{r0+2}
    v_max_f32 v{vM}, v{vM}, v{r0+3}""")
    elif nrd == 2:
        a(f"""    ds_read_b64 v[{r0}:{r0+1}], v{vLr} offset:{LDS_MAX}
    s_waitcnt lgkmcnt(0)
    v_max_f32 v{vM}, v{r0}, v{r0+1}""")
    a(f"""    s_nop 1
    v_max_f32_dpp v{vM}, v{vM}, v{vM} quad_perm:[1,0,3,2] row_mask:0xf bank_mask:0xf
    s_nop 1
    v_max_f32_dpp v{vM}, v{vM}, v{vM} quad_perm:[2,3,0,1] row_mask:0xf bank_mask:0xf
    s_nop 1
    v_max_f32_dpp v{vM}, v{vM}, v{vM} row_half_mirror row_mask:0xf bank_mask:0xf""")
    for q in range(NQ):
        a(f"    v_sub_f32 v{vT+q}, v{vT+q}, v{vM}")
    for q in range(NQ):
        a(f"    v_exp_f32 v{vT+q}, v{vT+q}")
    a("    s_nop 0")
    a(f"    v_add_f32 v{vL}, v{vT}, v{vT+1}")
    for q in range(2, NQ):
        a(f"    v_add_f32 v{vL}, v{vL}, v{vT+q}")
    a(f"    ds_write_b32 v{vLw}, v{vL} offset:{LDS_L}")
    for q in range(NQ):
        a(f"    v_cvt_pk_bf16_f32 v{vT+q}, v{vT+q}, v{vT+q}")
    for q in range(NQ):
        for r in range(4):
            a(f"    v_and_b32 v{vK+4*q+r}, v{vAM+r}, v{vT+q}")
    a("    s_nop 1")
    for q in range(NQ):
        a(f"    s_waitcnt vmcnt({NQ-1-q})")
        c = "0" if q == 0 else f"v[{vO}:{vO+3}]"
        a(f"    v_mfma_f32_16x16x32_bf16 v[{vO}:{vO+3}], v[{vK+4*q}:{vK+4*q+3}], v[{vV+4*q}:{vV+4*q+3}], {c}")
    a(f"""    s_nop 7
    ds_write_b128 v{vOw}, v[{vO}:{vO+3}] offset:{LDS_O}
    s_waitcnt lgkmcnt(0)
    s_barrier
    s_cmp_lg_u32 s{sW}, 0
    s_cbranch_scc1 L_done""")
    rl = vT
    if nrd == 8:
        a(f"""    ds_read_b128 v[{rl}:{rl+3}], v{vLr} offset:{LDS_L}
    ds_read_b128 v[{rl+4}:{rl+7}], v{vLr} offset:{LDS_L+16}""")
    elif nrd == 4:
        a(f"    ds_read_b128 v[{rl}:{rl+3}], v{vLr} offset:{LDS_L}")
    else:
        a(f"    ds_read_b64 v[{rl}:{rl+1}], v{vLr} offset:{LDS_L}")
    for w in range(1, W):
        a(f"    ds_read_b128 v[{vK+4*w}:{vK+4*w+3}], v{vOw} offset:{LDS_O+1024*w}")
    a(f"    s_waitcnt lgkmcnt({min(15, W-1)})")
    a(f"    v_add_f32 v{vL}, v{rl}, v{rl+1}")
    for k in range(2, nrd):
        a(f"    v_add_f32 v{vL}, v{vL}, v{rl+k}")
    a(f"""    s_nop 1
    v_add_f32_dpp v{vL}, v{vL}, v{vL} quad_perm:[1,0,3,2] row_mask:0xf bank_mask:0xf
    s_nop 1
    v_add_f32_dpp v{vL}, v{vL}, v{vL} quad_perm:[2,3,0,1] row_mask:0xf bank_mask:0xf
    s_nop 1
    v_add_f32_dpp v{vL}, v{vL}, v{vL} row_half_mirror row_mask:0xf bank_mask:0xf""")
    for w in range(1, W):
        a(f"    s_waitcnt lgkmcnt({W-1-w})")
        a(f"    v_pk_add_f32 v[{vO}:{vO+1}], v[{vO}:{vO+1}], v[{vK+4*w}:{vK+4*w+1}]")
        a(f"    v_pk_add_f32 v[{vO+2}:{vO+3}], v[{vO+2}:{vO+3}], v[{vK+4*w+2}:{vK+4*w+3}]")
    if tail == "two":
        a(f"""    s_lshl_b32 s{sTmp}, s2, 11
    v_add_u32 v{vOw}, s{sTmp}, v{vOw}
    global_store_dwordx4 v{vOw}, v[{vO}:{vO+3}], s[24:25]
    v_and_b32 v{vTmp}, 8, v0
    v_add_u32 v{vTmp}, s{sTmp}, v{vTmp}
    global_store_dwordx2 v{vTmp}, v[{vM}:{vM+1}], s[24:25] offset:1024""")
    if tail == "last":
        ML = 8
        OP = 40
        a(f"""    s_lshl_b32 s{sTmp}, s2, 11
    v_add_u32 v{vOw}, s{sTmp}, v{vOw}
    global_store_dwordx4 v{vOw}, v[{vO}:{vO+3}], s[24:25] sc1
    v_and_b32 v{vTmp}, 8, v0
    v_add_u32 v{vTmp}, s{sTmp}, v{vTmp}
    global_store_dwordx2 v{vTmp}, v[{vM}:{vM+1}], s[24:25] offset:1024 sc1
    s_lshl_b32 s{sTmp}, s{sHead}, 4
    v_mov_b32 v1, s{sTmp}
    v_mov_b32 v2, 1
    s_mov_b64 exec, 1
    s_waitcnt vmcnt(0)
    global_atomic_add v3, v1, v2, s[22:23] sc0 sc1
    s_mov_b64 exec, -1
    v_lshlrev_b32 v1, 4, v0                 ; l*16
    v_lshrrev_b32 v2, 5, v0
    v_lshlrev_b32 v2, 3, v2                 ; h*8
    s_lshl_b32 s3, s{sHead}, 11
    s_mov_b32 s8, s24
    s_mov_b32 s9, s25
    s_mov_b32 s10, 0x80000
    s_waitcnt vmcnt(0)
    v_readfirstlane_b32 s{sTmp}, v3
    s_nop 3
    s_cmp_lg_u32 s{sTmp}, 15
    s_cbranch_scc1 L_done""")
        combine(a, ML, OP, "sc1", "s[20:21]", f"s{sHead}")
    a("""L_done:
    s_endpgm""")
    if tail == "two":
        a(f"""
.globl combine_kernel
.p2align 8
.type combine_kernel,@function
combine_kernel:
    s_cmp_ge_u32 s2, 16
    s_cbranch_scc1 L_cdone
    s_load_dwordx2 s[8:9], s[0:1], 56
    s_load_dwordx2 s[4:5], s[0:1], 40
    v_lshlrev_b32 v1, 4, v0                 ; l*16
    v_lshrrev_b32 v2, 5, v0
    v_lshlrev_b32 v2, 3, v2                 ; h*8
    s_lshl_b32 s3, s2, 11
    s_mov_b32 s10, 0x80000
    s_mov_b32 s11, 0x20000
    s_waitcnt lgkmcnt(0)""")
        combine(a, 96, 32, "", "s[4:5]", "s2")
        a("""L_cdone:
    s_endpgm""")
    a(descriptor(main, nv, 96))
    if tail == "two":
        a(descriptor("combine_kernel", 128, 16))
    return a.text()


if __name__ == "__main__":
    ap = argparse.ArgumentParser()
    ap.add_argument("-o", default="/dev/stdout")
    ap.add_argument("--W", type=int, default=16)
    ap.add_argument("--nospec", action="store_true")
    ap.add_argument("--kflags", default="")
    ap.add_argument("--vflags", default="")
    ap.add_argument("--tail", default="two")
    ap.add_argument("--nomidbar", action="store_true")
    x = ap.parse_args()
    open(x.o, "w").write(gen(W=x.W, spec=not x.nospec, kflags=x.kflags, vflags=x.vflags,
                             tail=x.tail, midbar=not x.nomidbar))
```

```python
import struct, sys, math, argparse

NAME = "standalone__paged_block_table_kv_radixattention__decode"

HEADER = """; Kernarg layout for this problem (64 bytes, ptrs only, base s[0:1]):
"""


def f32bits(x):
    return struct.unpack("<I", struct.pack("<f", x))[0]


LOG2E = 1.4426950408889634
SCALE = (128 ** -0.5) * LOG2E
TMASK = -998244352.0 * LOG2E
NEGINF = 0xFF800000


class Asm:
    def __init__(self):
        self.lines = []

    def __call__(self, s):
        for ln in s.strip("\n").split("\n"):
            self.lines.append(ln)

    def text(self):
        return "\n".join(self.lines) + "\n"


def descriptor(name, vgpr, sgpr):
    acc = (vgpr + 3) // 4 * 4
    return f"""
.section .rodata,"a"
.p2align 6
.amdhsa_kernel {name}
  .amdhsa_next_free_vgpr {vgpr}
  .amdhsa_next_free_sgpr {sgpr}
  .amdhsa_accum_offset {acc}
  .amdhsa_group_segment_fixed_size 0
  .amdhsa_kernarg_size 64
  .amdhsa_user_sgpr_count 2
  .amdhsa_user_sgpr_kernarg_segment_ptr 1
  .amdhsa_system_sgpr_workgroup_id_x 1
.end_amdhsa_kernel
"""


def combine(a, ML, OP, fl, outp, shead, soff):
    for p in range(16):
        a(f"    buffer_load_dwordx2 v[{ML+2*p}:{ML+1+2*p}], v2, s[8:11], {soff} offen offset:1024 {fl}")
        a(f"    buffer_load_dwordx4 v[{OP+4*p}:{OP+3+4*p}], v1, s[8:11], {soff} offen {fl}")
        if p < 15:
            a(f"    s_add_u32 {soff}, {soff}, 0x8000")
    a(f"""    v_and_b32 v3, 15, v0
    v_lshlrev_b32 v3, 4, v3                 ; (l&15)*8*2 bytes
    v_bfe_u32 v4, v0, 4, 1
    v_lshl_add_u32 v3, v4, 3, v3            ; + ((l>>4)&1)*4*2
    v_lshrrev_b32 v4, 5, v0
    v_lshl_add_u32 v3, v4, 8, v3            ; + h*256
    s_lshl_b32 {soff}, {shead}, 9
    v_add_u32 v3, {soff}, v3
    s_waitcnt vmcnt(0)
    v_max3_f32 v5, v{ML}, v{ML+2}, v{ML+4}""")
    for p in range(3, 15, 2):
        a(f"    v_max3_f32 v5, v5, v{ML+2*p}, v{ML+2+2*p}")
    a(f"    v_max_f32 v5, v5, v{ML+30}")
    for p in range(16):
        a(f"    v_sub_f32 v{ML+2*p}, v{ML+2*p}, v5")
    for p in range(16):
        a(f"    v_exp_f32 v{ML+2*p}, v{ML+2*p}")
    a("    s_nop 0")
    a(f"    v_mul_f32 v6, v{ML}, v{ML+1}")
    for p in range(1, 16):
        a(f"    v_fmac_f32 v6, v{ML+2*p}, v{ML+1+2*p}")
    a("    v_rcp_f32 v6, v6")
    for r in range(4):
        a(f"    v_mul_f32 v{OP+r}, v{ML}, v{OP+r}")
    for p in range(1, 16):
        for r in range(4):
            a(f"    v_fmac_f32 v{OP+r}, v{ML+2*p}, v{OP+4*p+r}")
    for r in range(4):
        a(f"    v_mul_f32 v{OP+r}, v{OP+r}, v6")
    a(f"""    v_cvt_pk_bf16_f32 v{OP}, v{OP}, v{OP+1}
    v_cvt_pk_bf16_f32 v{OP+1}, v{OP+2}, v{OP+3}
    global_store_dwordx2 v3, v[{OP}:{OP+1}], {outp}""")


def gen(W=16, spec=True, kflags="", vflags="", tail="two", midbar=True, stamps=False):
    U = 32 // W
    NQ = 4 * U
    a = Asm()
    LDS_MAX, LDS_L, LDS_O = 0, 512, 1024
    lds_bytes = LDS_O + W * 1024
    NT = W * 64
    vKoff, vVoff, vG, vC, vLw, vM, vL, vTmp = 1, 2, 3, 4, 5, 6, 7, 30
    vQ = 8
    vAM = 12
    vO = 16
    vMV = 20
    vLr = 28
    vOw = 29
    vT = 32
    vK = vT + NQ
    vK = (vK + 3) // 4 * 4
    vV = vK + 4 * NQ
    nv = vV + 4 * NQ
    sW = 3
    sHead, sSplit = 26, 27
    sH256 = 28
    sB = 29
    sCtx = 30
    sNblk = 31
    sBT = 32
    sOff = 40
    sST = 56
    sNR = 72
    sTmp = 80
    sMask = 84
    main = f"{NAME}_kernel"

    def stamp(k):
        if stamps:
            a(f"    s_memrealtime s[{sST+2*k}:{sST+2*k+1}]")

    def stamp_out():
        if not stamps:
            return
        a(f"    s_waitcnt lgkmcnt(0) vmcnt(0)")
        a(f"    s_getreg_b32 s{sST+1}, hwreg(HW_REG_XCC_ID)")
        a(f"    s_getreg_b32 s{sST+3}, hwreg(HW_REG_HW_ID)")
        for k in range(8):
            a(f"    v_mov_b32 v{40+k}, s{sST+2*k}")
        a(f"    v_mov_b32 v48, s{sST+1}")
        a(f"    v_mov_b32 v49, s{sST+3}")
        a(f"""    s_lshl_b32 s{sTmp}, s2, 10
    s_lshl_b32 s{sTmp+1}, s{sW}, 6
    s_add_u32 s{sTmp}, s{sTmp}, s{sTmp+1}
    s_add_u32 s{sTmp}, s{sTmp}, 0x100000
    v_mov_b32 v50, s{sTmp}
    s_mov_b64 exec, 1
    global_store_dwordx4 v50, v[40:43], s[24:25]
    global_store_dwordx4 v50, v[44:47], s[24:25] offset:16
    global_store_dwordx2 v50, v[48:49], s[24:25] offset:32
    s_mov_b64 exec, -1""")

    a(HEADER.rstrip("\n"))
    if tail == "two":
        a(f"; @launch kernel={main} grid=(256,1,1) block=({NT},1,1) lds={lds_bytes}")
        a(f"; @launch kernel=combine_kernel grid=(16,1,1) block=(64,1,1) lds=0")
    else:
        a(f"; @launch grid=(256,1,1) block=({NT},1,1) lds={lds_bytes}")
    a(f""".amdgcn_target "amdgcn-amd-amdhsa--gfx950"
.text
.globl {main}
.p2align 8
.type {main},@function
{main}:
    s_cmp_ge_u32 s2, 256
    s_cbranch_scc1 L_exit""")
    stamp(0)
    if stamps:
        for k in range(1, 8):
            a(f"    s_mov_b32 s{sST+2*k}, 0")
    a(f"""    s_load_dwordx2 s[8:9], s[0:1], 8            ; K
    s_load_dwordx4 s[16:19], s[0:1], 24
    s_load_dwordx2 s[12:13], s[0:1], 16         ; V
    s_load_dwordx2 s[4:5], s[0:1], 0            ; q
    s_load_dwordx2 s[24:25], s[0:1], 56         ; ws
    s_load_dwordx4 s[20:23], s[0:1], 40
    v_readfirstlane_b32 s{sW}, v0
    v_and_b32 v{vTmp}, 3, v0
    v_lshlrev_b32 v{vTmp}, 4, v{vTmp}
    v_and_b32 v{vG}, 48, v0
    v_lshl_or_b32 v{vTmp}, v{vG}, 2, v{vTmp}
    v_and_b32 v{vKoff}, 12, v0
    v_lshl_or_b32 v{vKoff}, v{vKoff}, 10, v{vTmp}  ; + ((l>>2)&3)*4096
    s_lshr_b32 s{sW}, s{sW}, 6
    s_and_b32 s{sHead}, s2, 15
    s_lshr_b32 s{sSplit}, s2, 4
    s_lshl4_add_u32 s{sB}, s{sW}, s{sSplit}         ; b0 = w*16 + split
    s_lshl_b32 s{sH256}, s{sHead}, 8
    s_lshl_b32 s{sOff}, s{sB}, 16
    s_add_u32 s{sOff}, s{sOff}, s{sH256}
    s_add_u32 s{sOff+1}, s{sOff}, 0x4000
    s_add_u32 s{sOff+2}, s{sOff}, 0x8000
    s_add_u32 s{sOff+3}, s{sOff}, 0xc000
    s_mov_b32 s10, 0x2000000
    s_mov_b32 s11, 0x20000
    s_lshl_b32 s{sTmp}, s{sB}, 2
    s_waitcnt lgkmcnt(0)""")
    if spec:
        for i in range(4):
            a(f"    buffer_load_dwordx4 v[{vK+4*i}:{vK+4*i+3}], v{vKoff}, s[8:11], s{sOff+i} offen {kflags}")
    stamp(1)
    for u in range(U):
        a(f"    s_load_dword s{sBT+u}, s[16:17], s{sTmp} offset:{u*W*16*4}")
    a(f"    s_load_dword s{sCtx}, s[18:19], 0")
    a(f"""
    v_and_b32 v{vVoff}, 8, v0
    v_lshl_or_b32 v{vTmp}, v{vVoff}, 5, v{vTmp}     ; + h*256
    s_lshl_b32 s{sTmp+1}, s{sHead}, 9
    v_add_u32 v{vTmp}, s{sTmp+1}, v{vTmp}
    global_load_dwordx4 v[{vQ}:{vQ+3}], v{vTmp}, s[4:5]
    v_and_b32 v{vVoff}, 15, v0
    v_lshlrev_b32 v{vVoff}, 4, v{vVoff}
    v_lshl_or_b32 v{vVoff}, v{vG}, 8, v{vVoff}      ; (l>>4)*4096 + (l&15)*16
    v_lshrrev_b32 v{vG}, 4, v{vG}                  ; g = l>>4
    s_mov_b32 s14, 0x2000000
    s_mov_b32 s15, 0x20000
    s_waitcnt lgkmcnt(0)
    s_max_i32 s{sCtx}, s{sCtx}, 0
    s_min_i32 s{sCtx}, s{sCtx}, 8192
    s_add_u32 s{sNblk}, s{sCtx}, 15
    s_lshr_b32 s{sNblk}, s{sNblk}, 4""")
    for u in range(U):
        a(f"    s_and_b32 s{sBT+u}, s{sBT+u}, 511")
    a(f"    s_mov_b32 s{sTmp+2}, 0x{NEGINF:08x}")
    for u in range(U):
        a(f"    s_add_u32 s{sTmp}, s{sB}, {u*W*16}")
        a(f"    s_cmp_lt_u32 s{sTmp}, s{sNblk}")
        a(f"    s_cselect_b32 s{sNR+u}, 0x2000000, 0")
        a(f"    s_cselect_b32 s{sTmp+1}, 0x{f32bits(TMASK):08x}, s{sTmp+2}")
        a(f"    v_mov_b32 v{vMV+u}, s{sTmp+1}")
    if spec:
        a(f"""    s_cmp_eq_u32 s{sBT}, s{sB}
    s_cbranch_scc1 L_spec_ok
    s_waitcnt vmcnt(0)
    s_lshl_b32 s{sOff}, s{sBT}, 16
    s_add_u32 s{sOff}, s{sOff}, s{sH256}
    s_add_u32 s{sOff+1}, s{sOff}, 0x4000
    s_add_u32 s{sOff+2}, s{sOff}, 0x8000
    s_add_u32 s{sOff+3}, s{sOff}, 0xc000""")
        for i in range(4):
            a(f"    buffer_load_dwordx4 v[{vK+4*i}:{vK+4*i+3}], v{vKoff}, s[8:11], s{sOff+i} offen {kflags}")
        a("L_spec_ok:")
    for u in range(0 if not spec else 1, U):
        o = sOff + 4 * u
        a(f"""    s_lshl_b32 s{o}, s{sBT+u}, 16
    s_add_u32 s{o}, s{o}, s{sH256}
    s_add_u32 s{o+1}, s{o}, 0x4000
    s_add_u32 s{o+2}, s{o}, 0x8000
    s_add_u32 s{o+3}, s{o}, 0xc000
    s_mov_b32 s10, s{sNR+u}""")
        for i in range(4):
            q = 4 * u + i
            a(f"    buffer_load_dwordx4 v[{vK+4*q}:{vK+4*q+3}], v{vKoff}, s[8:11], s{o+i} offen {kflags}")
    if midbar:
        a("    s_barrier")
    for u in range(U):
        o = sOff + 4 * u
        a(f"    s_mov_b32 s14, s{sNR+u}")
        for i in range(4):
            q = 4 * u + i
            a(f"    buffer_load_dwordx4 v[{vV+4*q}:{vV+4*q+3}], v{vVoff}, s[12:15], s{o+i} offen {vflags}")
    stamp(2)
    a(f"""
    v_mov_b32 v{vC}, 0x{f32bits(SCALE):08x}
    v_and_b32 v{vTmp}, 1, v0
    v_lshlrev_b32 v{vTmp}, 4, v{vTmp}
    s_mov_b32 s{sTmp}, 0xffff
    v_lshlrev_b32_e64 v{vTmp}, v{vTmp}, s{sTmp}        ; 0xffff << 16*(l&1)
    v_bfe_u32 v{vTmp+1}, v0, 1, 2
    v_cmp_eq_u32_e64 s[{sMask}:{sMask+1}], 0, v{vTmp+1}
    v_cmp_eq_u32_e64 s[{sMask+2}:{sMask+3}], 1, v{vTmp+1}
    v_cmp_eq_u32_e64 s[{sMask+4}:{sMask+5}], 2, v{vTmp+1}
    v_cmp_eq_u32_e64 s[{sMask+6}:{sMask+7}], 3, v{vTmp+1}
    v_and_b32 v{vLr}, 8, v0
    v_lshlrev_b32 v{vLr}, 5, v{vLr}                   ; h*256
    v_cndmask_b32_e64 v{vAM}, 0, v{vTmp}, s[{sMask}:{sMask+1}]
    v_cndmask_b32_e64 v{vAM+1}, 0, v{vTmp}, s[{sMask+2}:{sMask+3}]
    v_cndmask_b32_e64 v{vAM+2}, 0, v{vTmp}, s[{sMask+4}:{sMask+5}]
    v_cndmask_b32_e64 v{vAM+3}, 0, v{vTmp}, s[{sMask+6}:{sMask+7}]
    s_lshl_b32 s{sTmp}, s{sW}, 4
    v_lshl_add_u32 v{vLw}, v{vG}, 2, v{vLr}
    v_add_u32 v{vLw}, s{sTmp}, v{vLw}                ; h*256 + (w*4+g)*4
    v_and_b32 v{vTmp}, 7, v0
    v_lshl_add_u32 v{vLr}, v{vTmp}, {int(math.log2(W*2))}, v{vLr}   ; h*256 + e*(W/2 floats)
    v_lshlrev_b32 v{vOw}, 4, v0                     ; tid*16  (= w*1024 + l*16)
""")
    nV = NQ
    for u in range(U):
        later = (U - 1 - u) * 4 + nV
        a(f"    s_waitcnt vmcnt({later})")
        if u == 0:
            stamp(3)
        for i in range(4):
            q = 4 * u + i
            a(f"    v_mfma_f32_16x16x32_bf16 v[{vK+4*q}:{vK+4*q+3}], v[{vK+4*q}:{vK+4*q+3}], v[{vQ}:{vQ+3}], 0")
        a(f"    s_add_u32 s{sTmp}, s{sB}, {u*W*16}")
        a(f"    s_lshl_b32 s{sTmp}, s{sTmp}, 4")
        a(f"    s_sub_i32 s{sTmp}, s{sCtx}, s{sTmp}")
        for i in range(4):
            a(f"    v_cmp_gt_i32_e64 s[{sMask+2*i}:{sMask+2*i+1}], s{sTmp}, v{vG}")
            if i < 3:
                a(f"    s_sub_i32 s{sTmp}, s{sTmp}, 4")
        a("    s_nop 1")
        for step in range(4):
            for i in range(4):
                q = 4 * u + i
                op = "v_mul_f32_dpp" if step == 0 else "v_fmac_f32_dpp"
                a(f"    {op} v{vT+q}, v{vK+4*q+step}, v{vC} quad_perm:[{step},{step},{step},{step}] row_mask:0xf bank_mask:0xf")
        for i in range(4):
            q = 4 * u + i
            a(f"    v_cndmask_b32_e64 v{vT+q}, v{vMV+u}, v{vT+q}, s[{sMask+2*i}:{sMask+2*i+1}]")
    a(f"    s_mov_b32 s{sTmp}, 0x{f32bits(TMASK):08x}")
    a(f"    v_max3_f32 v{vM}, v{vT}, v{vT+1}, s{sTmp}")
    for q in range(2, NQ, 2):
        a(f"    v_max3_f32 v{vM}, v{vT+q}, v{vT+q+1}, v{vM}")
    a(f"""    ds_write_b32 v{vLw}, v{vM} offset:{LDS_MAX}
    s_waitcnt lgkmcnt(0)
    s_barrier""")
    stamp(4)
    nrd = W // 2
    r0 = vK
    if nrd == 8:
        a(f"""    ds_read_b128 v[{r0}:{r0+3}], v{vLr} offset:{LDS_MAX}
    ds_read_b128 v[{r0+4}:{r0+7}], v{vLr} offset:{LDS_MAX+16}
    s_waitcnt lgkmcnt(0)
    v_max3_f32 v{vM}, v{r0}, v{r0+1}, v{r0+2}
    v_max3_f32 v{vM}, v{vM}, v{r0+3}, v{r0+4}
    v_max3_f32 v{vM}, v{vM}, v{r0+5}, v{r0+6}
    v_max_f32 v{vM}, v{vM}, v{r0+7}""")
    elif nrd == 4:
        a(f"""    ds_read_b128 v[{r0}:{r0+3}], v{vLr} offset:{LDS_MAX}
    s_waitcnt lgkmcnt(0)
    v_max3_f32 v{vM}, v{r0}, v{r0+1}, v{r0+2}
    v_max_f32 v{vM}, v{vM}, v{r0+3}""")
    elif nrd == 2:
        a(f"""    ds_read_b64 v[{r0}:{r0+1}], v{vLr} offset:{LDS_MAX}
    s_waitcnt lgkmcnt(0)
    v_max_f32 v{vM}, v{r0}, v{r0+1}""")
    a(f"""    s_nop 1
    v_max_f32_dpp v{vM}, v{vM}, v{vM} quad_perm:[1,0,3,2] row_mask:0xf bank_mask:0xf
    s_nop 1
    v_max_f32_dpp v{vM}, v{vM}, v{vM} quad_perm:[2,3,0,1] row_mask:0xf bank_mask:0xf
    s_nop 1
    v_max_f32_dpp v{vM}, v{vM}, v{vM} row_half_mirror row_mask:0xf bank_mask:0xf""")
    for q in range(NQ):
        a(f"    v_sub_f32 v{vT+q}, v{vT+q}, v{vM}")
    for q in range(NQ):
        a(f"    v_exp_f32 v{vT+q}, v{vT+q}")
    a("    s_nop 0")
    a(f"    v_add_f32 v{vL}, v{vT}, v{vT+1}")
    for q in range(2, NQ):
        a(f"    v_add_f32 v{vL}, v{vL}, v{vT+q}")
    a(f"    ds_write_b32 v{vLw}, v{vL} offset:{LDS_L}")
    for q in range(NQ):
        a(f"    v_cvt_pk_bf16_f32 v{vT+q}, v{vT+q}, v{vT+q}")
    for q in range(NQ):
        for r in range(4):
            a(f"    v_and_b32 v{vK+4*q+r}, v{vAM+r}, v{vT+q}")
    a("    s_nop 1")
    for q in range(NQ):
        a(f"    s_waitcnt vmcnt({NQ-1-q})")
        c = "0" if q == 0 else f"v[{vO}:{vO+3}]"
        a(f"    v_mfma_f32_16x16x32_bf16 v[{vO}:{vO+3}], v[{vK+4*q}:{vK+4*q+3}], v[{vV+4*q}:{vV+4*q+3}], {c}")
    stamp(5)
    a(f"""    s_nop 7
    ds_write_b128 v{vOw}, v[{vO}:{vO+3}] offset:{LDS_O}
    s_waitcnt lgkmcnt(0)
    s_barrier
    s_cmp_lg_u32 s{sW}, 0
    s_cbranch_scc1 L_done""")
    rl = vT
    if nrd == 8:
        a(f"""    ds_read_b128 v[{rl}:{rl+3}], v{vLr} offset:{LDS_L}
    ds_read_b128 v[{rl+4}:{rl+7}], v{vLr} offset:{LDS_L+16}""")
    elif nrd == 4:
        a(f"    ds_read_b128 v[{rl}:{rl+3}], v{vLr} offset:{LDS_L}")
    else:
        a(f"    ds_read_b64 v[{rl}:{rl+1}], v{vLr} offset:{LDS_L}")
    for w in range(1, W):
        a(f"    ds_read_b128 v[{vK+4*w}:{vK+4*w+3}], v{vOw} offset:{LDS_O+1024*w}")
    a(f"    s_waitcnt lgkmcnt({min(15, W-1)})")
    a(f"    v_add_f32 v{vL}, v{rl}, v{rl+1}")
    for k in range(2, nrd):
        a(f"    v_add_f32 v{vL}, v{vL}, v{rl+k}")
    a(f"""    s_nop 1
    v_add_f32_dpp v{vL}, v{vL}, v{vL} quad_perm:[1,0,3,2] row_mask:0xf bank_mask:0xf
    s_nop 1
    v_add_f32_dpp v{vL}, v{vL}, v{vL} quad_perm:[2,3,0,1] row_mask:0xf bank_mask:0xf
    s_nop 1
    v_add_f32_dpp v{vL}, v{vL}, v{vL} row_half_mirror row_mask:0xf bank_mask:0xf""")
    for w in range(1, W):
        a(f"    s_waitcnt lgkmcnt({W-1-w})")
        a(f"    v_pk_add_f32 v[{vO}:{vO+1}], v[{vO}:{vO+1}], v[{vK+4*w}:{vK+4*w+1}]")
        a(f"    v_pk_add_f32 v[{vO+2}:{vO+3}], v[{vO+2}:{vO+3}], v[{vK+4*w+2}:{vK+4*w+3}]")
    if tail == "two":
        a(f"""    s_lshl_b32 s{sTmp}, s2, 11
    v_add_u32 v{vOw}, s{sTmp}, v{vOw}
    global_store_dwordx4 v{vOw}, v[{vO}:{vO+3}], s[24:25]
    v_and_b32 v{vTmp}, 8, v0
    v_add_u32 v{vTmp}, s{sTmp}, v{vTmp}
    global_store_dwordx2 v{vTmp}, v[{vM}:{vM+1}], s[24:25] offset:1024""")
    if tail == "last":
        ML = 8
        OP = 40
        a(f"""    s_lshl_b32 s{sTmp}, s2, 11
    v_add_u32 v{vOw}, s{sTmp}, v{vOw}
    global_store_dwordx4 v{vOw}, v[{vO}:{vO+3}], s[24:25] sc1
    v_and_b32 v{vTmp}, 8, v0
    v_add_u32 v{vTmp}, s{sTmp}, v{vTmp}
    global_store_dwordx2 v{vTmp}, v[{vM}:{vM+1}], s[24:25] offset:1024 sc1
    s_lshl_b32 s{sTmp}, s{sHead}, 4
    v_mov_b32 v1, s{sTmp}
    v_mov_b32 v2, 1
    s_mov_b64 exec, 1
    s_waitcnt vmcnt(0)
    global_atomic_add v3, v1, v2, s[22:23] sc0 sc1
    s_mov_b64 exec, -1
    v_lshlrev_b32 v1, 4, v0                 ; l*16
    v_lshrrev_b32 v2, 5, v0
    v_lshlrev_b32 v2, 3, v2                 ; h*8
    s_lshl_b32 s6, s{sHead}, 11
    s_mov_b32 s8, s24
    s_mov_b32 s9, s25
    s_mov_b32 s10, 0x80000
    s_waitcnt vmcnt(0)""")
        stamp(6)
        a(f"""    v_readfirstlane_b32 s{sTmp}, v3
    s_nop 3
    s_cmp_lg_u32 s{sTmp}, 15
    s_cbranch_scc1 L_done""")
        combine(a, ML, OP, "sc1", "s[20:21]", f"s{sHead}", "s6")
        if stamps:
            a("    s_waitcnt vmcnt(0)")
        stamp(7)
    a("L_done:")
    stamp_out()
    a("""L_exit:
    s_endpgm""")
    if tail == "two":
        a(f"""
.globl combine_kernel
.p2align 8
.type combine_kernel,@function
combine_kernel:
    s_cmp_ge_u32 s2, 16
    s_cbranch_scc1 L_cdone
    s_load_dwordx2 s[8:9], s[0:1], 56
    s_load_dwordx2 s[4:5], s[0:1], 40
    v_lshlrev_b32 v1, 4, v0                 ; l*16
    v_lshrrev_b32 v2, 5, v0
    v_lshlrev_b32 v2, 3, v2                 ; h*8
    s_lshl_b32 s3, s2, 11
    s_mov_b32 s10, 0x80000
    s_mov_b32 s11, 0x20000
    s_waitcnt lgkmcnt(0)""")
        combine(a, 96, 32, "", "s[4:5]", "s2", "s3")
        a("""L_cdone:
    s_endpgm""")
    a(descriptor(main, nv, 96))
    if tail == "two":
        a(descriptor("combine_kernel", 128, 16))
    return a.text()


if __name__ == "__main__":
    ap = argparse.ArgumentParser()
    ap.add_argument("-o", default="/dev/stdout")
    ap.add_argument("--W", type=int, default=16)
    ap.add_argument("--nospec", action="store_true")
    ap.add_argument("--kflags", default="")
    ap.add_argument("--vflags", default="")
    ap.add_argument("--tail", default="two")
    ap.add_argument("--nomidbar", action="store_true")
    ap.add_argument("--stamps", action="store_true")
    x = ap.parse_args()
    open(x.o, "w").write(gen(W=x.W, spec=not x.nospec, kflags=x.kflags, vflags=x.vflags,
                             tail=x.tail, midbar=not x.nomidbar, stamps=x.stamps))
```

```python
import struct, sys, math, argparse

NAME = "standalone__paged_block_table_kv_radixattention__decode"

HEADER = """; Kernarg layout for this problem (64 bytes, ptrs only, base s[0:1]):
"""


def f32bits(x):
    return struct.unpack("<I", struct.pack("<f", x))[0]


LOG2E = 1.4426950408889634
SCALE = (128 ** -0.5) * LOG2E
TMASK = -998244352.0 * LOG2E
NEGINF = 0xFF800000


class Asm:
    def __init__(self):
        self.lines = []

    def __call__(self, s):
        for ln in s.strip("\n").split("\n"):
            self.lines.append(ln)

    def text(self):
        return "\n".join(self.lines) + "\n"


def descriptor(name, vgpr, sgpr):
    acc = (vgpr + 3) // 4 * 4
    return f"""
.section .rodata,"a"
.p2align 6
.amdhsa_kernel {name}
  .amdhsa_next_free_vgpr {vgpr}
  .amdhsa_next_free_sgpr {sgpr}
  .amdhsa_accum_offset {acc}
  .amdhsa_group_segment_fixed_size 0
  .amdhsa_kernarg_size 64
  .amdhsa_user_sgpr_count 2
  .amdhsa_user_sgpr_kernarg_segment_ptr 1
  .amdhsa_system_sgpr_workgroup_id_x 1
.end_amdhsa_kernel
"""


def combine(a, ML, OP, fl, outp, shead, soff):
    for p in range(16):
        a(f"    buffer_load_dwordx2 v[{ML+2*p}:{ML+1+2*p}], v2, s[8:11], {soff} offen offset:1024 {fl}")
        a(f"    buffer_load_dwordx4 v[{OP+4*p}:{OP+3+4*p}], v1, s[8:11], {soff} offen {fl}")
        if p < 15:
            a(f"    s_add_u32 {soff}, {soff}, 0x8000")
    a(f"""    v_and_b32 v3, 15, v0
    v_lshlrev_b32 v3, 4, v3                 ; (l&15)*8*2 bytes
    v_bfe_u32 v4, v0, 4, 1
    v_lshl_add_u32 v3, v4, 3, v3            ; + ((l>>4)&1)*4*2
    v_lshrrev_b32 v4, 5, v0
    v_lshl_add_u32 v3, v4, 8, v3            ; + h*256
    s_lshl_b32 {soff}, {shead}, 9
    v_add_u32 v3, {soff}, v3
    s_waitcnt vmcnt(0)
    v_max3_f32 v5, v{ML}, v{ML+2}, v{ML+4}""")
    for p in range(3, 15, 2):
        a(f"    v_max3_f32 v5, v5, v{ML+2*p}, v{ML+2+2*p}")
    a(f"    v_max_f32 v5, v5, v{ML+30}")
    for p in range(16):
        a(f"    v_sub_f32 v{ML+2*p}, v{ML+2*p}, v5")
    for p in range(16):
        a(f"    v_exp_f32 v{ML+2*p}, v{ML+2*p}")
    a("    s_nop 0")
    a(f"    v_mul_f32 v6, v{ML}, v{ML+1}")
    for p in range(1, 16):
        a(f"    v_fmac_f32 v6, v{ML+2*p}, v{ML+1+2*p}")
    a("    v_rcp_f32 v6, v6")
    for r in range(4):
        a(f"    v_mul_f32 v{OP+r}, v{ML}, v{OP+r}")
    for p in range(1, 16):
        for r in range(4):
            a(f"    v_fmac_f32 v{OP+r}, v{ML+2*p}, v{OP+4*p+r}")
    for r in range(4):
        a(f"    v_mul_f32 v{OP+r}, v{OP+r}, v6")
    a(f"""    v_cvt_pk_bf16_f32 v{OP}, v{OP}, v{OP+1}
    v_cvt_pk_bf16_f32 v{OP+1}, v{OP+2}, v{OP+3}
    global_store_dwordx2 v3, v[{OP}:{OP+1}], {outp}""")


def gen(W=16, spec=True, kflags="", vflags="", tail="two", midbar=True, stamps=False, diag=None):
    U = 32 // W
    NQ = 4 * U
    a = Asm()
    LDS_MAX, LDS_L, LDS_O = 0, 512, 1024
    lds_bytes = LDS_O + W * 1024
    NT = W * 64
    vKoff, vVoff, vG, vC, vLw, vM, vL, vTmp = 1, 2, 3, 4, 5, 6, 7, 30
    vQ = 8
    vAM = 12
    vO = 16
    vMV = 20
    vLr = 28
    vOw = 29
    vT = 32
    vK = vT + NQ
    vK = (vK + 3) // 4 * 4
    vV = vK + 4 * NQ
    nv = vV + 4 * NQ
    sW = 3
    sHead, sSplit = 26, 27
    sH256 = 28
    sB = 29
    sCtx = 30
    sNblk = 31
    sBT = 32
    sOff = 40
    sST = 56
    sNR = 72
    sTmp = 80
    sMask = 84
    main = f"{NAME}_kernel"

    def stamp(k):
        if stamps or diag:
            a(f"    s_memrealtime s[{sST+2*k}:{sST+2*k+1}]")

    def stamp_out():
        if not stamps:
            return
        a(f"    s_waitcnt lgkmcnt(0) vmcnt(0)")
        a(f"    s_getreg_b32 s{sST+1}, hwreg(HW_REG_XCC_ID)")
        a(f"    s_getreg_b32 s{sST+3}, hwreg(HW_REG_HW_ID)")
        for k in range(8):
            a(f"    v_mov_b32 v{40+k}, s{sST+2*k}")
        a(f"    v_mov_b32 v48, s{sST+1}")
        a(f"    v_mov_b32 v49, s{sST+3}")
        a(f"""    s_lshl_b32 s{sTmp}, s2, 10
    s_lshl_b32 s{sTmp+1}, s{sW}, 6
    s_add_u32 s{sTmp}, s{sTmp}, s{sTmp+1}
    s_add_u32 s{sTmp}, s{sTmp}, 0x100000
    v_mov_b32 v50, s{sTmp}
    s_mov_b64 exec, 1
    global_store_dwordx4 v50, v[40:43], s[24:25]
    global_store_dwordx4 v50, v[44:47], s[24:25] offset:16
    global_store_dwordx2 v50, v[48:49], s[24:25] offset:32
    s_mov_b64 exec, -1""")

    a(HEADER.rstrip("\n"))
    if tail == "two":
        a(f"; @launch kernel={main} grid=(256,1,1) block=({NT},1,1) lds={lds_bytes}")
        a(f"; @launch kernel=combine_kernel grid=(16,1,1) block=(64,1,1) lds=0")
    else:
        a(f"; @launch grid=(256,1,1) block=({NT},1,1) lds={lds_bytes}")
    a(f""".amdgcn_target "amdgcn-amd-amdhsa--gfx950"
.text
.globl {main}
.p2align 8
.type {main},@function
{main}:
    s_cmp_ge_u32 s2, 256
    s_cbranch_scc1 L_exit""")
    stamp(0)
    if stamps:
        for k in range(1, 8):
            a(f"    s_mov_b32 s{sST+2*k}, 0")
    a(f"""    s_load_dwordx2 s[8:9], s[0:1], 8            ; K
    s_load_dwordx4 s[16:19], s[0:1], 24
    s_load_dwordx2 s[12:13], s[0:1], 16         ; V
    s_load_dwordx2 s[4:5], s[0:1], 0            ; q
    s_load_dwordx2 s[24:25], s[0:1], 56         ; ws
    s_load_dwordx4 s[20:23], s[0:1], 40
    v_readfirstlane_b32 s{sW}, v0
    v_and_b32 v{vTmp}, 3, v0
    v_lshlrev_b32 v{vTmp}, 4, v{vTmp}
    v_and_b32 v{vG}, 48, v0
    v_lshl_or_b32 v{vTmp}, v{vG}, 2, v{vTmp}
    v_and_b32 v{vKoff}, 12, v0
    v_lshl_or_b32 v{vKoff}, v{vKoff}, 10, v{vTmp}  ; + ((l>>2)&3)*4096
    s_lshr_b32 s{sW}, s{sW}, 6
    s_and_b32 s{sHead}, s2, 15
    s_lshr_b32 s{sSplit}, s2, 4
    s_lshl4_add_u32 s{sB}, s{sW}, s{sSplit}         ; b0 = w*16 + split
    s_lshl_b32 s{sH256}, s{sHead}, 8
    s_lshl_b32 s{sOff}, s{sB}, 16
    s_add_u32 s{sOff}, s{sOff}, s{sH256}
    s_add_u32 s{sOff+1}, s{sOff}, 0x4000
    s_add_u32 s{sOff+2}, s{sOff}, 0x8000
    s_add_u32 s{sOff+3}, s{sOff}, 0xc000
    s_mov_b32 s10, 0x2000000
    s_mov_b32 s11, 0x20000
    s_lshl_b32 s{sTmp}, s{sB}, 2
    s_waitcnt lgkmcnt(0)""")
    if spec:
        for i in range(4):
            a(f"    buffer_load_dwordx4 v[{vK+4*i}:{vK+4*i+3}], v{vKoff}, s[8:11], s{sOff+i} offen {kflags}")
    stamp(1)
    for u in range(U):
        a(f"    s_load_dword s{sBT+u}, s[16:17], s{sTmp} offset:{u*W*16*4}")
    a(f"    s_load_dword s{sCtx}, s[18:19], 0")
    a(f"""
    v_and_b32 v{vVoff}, 8, v0
    v_lshl_or_b32 v{vTmp}, v{vVoff}, 5, v{vTmp}     ; + h*256
    s_lshl_b32 s{sTmp+1}, s{sHead}, 9
    v_add_u32 v{vTmp}, s{sTmp+1}, v{vTmp}
    global_load_dwordx4 v[{vQ}:{vQ+3}], v{vTmp}, s[4:5]
    v_and_b32 v{vVoff}, 15, v0
    v_lshlrev_b32 v{vVoff}, 4, v{vVoff}
    v_lshl_or_b32 v{vVoff}, v{vG}, 8, v{vVoff}      ; (l>>4)*4096 + (l&15)*16
    v_lshrrev_b32 v{vG}, 4, v{vG}                  ; g = l>>4
    s_mov_b32 s14, 0x2000000
    s_mov_b32 s15, 0x20000
    s_waitcnt lgkmcnt(0)
    s_max_i32 s{sCtx}, s{sCtx}, 0
    s_min_i32 s{sCtx}, s{sCtx}, 8192
    s_add_u32 s{sNblk}, s{sCtx}, 15
    s_lshr_b32 s{sNblk}, s{sNblk}, 4""")
    for u in range(U):
        a(f"    s_and_b32 s{sBT+u}, s{sBT+u}, 511")
    a(f"    s_mov_b32 s{sTmp+2}, 0x{NEGINF:08x}")
    for u in range(U):
        a(f"    s_add_u32 s{sTmp}, s{sB}, {u*W*16}")
        a(f"    s_cmp_lt_u32 s{sTmp}, s{sNblk}")
        a(f"    s_cselect_b32 s{sNR+u}, 0x2000000, 0")
        a(f"    s_cselect_b32 s{sTmp+1}, 0x{f32bits(TMASK):08x}, s{sTmp+2}")
        a(f"    v_mov_b32 v{vMV+u}, s{sTmp+1}")
    if spec:
        a(f"""    s_cmp_eq_u32 s{sBT}, s{sB}
    s_cbranch_scc1 L_spec_ok
    s_waitcnt vmcnt(0)
    s_lshl_b32 s{sOff}, s{sBT}, 16
    s_add_u32 s{sOff}, s{sOff}, s{sH256}
    s_add_u32 s{sOff+1}, s{sOff}, 0x4000
    s_add_u32 s{sOff+2}, s{sOff}, 0x8000
    s_add_u32 s{sOff+3}, s{sOff}, 0xc000""")
        for i in range(4):
            a(f"    buffer_load_dwordx4 v[{vK+4*i}:{vK+4*i+3}], v{vKoff}, s[8:11], s{sOff+i} offen {kflags}")
        a("L_spec_ok:")
    for u in range(0 if not spec else 1, U):
        o = sOff + 4 * u
        a(f"""    s_lshl_b32 s{o}, s{sBT+u}, 16
    s_add_u32 s{o}, s{o}, s{sH256}
    s_add_u32 s{o+1}, s{o}, 0x4000
    s_add_u32 s{o+2}, s{o}, 0x8000
    s_add_u32 s{o+3}, s{o}, 0xc000
    s_mov_b32 s10, s{sNR+u}""")
        for i in range(4):
            q = 4 * u + i
            a(f"    buffer_load_dwordx4 v[{vK+4*q}:{vK+4*q+3}], v{vKoff}, s[8:11], s{o+i} offen {kflags}")
    if midbar:
        a("    s_barrier")
    for u in range(U):
        o = sOff + 4 * u
        a(f"    s_mov_b32 s14, s{sNR+u}")
        for i in range(4):
            q = 4 * u + i
            a(f"    buffer_load_dwordx4 v[{vV+4*q}:{vV+4*q+3}], v{vVoff}, s[12:15], s{o+i} offen {vflags}")
    stamp(2)
    a(f"""
    v_mov_b32 v{vC}, 0x{f32bits(SCALE):08x}
    v_and_b32 v{vTmp}, 1, v0
    v_lshlrev_b32 v{vTmp}, 4, v{vTmp}
    s_mov_b32 s{sTmp}, 0xffff
    v_lshlrev_b32_e64 v{vTmp}, v{vTmp}, s{sTmp}        ; 0xffff << 16*(l&1)
    v_bfe_u32 v{vTmp+1}, v0, 1, 2
    v_cmp_eq_u32_e64 s[{sMask}:{sMask+1}], 0, v{vTmp+1}
    v_cmp_eq_u32_e64 s[{sMask+2}:{sMask+3}], 1, v{vTmp+1}
    v_cmp_eq_u32_e64 s[{sMask+4}:{sMask+5}], 2, v{vTmp+1}
    v_cmp_eq_u32_e64 s[{sMask+6}:{sMask+7}], 3, v{vTmp+1}
    v_and_b32 v{vLr}, 8, v0
    v_lshlrev_b32 v{vLr}, 5, v{vLr}                   ; h*256
    v_cndmask_b32_e64 v{vAM}, 0, v{vTmp}, s[{sMask}:{sMask+1}]
    v_cndmask_b32_e64 v{vAM+1}, 0, v{vTmp}, s[{sMask+2}:{sMask+3}]
    v_cndmask_b32_e64 v{vAM+2}, 0, v{vTmp}, s[{sMask+4}:{sMask+5}]
    v_cndmask_b32_e64 v{vAM+3}, 0, v{vTmp}, s[{sMask+6}:{sMask+7}]
    s_lshl_b32 s{sTmp}, s{sW}, 4
    v_lshl_add_u32 v{vLw}, v{vG}, 2, v{vLr}
    v_add_u32 v{vLw}, s{sTmp}, v{vLw}                ; h*256 + (w*4+g)*4
    v_and_b32 v{vTmp}, 7, v0
    v_lshl_add_u32 v{vLr}, v{vTmp}, {int(math.log2(W*2))}, v{vLr}   ; h*256 + e*(W/2 floats)
    v_lshlrev_b32 v{vOw}, 4, v0                     ; tid*16  (= w*1024 + l*16)
""")
    nV = NQ
    for u in range(U):
        later = (U - 1 - u) * 4 + nV
        a(f"    s_waitcnt vmcnt({later})")
        if u == 0:
            stamp(3)
        for i in range(4):
            q = 4 * u + i
            a(f"    v_mfma_f32_16x16x32_bf16 v[{vK+4*q}:{vK+4*q+3}], v[{vK+4*q}:{vK+4*q+3}], v[{vQ}:{vQ+3}], 0")
        a(f"    s_add_u32 s{sTmp}, s{sB}, {u*W*16}")
        a(f"    s_lshl_b32 s{sTmp}, s{sTmp}, 4")
        a(f"    s_sub_i32 s{sTmp}, s{sCtx}, s{sTmp}")
        for i in range(4):
            a(f"    v_cmp_gt_i32_e64 s[{sMask+2*i}:{sMask+2*i+1}], s{sTmp}, v{vG}")
            if i < 3:
                a(f"    s_sub_i32 s{sTmp}, s{sTmp}, 4")
        a("    s_nop 1")
        for step in range(4):
            for i in range(4):
                q = 4 * u + i
                op = "v_mul_f32_dpp" if step == 0 else "v_fmac_f32_dpp"
                a(f"    {op} v{vT+q}, v{vK+4*q+step}, v{vC} quad_perm:[{step},{step},{step},{step}] row_mask:0xf bank_mask:0xf")
        for i in range(4):
            q = 4 * u + i
            a(f"    v_cndmask_b32_e64 v{vT+q}, v{vMV+u}, v{vT+q}, s[{sMask+2*i}:{sMask+2*i+1}]")
    a(f"    s_mov_b32 s{sTmp}, 0x{f32bits(TMASK):08x}")
    a(f"    v_max3_f32 v{vM}, v{vT}, v{vT+1}, s{sTmp}")
    for q in range(2, NQ, 2):
        a(f"    v_max3_f32 v{vM}, v{vT+q}, v{vT+q+1}, v{vM}")
    a(f"""    ds_write_b32 v{vLw}, v{vM} offset:{LDS_MAX}
    s_waitcnt lgkmcnt(0)
    s_barrier""")
    stamp(4)
    nrd = W // 2
    r0 = vK
    if nrd == 8:
        a(f"""    ds_read_b128 v[{r0}:{r0+3}], v{vLr} offset:{LDS_MAX}
    ds_read_b128 v[{r0+4}:{r0+7}], v{vLr} offset:{LDS_MAX+16}
    s_waitcnt lgkmcnt(0)
    v_max3_f32 v{vM}, v{r0}, v{r0+1}, v{r0+2}
    v_max3_f32 v{vM}, v{vM}, v{r0+3}, v{r0+4}
    v_max3_f32 v{vM}, v{vM}, v{r0+5}, v{r0+6}
    v_max_f32 v{vM}, v{vM}, v{r0+7}""")
    elif nrd == 4:
        a(f"""    ds_read_b128 v[{r0}:{r0+3}], v{vLr} offset:{LDS_MAX}
    s_waitcnt lgkmcnt(0)
    v_max3_f32 v{vM}, v{r0}, v{r0+1}, v{r0+2}
    v_max_f32 v{vM}, v{vM}, v{r0+3}""")
    elif nrd == 2:
        a(f"""    ds_read_b64 v[{r0}:{r0+1}], v{vLr} offset:{LDS_MAX}
    s_waitcnt lgkmcnt(0)
    v_max_f32 v{vM}, v{r0}, v{r0+1}""")
    a(f"""    s_nop 1
    v_max_f32_dpp v{vM}, v{vM}, v{vM} quad_perm:[1,0,3,2] row_mask:0xf bank_mask:0xf
    s_nop 1
    v_max_f32_dpp v{vM}, v{vM}, v{vM} quad_perm:[2,3,0,1] row_mask:0xf bank_mask:0xf
    s_nop 1
    v_max_f32_dpp v{vM}, v{vM}, v{vM} row_half_mirror row_mask:0xf bank_mask:0xf""")
    for q in range(NQ):
        a(f"    v_sub_f32 v{vT+q}, v{vT+q}, v{vM}")
    for q in range(NQ):
        a(f"    v_exp_f32 v{vT+q}, v{vT+q}")
    a("    s_nop 0")
    a(f"    v_add_f32 v{vL}, v{vT}, v{vT+1}")
    for q in range(2, NQ):
        a(f"    v_add_f32 v{vL}, v{vL}, v{vT+q}")
    a(f"    ds_write_b32 v{vLw}, v{vL} offset:{LDS_L}")
    for q in range(NQ):
        a(f"    v_cvt_pk_bf16_f32 v{vT+q}, v{vT+q}, v{vT+q}")
    for q in range(NQ):
        for r in range(4):
            a(f"    v_and_b32 v{vK+4*q+r}, v{vAM+r}, v{vT+q}")
    a("    s_nop 1")
    for q in range(NQ):
        a(f"    s_waitcnt vmcnt({NQ-1-q})")
        c = "0" if q == 0 else f"v[{vO}:{vO+3}]"
        a(f"    v_mfma_f32_16x16x32_bf16 v[{vO}:{vO+3}], v[{vK+4*q}:{vK+4*q+3}], v[{vV+4*q}:{vV+4*q+3}], {c}")
    stamp(5)
    a(f"""    s_nop 7
    ds_write_b128 v{vOw}, v[{vO}:{vO+3}] offset:{LDS_O}
    s_waitcnt lgkmcnt(0)
    s_barrier
    s_cmp_lg_u32 s{sW}, 0
    s_cbranch_scc1 L_done""")
    rl = vT
    if nrd == 8:
        a(f"""    ds_read_b128 v[{rl}:{rl+3}], v{vLr} offset:{LDS_L}
    ds_read_b128 v[{rl+4}:{rl+7}], v{vLr} offset:{LDS_L+16}""")
    elif nrd == 4:
        a(f"    ds_read_b128 v[{rl}:{rl+3}], v{vLr} offset:{LDS_L}")
    else:
        a(f"    ds_read_b64 v[{rl}:{rl+1}], v{vLr} offset:{LDS_L}")
    for w in range(1, W):
        a(f"    ds_read_b128 v[{vK+4*w}:{vK+4*w+3}], v{vOw} offset:{LDS_O+1024*w}")
    a(f"    s_waitcnt lgkmcnt({min(15, W-1)})")
    a(f"    v_add_f32 v{vL}, v{rl}, v{rl+1}")
    for k in range(2, nrd):
        a(f"    v_add_f32 v{vL}, v{vL}, v{rl+k}")
    a(f"""    s_nop 1
    v_add_f32_dpp v{vL}, v{vL}, v{vL} quad_perm:[1,0,3,2] row_mask:0xf bank_mask:0xf
    s_nop 1
    v_add_f32_dpp v{vL}, v{vL}, v{vL} quad_perm:[2,3,0,1] row_mask:0xf bank_mask:0xf
    s_nop 1
    v_add_f32_dpp v{vL}, v{vL}, v{vL} row_half_mirror row_mask:0xf bank_mask:0xf""")
    for w in range(1, W):
        a(f"    s_waitcnt lgkmcnt({W-1-w})")
        a(f"    v_pk_add_f32 v[{vO}:{vO+1}], v[{vO}:{vO+1}], v[{vK+4*w}:{vK+4*w+1}]")
        a(f"    v_pk_add_f32 v[{vO+2}:{vO+3}], v[{vO+2}:{vO+3}], v[{vK+4*w+2}:{vK+4*w+3}]")
    if tail == "two":
        a(f"""    s_lshl_b32 s{sTmp}, s2, 11
    v_add_u32 v{vOw}, s{sTmp}, v{vOw}
    global_store_dwordx4 v{vOw}, v[{vO}:{vO+3}], s[24:25]
    v_and_b32 v{vTmp}, 8, v0
    v_add_u32 v{vTmp}, s{sTmp}, v{vTmp}
    global_store_dwordx2 v{vTmp}, v[{vM}:{vM+1}], s[24:25] offset:1024""")
    if tail == "last":
        ML = 8
        OP = 40
        a(f"""    s_lshl_b32 s{sTmp}, s2, 11
    v_add_u32 v{vOw}, s{sTmp}, v{vOw}
    global_store_dwordx4 v{vOw}, v[{vO}:{vO+3}], s[24:25] sc1
    v_and_b32 v{vTmp}, 8, v0
    v_add_u32 v{vTmp}, s{sTmp}, v{vTmp}
    global_store_dwordx2 v{vTmp}, v[{vM}:{vM+1}], s[24:25] offset:1024 sc1
    s_lshl_b32 s{sTmp}, s{sHead}, 4
    v_mov_b32 v1, s{sTmp}
    v_mov_b32 v2, 1
    s_mov_b64 exec, 1
    s_waitcnt vmcnt(0)
    global_atomic_add v3, v1, v2, s[22:23] sc0 sc1
    s_mov_b64 exec, -1
    v_lshlrev_b32 v1, 4, v0                 ; l*16
    v_lshrrev_b32 v2, 5, v0
    v_lshlrev_b32 v2, 3, v2                 ; h*8
    s_lshl_b32 s6, s{sHead}, 11
    s_mov_b32 s8, s24
    s_mov_b32 s9, s25
    s_mov_b32 s10, 0x80000
    s_waitcnt vmcnt(0)""")
        stamp(6)
        a(f"""    v_readfirstlane_b32 s{sTmp}, v3
    s_nop 3
    s_cmp_lg_u32 s{sTmp}, 15
    s_cbranch_scc1 L_done""")
        combine(a, ML, OP, "sc1", "s[20:21]", f"s{sHead}", "s6")
        if stamps or diag:
            a("    s_waitcnt vmcnt(0)")
        stamp(7)
        if diag:
            ka, kb, mult = diag
            a(f"""    s_waitcnt lgkmcnt(0)
    s_sub_u32 s{sTmp}, s{sST+2*kb}, s{sST+2*ka}
    s_mul_i32 s{sTmp}, s{sTmp}, {mult}
    s_min_u32 s{sTmp}, s{sTmp}, 20000
    s_add_u32 s{sTmp}, s{sTmp}, s{sST+14}
L_spin:
    s_memrealtime s[{sTmp+2}:{sTmp+3}]
    s_waitcnt lgkmcnt(0)
    s_sub_u32 s{sTmp+1}, s{sTmp+2}, s{sTmp}
    s_cmp_lt_i32 s{sTmp+1}, 0
    s_cbranch_scc1 L_spin""")
    a("L_done:")
    stamp_out()
    a("""L_exit:
    s_endpgm""")
    if tail == "two":
        a(f"""
.globl combine_kernel
.p2align 8
.type combine_kernel,@function
combine_kernel:
    s_cmp_ge_u32 s2, 16
    s_cbranch_scc1 L_cdone
    s_load_dwordx2 s[8:9], s[0:1], 56
    s_load_dwordx2 s[4:5], s[0:1], 40
    v_lshlrev_b32 v1, 4, v0                 ; l*16
    v_lshrrev_b32 v2, 5, v0
    v_lshlrev_b32 v2, 3, v2                 ; h*8
    s_lshl_b32 s3, s2, 11
    s_mov_b32 s10, 0x80000
    s_mov_b32 s11, 0x20000
    s_waitcnt lgkmcnt(0)""")
        combine(a, 96, 32, "", "s[4:5]", "s2", "s3")
        a("""L_cdone:
    s_endpgm""")
    a(descriptor(main, nv, 96))
    if tail == "two":
        a(descriptor("combine_kernel", 128, 16))
    return a.text()


if __name__ == "__main__":
    ap = argparse.ArgumentParser()
    ap.add_argument("-o", default="/dev/stdout")
    ap.add_argument("--W", type=int, default=16)
    ap.add_argument("--nospec", action="store_true")
    ap.add_argument("--kflags", default="")
    ap.add_argument("--vflags", default="")
    ap.add_argument("--tail", default="two")
    ap.add_argument("--nomidbar", action="store_true")
    ap.add_argument("--stamps", action="store_true")
    ap.add_argument("--diag", default=None)
    x = ap.parse_args()
    open(x.o, "w").write(gen(W=x.W, spec=not x.nospec, kflags=x.kflags, vflags=x.vflags,
                             tail=x.tail, midbar=not x.nomidbar, stamps=x.stamps,
                             diag=tuple(int(t) for t in x.diag.split(",")) if x.diag else None))
```

```python
import struct, sys, math, argparse

NAME = "standalone__paged_block_table_kv_radixattention__decode"

HEADER = """; Kernarg layout for this problem (64 bytes, ptrs only, base s[0:1]):
"""


def f32bits(x):
    return struct.unpack("<I", struct.pack("<f", x))[0]


LOG2E = 1.4426950408889634
SCALE = (128 ** -0.5) * LOG2E
TMASK = -998244352.0 * LOG2E
NEGINF = 0xFF800000


class Asm:
    def __init__(self):
        self.lines = []

    def __call__(self, s):
        for ln in s.strip("\n").split("\n"):
            self.lines.append(ln)

    def text(self):
        return "\n".join(self.lines) + "\n"


def descriptor(name, vgpr, sgpr):
    acc = (vgpr + 3) // 4 * 4
    return f"""
.section .rodata,"a"
.p2align 6
.amdhsa_kernel {name}
  .amdhsa_next_free_vgpr {vgpr}
  .amdhsa_next_free_sgpr {sgpr}
  .amdhsa_accum_offset {acc}
  .amdhsa_group_segment_fixed_size 0
  .amdhsa_kernarg_size 64
  .amdhsa_user_sgpr_count 2
  .amdhsa_user_sgpr_kernarg_segment_ptr 1
  .amdhsa_system_sgpr_workgroup_id_x 1
.end_amdhsa_kernel
"""


def combine(a, ML, OP, fl, outp, shead, soff):
    for p in range(16):
        a(f"    buffer_load_dwordx2 v[{ML+2*p}:{ML+1+2*p}], v2, s[8:11], {soff} offen offset:1024 {fl}")
        a(f"    buffer_load_dwordx4 v[{OP+4*p}:{OP+3+4*p}], v1, s[8:11], {soff} offen {fl}")
        if p < 15:
            a(f"    s_add_u32 {soff}, {soff}, 0x8000")
    a(f"""    v_and_b32 v3, 15, v0
    v_lshlrev_b32 v3, 4, v3                 ; (l&15)*8*2 bytes
    v_bfe_u32 v4, v0, 4, 1
    v_lshl_add_u32 v3, v4, 3, v3            ; + ((l>>4)&1)*4*2
    v_lshrrev_b32 v4, 5, v0
    v_lshl_add_u32 v3, v4, 8, v3            ; + h*256
    s_lshl_b32 {soff}, {shead}, 9
    v_add_u32 v3, {soff}, v3
    s_waitcnt vmcnt(0)
    v_max3_f32 v5, v{ML}, v{ML+2}, v{ML+4}""")
    for p in range(3, 15, 2):
        a(f"    v_max3_f32 v5, v5, v{ML+2*p}, v{ML+2+2*p}")
    a(f"    v_max_f32 v5, v5, v{ML+30}")
    for p in range(16):
        a(f"    v_sub_f32 v{ML+2*p}, v{ML+2*p}, v5")
    for p in range(16):
        a(f"    v_exp_f32 v{ML+2*p}, v{ML+2*p}")
    a("    s_nop 0")
    a(f"    v_mul_f32 v6, v{ML}, v{ML+1}")
    for p in range(1, 16):
        a(f"    v_fmac_f32 v6, v{ML+2*p}, v{ML+1+2*p}")
    a("    v_rcp_f32 v6, v6")
    for r in range(4):
        a(f"    v_mul_f32 v{OP+r}, v{ML}, v{OP+r}")
    for p in range(1, 16):
        for r in range(4):
            a(f"    v_fmac_f32 v{OP+r}, v{ML+2*p}, v{OP+4*p+r}")
    for r in range(4):
        a(f"    v_mul_f32 v{OP+r}, v{OP+r}, v6")
    a(f"""    v_cvt_pk_bf16_f32 v{OP}, v{OP}, v{OP+1}
    v_cvt_pk_bf16_f32 v{OP+1}, v{OP+2}, v{OP+3}
    global_store_dwordx2 v3, v[{OP}:{OP+1}], {outp}""")


def gen(W=16, spec=True, kflags="", vflags="", tail="two", midbar=True, stamps=False, diag=None, hmap=0, xp=""):
    U = 32 // W
    NQ = 4 * U
    a = Asm()
    LDS_MAX, LDS_L, LDS_O = 0, 512, 1024
    lds_bytes = LDS_O + W * 1024
    NT = W * 64
    vKoff, vVoff, vG, vC, vLw, vM, vL, vTmp = 1, 2, 3, 4, 5, 6, 7, 30
    vQ = 8
    vAM = 12
    vO = 16
    vMV = 20
    vLr = 28
    vOw = 29
    vT = 32
    vK = vT + NQ
    vK = (vK + 3) // 4 * 4
    vV = vK + 4 * NQ
    nv = vV + 4 * NQ
    sW = 3
    sHead, sSplit = 26, 27
    sH256 = 28
    sB = 29
    sCtx = 30
    sNblk = 31
    sBT = 32
    sOff = 40
    sST = 56
    sNR = 72
    sTmp = 80
    sMask = 84
    main = f"{NAME}_kernel"

    def stamp(k):
        if stamps or diag:
            a(f"    s_memrealtime s[{sST+2*k}:{sST+2*k+1}]")

    def stamp_out():
        if not stamps:
            return
        a(f"    s_waitcnt lgkmcnt(0) vmcnt(0)")
        a(f"    s_getreg_b32 s{sST+1}, hwreg(HW_REG_XCC_ID)")
        a(f"    s_getreg_b32 s{sST+3}, hwreg(HW_REG_HW_ID)")
        for k in range(8):
            a(f"    v_mov_b32 v{40+k}, s{sST+2*k}")
        a(f"    v_mov_b32 v48, s{sST+1}")
        a(f"    v_mov_b32 v49, s{sST+3}")
        a(f"""    s_lshl_b32 s{sTmp}, s2, 10
    s_lshl_b32 s{sTmp+1}, s{sW}, 6
    s_add_u32 s{sTmp}, s{sTmp}, s{sTmp+1}
    s_add_u32 s{sTmp}, s{sTmp}, 0x400000
    v_mov_b32 v50, s{sTmp}
    s_mov_b64 exec, 1
    global_store_dwordx4 v50, v[40:43], s[24:25]
    global_store_dwordx4 v50, v[44:47], s[24:25] offset:16
    global_store_dwordx2 v50, v[48:49], s[24:25] offset:32
    s_mov_b64 exec, -1""")

    addr_code = f"""    s_lshl4_add_u32 s{sB}, s{sW}, s{sSplit}         ; b0 = w*16 + split
    s_lshl_b32 s{sH256}, s{sHead}, 8"""
    if xp == "rot":
        addr_code = f"""    s_add_u32 s{sB}, s{sW}, s{sHead}
    s_and_b32 s{sB}, s{sB}, 15
    s_lshl4_add_u32 s{sB}, s{sB}, s{sSplit}
    s_lshl_b32 s{sH256}, s{sHead}, 8"""
    if xp == "mix":
        addr_code = f"""    s_bfe_u32 s{sH256}, s2, 0x20003
    s_and_b32 s{sTmp}, s{sW}, 3
    s_lshl2_add_u32 s{sH256}, s{sH256}, s{sTmp}
    s_lshl_b32 s{sH256}, s{sH256}, 8
    s_lshr_b32 s{sB}, s2, 5
    s_lshl_b32 s{sB}, s{sB}, 3
    s_and_b32 s{sTmp+1}, s2, 7
    s_or_b32 s{sB}, s{sB}, s{sTmp+1}
    s_lshl4_add_u32 s{sB}, s{sTmp}, s{sB}
    s_and_b32 s{sB}, s{sB}, 63
    s_lshr_b32 s{sTmp}, s{sW}, 2
    s_lshl_b32 s{sTmp}, s{sTmp}, 6
    s_add_u32 s{sB}, s{sB}, s{sTmp}"""
    if xp == "mix16":
        addr_code = f"""    s_lshl_b32 s{sH256}, s{sW}, 8
    s_mov_b32 s{sB}, s2"""
    a(HEADER.rstrip("\n"))
    if tail == "two":
        a(f"; @launch kernel={main} grid=(256,1,1) block=({NT},1,1) lds={lds_bytes}")
        a(f"; @launch kernel=combine_kernel grid=(16,1,1) block=(64,1,1) lds=0")
    else:
        a(f"; @launch grid=(256,1,1) block=({NT},1,1) lds={lds_bytes}")
    a(f""".amdgcn_target "amdgcn-amd-amdhsa--gfx950"
.text
.globl {main}
.p2align 8
.type {main},@function
{main}:
    s_cmp_ge_u32 s2, 256
    s_cbranch_scc1 L_exit""")
    stamp(0)
    if stamps:
        for k in range(1, 8):
            a(f"    s_mov_b32 s{sST+2*k}, 0")
    a(f"""    s_load_dwordx2 s[8:9], s[0:1], 8            ; K
    s_load_dwordx4 s[16:19], s[0:1], 24
    s_load_dwordx2 s[12:13], s[0:1], 16         ; V
    s_load_dwordx2 s[4:5], s[0:1], 0            ; q
    s_load_dwordx2 s[24:25], s[0:1], 56         ; ws
    s_load_dwordx4 s[20:23], s[0:1], 40
    v_readfirstlane_b32 s{sW}, v0
    v_and_b32 v{vTmp}, 3, v0
    v_lshlrev_b32 v{vTmp}, 4, v{vTmp}
    v_and_b32 v{vG}, 48, v0
    v_lshl_or_b32 v{vTmp}, v{vG}, 2, v{vTmp}
    v_and_b32 v{vKoff}, 12, v0
    v_lshl_or_b32 v{vKoff}, v{vKoff}, 10, v{vTmp}  ; + ((l>>2)&3)*4096
    s_lshr_b32 s{sW}, s{sW}, 6
    s_and_b32 s{sHead if hmap == 0 else sSplit}, s2, 15
    s_lshr_b32 s{sSplit if hmap == 0 else sHead}, s2, 4
{addr_code}
    s_lshl_b32 s{sOff}, s{sB}, 16
    s_add_u32 s{sOff}, s{sOff}, s{sH256}
    s_add_u32 s{sOff+1}, s{sOff}, 0x4000
    s_add_u32 s{sOff+2}, s{sOff}, 0x8000
    s_add_u32 s{sOff+3}, s{sOff}, 0xc000
    s_mov_b32 s10, 0x2000000
    s_mov_b32 s11, 0x20000
    s_lshl_b32 s{sTmp}, s{sB}, 2
    s_waitcnt lgkmcnt(0)""")
    if spec:
        for i in range(4):
            a(f"    buffer_load_dwordx4 v[{vK+4*i}:{vK+4*i+3}], v{vKoff}, s[8:11], s{sOff+i} offen {kflags}")
    stamp(1)
    for u in range(U):
        a(f"    s_load_dword s{sBT+u}, s[16:17], s{sTmp} offset:{u*W*16*4}")
    a(f"    s_load_dword s{sCtx}, s[18:19], 0")
    a(f"""
    v_and_b32 v{vVoff}, 8, v0
    v_lshl_or_b32 v{vTmp}, v{vVoff}, 5, v{vTmp}     ; + h*256
    s_lshl_b32 s{sTmp+1}, s{sHead}, 9
    v_add_u32 v{vTmp}, s{sTmp+1}, v{vTmp}
    global_load_dwordx4 v[{vQ}:{vQ+3}], v{vTmp}, s[4:5]
    v_and_b32 v{vVoff}, 15, v0
    v_lshlrev_b32 v{vVoff}, 4, v{vVoff}
    v_lshl_or_b32 v{vVoff}, v{vG}, 8, v{vVoff}      ; (l>>4)*4096 + (l&15)*16
    v_lshrrev_b32 v{vG}, 4, v{vG}                  ; g = l>>4
    s_mov_b32 s14, 0x2000000
    s_mov_b32 s15, 0x20000
    s_waitcnt lgkmcnt(0)
    s_max_i32 s{sCtx}, s{sCtx}, 0
    s_min_i32 s{sCtx}, s{sCtx}, 8192
    s_add_u32 s{sNblk}, s{sCtx}, 15
    s_lshr_b32 s{sNblk}, s{sNblk}, 4""")
    for u in range(U):
        a(f"    s_and_b32 s{sBT+u}, s{sBT+u}, 511")
    a(f"    s_mov_b32 s{sTmp+2}, 0x{NEGINF:08x}")
    for u in range(U):
        a(f"    s_add_u32 s{sTmp}, s{sB}, {u*W*16}")
        a(f"    s_cmp_lt_u32 s{sTmp}, s{sNblk}")
        a(f"    s_cselect_b32 s{sNR+u}, 0x2000000, 0")
        a(f"    s_cselect_b32 s{sTmp+1}, 0x{f32bits(TMASK):08x}, s{sTmp+2}")
        a(f"    v_mov_b32 v{vMV+u}, s{sTmp+1}")
    if spec:
        a(f"""    s_cmp_eq_u32 s{sBT}, s{sB}
    s_cbranch_scc1 L_spec_ok
    s_waitcnt vmcnt(0)
    s_lshl_b32 s{sOff}, s{sBT}, 16
    s_add_u32 s{sOff}, s{sOff}, s{sH256}
    s_add_u32 s{sOff+1}, s{sOff}, 0x4000
    s_add_u32 s{sOff+2}, s{sOff}, 0x8000
    s_add_u32 s{sOff+3}, s{sOff}, 0xc000""")
        for i in range(4):
            a(f"    buffer_load_dwordx4 v[{vK+4*i}:{vK+4*i+3}], v{vKoff}, s[8:11], s{sOff+i} offen {kflags}")
        a("L_spec_ok:")
    for u in range(0 if not spec else 1, U):
        o = sOff + 4 * u
        a(f"""    s_lshl_b32 s{o}, s{sBT+u}, 16
    s_add_u32 s{o}, s{o}, s{sH256}
    s_add_u32 s{o+1}, s{o}, 0x4000
    s_add_u32 s{o+2}, s{o}, 0x8000
    s_add_u32 s{o+3}, s{o}, 0xc000
    s_mov_b32 s10, s{sNR+u}""")
        for i in range(4):
            q = 4 * u + i
            a(f"    buffer_load_dwordx4 v[{vK+4*q}:{vK+4*q+3}], v{vKoff}, s[8:11], s{o+i} offen {kflags}")
    if midbar:
        a("    s_barrier")
    for u in range(U):
        o = sOff + 4 * u
        a(f"    s_mov_b32 s14, s{sNR+u}")
        for i in range(4):
            q = 4 * u + i
            a(f"    buffer_load_dwordx4 v[{vV+4*q}:{vV+4*q+3}], v{vVoff}, s[12:15], s{o+i} offen {vflags}")
    stamp(2)
    a(f"""
    v_mov_b32 v{vC}, 0x{f32bits(SCALE):08x}
    v_and_b32 v{vTmp}, 1, v0
    v_lshlrev_b32 v{vTmp}, 4, v{vTmp}
    s_mov_b32 s{sTmp}, 0xffff
    v_lshlrev_b32_e64 v{vTmp}, v{vTmp}, s{sTmp}        ; 0xffff << 16*(l&1)
    v_bfe_u32 v{vTmp+1}, v0, 1, 2
    v_cmp_eq_u32_e64 s[{sMask}:{sMask+1}], 0, v{vTmp+1}
    v_cmp_eq_u32_e64 s[{sMask+2}:{sMask+3}], 1, v{vTmp+1}
    v_cmp_eq_u32_e64 s[{sMask+4}:{sMask+5}], 2, v{vTmp+1}
    v_cmp_eq_u32_e64 s[{sMask+6}:{sMask+7}], 3, v{vTmp+1}
    v_and_b32 v{vLr}, 8, v0
    v_lshlrev_b32 v{vLr}, 5, v{vLr}                   ; h*256
    v_cndmask_b32_e64 v{vAM}, 0, v{vTmp}, s[{sMask}:{sMask+1}]
    v_cndmask_b32_e64 v{vAM+1}, 0, v{vTmp}, s[{sMask+2}:{sMask+3}]
    v_cndmask_b32_e64 v{vAM+2}, 0, v{vTmp}, s[{sMask+4}:{sMask+5}]
    v_cndmask_b32_e64 v{vAM+3}, 0, v{vTmp}, s[{sMask+6}:{sMask+7}]
    s_lshl_b32 s{sTmp}, s{sW}, 4
    v_lshl_add_u32 v{vLw}, v{vG}, 2, v{vLr}
    v_add_u32 v{vLw}, s{sTmp}, v{vLw}                ; h*256 + (w*4+g)*4
    v_and_b32 v{vTmp}, 7, v0
    v_lshl_add_u32 v{vLr}, v{vTmp}, {int(math.log2(W*2))}, v{vLr}   ; h*256 + e*(W/2 floats)
    v_lshlrev_b32 v{vOw}, 4, v0                     ; tid*16  (= w*1024 + l*16)
""")
    nV = NQ
    for u in range(U):
        later = (U - 1 - u) * 4 + nV
        a(f"    s_waitcnt vmcnt({later})")
        if u == 0:
            stamp(3)
        for i in range(4):
            q = 4 * u + i
            a(f"    v_mfma_f32_16x16x32_bf16 v[{vK+4*q}:{vK+4*q+3}], v[{vK+4*q}:{vK+4*q+3}], v[{vQ}:{vQ+3}], 0")
        a(f"    s_add_u32 s{sTmp}, s{sB}, {u*W*16}")
        a(f"    s_lshl_b32 s{sTmp}, s{sTmp}, 4")
        a(f"    s_sub_i32 s{sTmp}, s{sCtx}, s{sTmp}")
        for i in range(4):
            a(f"    v_cmp_gt_i32_e64 s[{sMask+2*i}:{sMask+2*i+1}], s{sTmp}, v{vG}")
            if i < 3:
                a(f"    s_sub_i32 s{sTmp}, s{sTmp}, 4")
        a("    s_nop 1")
        for step in range(4):
            for i in range(4):
                q = 4 * u + i
                op = "v_mul_f32_dpp" if step == 0 else "v_fmac_f32_dpp"
                a(f"    {op} v{vT+q}, v{vK+4*q+step}, v{vC} quad_perm:[{step},{step},{step},{step}] row_mask:0xf bank_mask:0xf")
        for i in range(4):
            q = 4 * u + i
            a(f"    v_cndmask_b32_e64 v{vT+q}, v{vMV+u}, v{vT+q}, s[{sMask+2*i}:{sMask+2*i+1}]")
    a(f"    s_mov_b32 s{sTmp}, 0x{f32bits(TMASK):08x}")
    a(f"    v_max3_f32 v{vM}, v{vT}, v{vT+1}, s{sTmp}")
    for q in range(2, NQ, 2):
        a(f"    v_max3_f32 v{vM}, v{vT+q}, v{vT+q+1}, v{vM}")
    a(f"""    ds_write_b32 v{vLw}, v{vM} offset:{LDS_MAX}
    s_waitcnt lgkmcnt(0)
    s_barrier""")
    stamp(4)
    nrd = W // 2
    r0 = vK
    if nrd == 8:
        a(f"""    ds_read_b128 v[{r0}:{r0+3}], v{vLr} offset:{LDS_MAX}
    ds_read_b128 v[{r0+4}:{r0+7}], v{vLr} offset:{LDS_MAX+16}
    s_waitcnt lgkmcnt(0)
    v_max3_f32 v{vM}, v{r0}, v{r0+1}, v{r0+2}
    v_max3_f32 v{vM}, v{vM}, v{r0+3}, v{r0+4}
    v_max3_f32 v{vM}, v{vM}, v{r0+5}, v{r0+6}
    v_max_f32 v{vM}, v{vM}, v{r0+7}""")
    elif nrd == 4:
        a(f"""    ds_read_b128 v[{r0}:{r0+3}], v{vLr} offset:{LDS_MAX}
    s_waitcnt lgkmcnt(0)
    v_max3_f32 v{vM}, v{r0}, v{r0+1}, v{r0+2}
    v_max_f32 v{vM}, v{vM}, v{r0+3}""")
    elif nrd == 2:
        a(f"""    ds_read_b64 v[{r0}:{r0+1}], v{vLr} offset:{LDS_MAX}
    s_waitcnt lgkmcnt(0)
    v_max_f32 v{vM}, v{r0}, v{r0+1}""")
    a(f"""    s_nop 1
    v_max_f32_dpp v{vM}, v{vM}, v{vM} quad_perm:[1,0,3,2] row_mask:0xf bank_mask:0xf
    s_nop 1
    v_max_f32_dpp v{vM}, v{vM}, v{vM} quad_perm:[2,3,0,1] row_mask:0xf bank_mask:0xf
    s_nop 1
    v_max_f32_dpp v{vM}, v{vM}, v{vM} row_half_mirror row_mask:0xf bank_mask:0xf""")
    for q in range(NQ):
        a(f"    v_sub_f32 v{vT+q}, v{vT+q}, v{vM}")
    for q in range(NQ):
        a(f"    v_exp_f32 v{vT+q}, v{vT+q}")
    a("    s_nop 0")
    a(f"    v_add_f32 v{vL}, v{vT}, v{vT+1}")
    for q in range(2, NQ):
        a(f"    v_add_f32 v{vL}, v{vL}, v{vT+q}")
    a(f"    ds_write_b32 v{vLw}, v{vL} offset:{LDS_L}")
    for q in range(NQ):
        a(f"    v_cvt_pk_bf16_f32 v{vT+q}, v{vT+q}, v{vT+q}")
    for q in range(NQ):
        for r in range(4):
            a(f"    v_and_b32 v{vK+4*q+r}, v{vAM+r}, v{vT+q}")
    a("    s_nop 1")
    for q in range(NQ):
        a(f"    s_waitcnt vmcnt({NQ-1-q})")
        c = "0" if q == 0 else f"v[{vO}:{vO+3}]"
        a(f"    v_mfma_f32_16x16x32_bf16 v[{vO}:{vO+3}], v[{vK+4*q}:{vK+4*q+3}], v[{vV+4*q}:{vV+4*q+3}], {c}")
    stamp(5)
    a(f"""    s_nop 7
    ds_write_b128 v{vOw}, v[{vO}:{vO+3}] offset:{LDS_O}
    s_waitcnt lgkmcnt(0)
    s_barrier
    s_cmp_lg_u32 s{sW}, 0
    s_cbranch_scc1 L_done""")
    rl = vT
    if nrd == 8:
        a(f"""    ds_read_b128 v[{rl}:{rl+3}], v{vLr} offset:{LDS_L}
    ds_read_b128 v[{rl+4}:{rl+7}], v{vLr} offset:{LDS_L+16}""")
    elif nrd == 4:
        a(f"    ds_read_b128 v[{rl}:{rl+3}], v{vLr} offset:{LDS_L}")
    else:
        a(f"    ds_read_b64 v[{rl}:{rl+1}], v{vLr} offset:{LDS_L}")
    for w in range(1, W):
        a(f"    ds_read_b128 v[{vK+4*w}:{vK+4*w+3}], v{vOw} offset:{LDS_O+1024*w}")
    a(f"    s_waitcnt lgkmcnt({min(15, W-1)})")
    a(f"    v_add_f32 v{vL}, v{rl}, v{rl+1}")
    for k in range(2, nrd):
        a(f"    v_add_f32 v{vL}, v{vL}, v{rl+k}")
    a(f"""    s_nop 1
    v_add_f32_dpp v{vL}, v{vL}, v{vL} quad_perm:[1,0,3,2] row_mask:0xf bank_mask:0xf
    s_nop 1
    v_add_f32_dpp v{vL}, v{vL}, v{vL} quad_perm:[2,3,0,1] row_mask:0xf bank_mask:0xf
    s_nop 1
    v_add_f32_dpp v{vL}, v{vL}, v{vL} row_half_mirror row_mask:0xf bank_mask:0xf""")
    for w in range(1, W):
        a(f"    s_waitcnt lgkmcnt({W-1-w})")
        a(f"    v_pk_add_f32 v[{vO}:{vO+1}], v[{vO}:{vO+1}], v[{vK+4*w}:{vK+4*w+1}]")
        a(f"    v_pk_add_f32 v[{vO+2}:{vO+3}], v[{vO+2}:{vO+3}], v[{vK+4*w+2}:{vK+4*w+3}]")
    if tail == "two":
        a(f"""    s_lshl_b32 s{sTmp}, s2, 11
    v_add_u32 v{vOw}, s{sTmp}, v{vOw}
    global_store_dwordx4 v{vOw}, v[{vO}:{vO+3}], s[24:25]
    v_and_b32 v{vTmp}, 8, v0
    v_add_u32 v{vTmp}, s{sTmp}, v{vTmp}
    global_store_dwordx2 v{vTmp}, v[{vM}:{vM+1}], s[24:25] offset:1024""")
    if tail == "last":
        ML = 8
        OP = 40
        a(f"""    s_lshl4_add_u32 s{sTmp}, s{sSplit}, s{sHead}
    s_lshl_b32 s{sTmp}, s{sTmp}, 11
    v_add_u32 v{vOw}, s{sTmp}, v{vOw}
    global_store_dwordx4 v{vOw}, v[{vO}:{vO+3}], s[24:25] sc1
    v_and_b32 v{vTmp}, 8, v0
    v_add_u32 v{vTmp}, s{sTmp}, v{vTmp}
    global_store_dwordx2 v{vTmp}, v[{vM}:{vM+1}], s[24:25] offset:1024 sc1
    s_lshl_b32 s{sTmp}, s{sHead}, 4
    v_mov_b32 v1, s{sTmp}
    v_mov_b32 v2, 1
    s_mov_b64 exec, 1
    s_waitcnt vmcnt(0)
    global_atomic_add v3, v1, v2, s[22:23] sc0 sc1
    s_mov_b64 exec, -1
    v_lshlrev_b32 v1, 4, v0                 ; l*16
    v_lshrrev_b32 v2, 5, v0
    v_lshlrev_b32 v2, 3, v2                 ; h*8
    s_lshl_b32 s6, s{sHead}, 11
    s_mov_b32 s8, s24
    s_mov_b32 s9, s25
    s_mov_b32 s10, 0x80000
    s_waitcnt vmcnt(0)""")
        stamp(6)
        a(f"""    v_readfirstlane_b32 s{sTmp}, v3
    s_nop 3
    s_cmp_lg_u32 s{sTmp}, 15
    s_cbranch_scc1 L_done""")
        combine(a, ML, OP, "sc1", "s[20:21]", f"s{sHead}", "s6")
        if stamps or diag:
            a("    s_waitcnt vmcnt(0)")
        stamp(7)
        if diag:
            ka, kb, mult = diag
            a(f"""    s_waitcnt lgkmcnt(0)
    s_sub_u32 s{sTmp}, s{sST+2*kb}, s{sST+2*ka}
    s_mul_i32 s{sTmp}, s{sTmp}, {mult}
    s_min_u32 s{sTmp}, s{sTmp}, 20000
    s_add_u32 s{sTmp}, s{sTmp}, s{sST+14}
L_spin:
    s_memrealtime s[{sTmp+2}:{sTmp+3}]
    s_waitcnt lgkmcnt(0)
    s_sub_u32 s{sTmp+1}, s{sTmp+2}, s{sTmp}
    s_cmp_lt_i32 s{sTmp+1}, 0
    s_cbranch_scc1 L_spin""")
    a("L_done:")
    stamp_out()
    a("""L_exit:
    s_endpgm""")
    if tail == "two":
        a(f"""
.globl combine_kernel
.p2align 8
.type combine_kernel,@function
combine_kernel:
    s_cmp_ge_u32 s2, 16
    s_cbranch_scc1 L_cdone
    s_load_dwordx2 s[8:9], s[0:1], 56
    s_load_dwordx2 s[4:5], s[0:1], 40
    v_lshlrev_b32 v1, 4, v0                 ; l*16
    v_lshrrev_b32 v2, 5, v0
    v_lshlrev_b32 v2, 3, v2                 ; h*8
    s_lshl_b32 s3, s2, 11
    s_mov_b32 s10, 0x80000
    s_mov_b32 s11, 0x20000
    s_waitcnt lgkmcnt(0)""")
        combine(a, 96, 32, "", "s[4:5]", "s2", "s3")
        a("""L_cdone:
    s_endpgm""")
    a(descriptor(main, nv, 96))
    if tail == "two":
        a(descriptor("combine_kernel", 128, 16))
    return a.text()


if __name__ == "__main__":
    ap = argparse.ArgumentParser()
    ap.add_argument("-o", default="/dev/stdout")
    ap.add_argument("--W", type=int, default=16)
    ap.add_argument("--nospec", action="store_true")
    ap.add_argument("--kflags", default="")
    ap.add_argument("--vflags", default="")
    ap.add_argument("--tail", default="two")
    ap.add_argument("--nomidbar", action="store_true")
    ap.add_argument("--stamps", action="store_true")
    ap.add_argument("--diag", default=None)
    ap.add_argument("--hmap", type=int, default=0)
    ap.add_argument("--xp", default="")
    x = ap.parse_args()
    open(x.o, "w").write(gen(W=x.W, spec=not x.nospec, kflags=x.kflags, vflags=x.vflags,
                             tail=x.tail, midbar=not x.nomidbar, stamps=x.stamps, hmap=x.hmap, xp=x.xp,
                             diag=tuple(int(t) for t in x.diag.split(",")) if x.diag else None))
```

```python
import struct, sys, math, argparse
from gen import HEADER, NAME, f32bits, SCALE, TMASK, NEGINF, Asm, descriptor

W = 16
U = 2
NQ = 8


def gen(N=4, spec=True, kflags="", vflags="", midbar=True, stamps=False, diag=None, sleep=2, thr=8, slow=True, xp='', pw=0, lf='sc1', sf='sc1'):
    NG = 16 // N
    WPG = 16 * N
    J = 16 // N
    KK = WPG // 16
    lgN = int(math.log2(N))
    lgNG = int(math.log2(NG))
    lgWPG = int(math.log2(WPG))
    a = Asm()
    LDS_MAX, LDS_L, LDS_O = 0, 512, 1024
    lds_bytes = LDS_O + W * 1024
    NT = W * 64
    RS = 1152
    vKoff, vVoff, vG, vC, vLw, vM, vL, vTmp = 1, 2, 3, 4, 5, 6, 7, 30
    vQ = 8
    vAM = 12
    vO = 16
    vMV = 20
    vML = 24
    vN = 26
    vPub = 23
    vLr = 28
    vOw = 29
    vT = 32
    vK = 40
    vV = 72
    nv = 104
    sW = 3
    sC, sIdx = 26, 27
    sH256 = 28
    sB = 29
    sCtx = 30
    sNblk = 31
    sBT = 32
    sG = 34
    sHead = 35
    sJ = 36
    sIn = 37
    sOff = 40
    sST = 56
    sNR = 72
    sTmp = 80
    sMask = 84
    sCnt = 92
    sNc = 94
    main = f"{NAME}_kernel"

    def stamp(k):
        if stamps or diag:
            a(f"    s_memrealtime s[{sST+2*k}:{sST+2*k+1}]")

    def stamp_out():
        if not stamps:
            return
        a(f"    s_waitcnt lgkmcnt(0) vmcnt(0)")
        a(f"    s_getreg_b32 s{sST+1}, hwreg(HW_REG_XCC_ID)")
        a(f"    s_getreg_b32 s{sST+3}, hwreg(HW_REG_HW_ID)")
        for k in range(8):
            a(f"    v_mov_b32 v{40+k}, s{sST+2*k}")
        a(f"    v_mov_b32 v48, s{sST+1}")
        a(f"    v_mov_b32 v49, s{sCnt}")
        a(f"""    s_lshl_b32 s{sTmp}, s2, 10
    s_lshl_b32 s{sTmp+1}, s{sW}, 6
    s_add_u32 s{sTmp}, s{sTmp}, s{sTmp+1}
    s_add_u32 s{sTmp}, s{sTmp}, 0x400000
    v_mov_b32 v50, s{sTmp}
    s_mov_b64 exec, 1
    global_store_dwordx4 v50, v[40:43], s[24:25]
    global_store_dwordx4 v50, v[44:47], s[24:25] offset:16
    global_store_dwordx2 v50, v[48:49], s[24:25] offset:32
    s_mov_b64 exec, -1""")

    a(HEADER.rstrip("\n"))
    a(f"; @launch grid=(256,1,1) block=({NT},1,1) lds={lds_bytes}")
    a(f""".amdgcn_target "amdgcn-amd-amdhsa--gfx950"
.text
.globl {main}
.p2align 8
.type {main},@function
{main}:
    s_cmp_ge_u32 s2, 256
    s_cbranch_scc1 L_exit""")
    stamp(0)
    if stamps:
        for k in range(1, 8):
            a(f"    s_mov_b32 s{sST+2*k}, 0")
        a(f"    s_mov_b32 s{sCnt}, 0")
    a(f"""    s_load_dwordx2 s[8:9], s[0:1], 8            ; K
    s_load_dwordx4 s[16:19], s[0:1], 24
    s_load_dwordx2 s[12:13], s[0:1], 16         ; V
    s_load_dwordx2 s[4:5], s[0:1], 0            ; q
    s_load_dwordx2 s[24:25], s[0:1], 56         ; ws
    s_load_dwordx4 s[20:23], s[0:1], 40
    v_readfirstlane_b32 s{sW}, v0
    v_and_b32 v{vTmp}, 3, v0
    v_lshlrev_b32 v{vTmp}, 4, v{vTmp}
    v_and_b32 v{vG}, 48, v0
    v_lshl_or_b32 v{vTmp}, v{vG}, 2, v{vTmp}
    v_and_b32 v{vKoff}, 12, v0
    v_lshl_or_b32 v{vKoff}, v{vKoff}, 10, v{vTmp}  ; + ((l>>2)&3)*4096
    s_lshr_b32 s{sW}, s{sW}, 6
    s_bfe_u32 s{sG}, s2, {(lgNG << 16) | 3:#x}            ; G = (id>>3) % NG
    s_lshr_b32 s{sIdx}, s2, {3 + lgNG}
    s_and_b32 s{sTmp}, s2, 7
    s_lshl3_add_u32 s{sIdx}, s{sIdx}, s{sTmp}
    s_and_b32 s{sC}, s{sW}, {N-1}
    s_lshr_b32 s{sJ}, s{sW}, {lgN}
    s_lshl4_add_u32 s{sB}, s{sC}, s{sIdx}
    s_and_b32 s{sB}, s{sB}, {WPG-1}
    s_lshl_b32 s{sTmp}, s{sJ}, {lgWPG}
    s_add_u32 s{sB}, s{sB}, s{sTmp}                 ; b0 = j*WPG + (idx+16c)%WPG
    s_lshl_b32 s{sHead}, s{sG}, {lgN}
    s_add_u32 s{sHead}, s{sHead}, s{sC}
    s_lshl_b32 s{sH256}, s{sHead}, 8
    s_lshl_b32 s{sOff}, s{sB}, 16
    s_add_u32 s{sOff}, s{sOff}, s{sH256}
    s_add_u32 s{sOff+1}, s{sOff}, 0x4000
    s_add_u32 s{sOff+2}, s{sOff}, 0x8000
    s_add_u32 s{sOff+3}, s{sOff}, 0xc000
    s_mov_b32 s10, 0x2000000
    s_mov_b32 s11, 0x20000
    s_lshl_b32 s{sTmp}, s{sB}, 2
    s_waitcnt lgkmcnt(0)
""")
    if spec:
        for i in range(4):
            a(f"    buffer_load_dwordx4 v[{vK+4*i}:{vK+4*i+3}], v{vKoff}, s[8:11], s{sOff+i} offen {kflags}")
    stamp(1)
    for u in range(U):
        a(f"    s_load_dword s{sBT+u}, s[16:17], s{sTmp} offset:{u*1024}")
    a(f"    s_load_dword s{sCtx}, s[18:19], 0")
    a(f"""
    v_and_b32 v{vVoff}, 8, v0
    v_lshl_or_b32 v{vTmp}, v{vVoff}, 5, v{vTmp}     ; + h*256
    s_lshl_b32 s{sTmp+1}, s{sHead}, 9
    v_add_u32 v{vTmp}, s{sTmp+1}, v{vTmp}
    global_load_dwordx4 v[{vQ}:{vQ+3}], v{vTmp}, s[4:5]
    v_and_b32 v{vVoff}, 15, v0
    v_lshlrev_b32 v{vVoff}, 4, v{vVoff}
    v_lshl_or_b32 v{vVoff}, v{vG}, 8, v{vVoff}      ; (l>>4)*4096 + (l&15)*16
    v_lshrrev_b32 v{vG}, 4, v{vG}                  ; g = l>>4
    s_mov_b32 s14, 0x2000000
    s_mov_b32 s15, 0x20000
    s_or_b32 s{sTmp+1}, s2, s{sW}
    s_cmp_lg_u32 s{sTmp+1}, 0
    s_cbranch_scc1 L_nolead
    s_memrealtime s[{sTmp+2}:{sTmp+3}]
    v_mov_b32 v{vT+2}, 0
    s_waitcnt lgkmcnt(0)
    s_lshr_b64 s[{sNc}:{sNc+1}], s[{sTmp+2}:{sTmp+3}], 20
    s_and_b32 s{sTmp+2}, s{sTmp+2}, 0xfffff
    s_and_b32 s{sNc}, s{sNc}, 0xfffff
    s_bitset1_b32 s{sTmp+2}, 31
    s_bitset1_b32 s{sNc}, 31
    v_mov_b32 v{vT}, s{sTmp+2}
    v_mov_b32 v{vT+1}, s{sNc}
    s_mov_b64 exec, 1
    global_store_dwordx2 v{vT+2}, v[{vT}:{vT+1}], s[22:23] sc1
    s_mov_b64 exec, -1
L_nolead:
    s_waitcnt lgkmcnt(0)
    s_max_i32 s{sCtx}, s{sCtx}, 0
    s_min_i32 s{sCtx}, s{sCtx}, 8192
    s_add_u32 s{sNblk}, s{sCtx}, 15
    s_lshr_b32 s{sNblk}, s{sNblk}, 4""")
    for u in range(U):
        a(f"    s_and_b32 s{sBT+u}, s{sBT+u}, 511")
    a(f"    s_mov_b32 s{sTmp+2}, 0x{NEGINF:08x}")
    for u in range(U):
        a(f"    s_add_u32 s{sTmp}, s{sB}, {u*256}")
        a(f"    s_cmp_lt_u32 s{sTmp}, s{sNblk}")
        a(f"    s_cselect_b32 s{sNR+u}, 0x2000000, 0")
        a(f"    s_cselect_b32 s{sTmp+1}, 0x{f32bits(TMASK):08x}, s{sTmp+2}")
        a(f"    v_mov_b32 v{vMV+u}, s{sTmp+1}")
    if spec:
        a(f"""    s_cmp_eq_u32 s{sBT}, s{sB}
    s_cbranch_scc1 L_spec_ok
    s_waitcnt vmcnt(0)
    s_lshl_b32 s{sOff}, s{sBT}, 16
    s_add_u32 s{sOff}, s{sOff}, s{sH256}
    s_add_u32 s{sOff+1}, s{sOff}, 0x4000
    s_add_u32 s{sOff+2}, s{sOff}, 0x8000
    s_add_u32 s{sOff+3}, s{sOff}, 0xc000""")
        for i in range(4):
            a(f"    buffer_load_dwordx4 v[{vK+4*i}:{vK+4*i+3}], v{vKoff}, s[8:11], s{sOff+i} offen {kflags}")
        a("L_spec_ok:")
    for u in range(0 if not spec else 1, U):
        o = sOff + 4 * u
        a(f"""    s_lshl_b32 s{o}, s{sBT+u}, 16
    s_add_u32 s{o}, s{o}, s{sH256}
    s_add_u32 s{o+1}, s{o}, 0x4000
    s_add_u32 s{o+2}, s{o}, 0x8000
    s_add_u32 s{o+3}, s{o}, 0xc000
    s_mov_b32 s10, s{sNR+u}""")
        for i in range(4):
            q = 4 * u + i
            a(f"    buffer_load_dwordx4 v[{vK+4*q}:{vK+4*q+3}], v{vKoff}, s[8:11], s{o+i} offen {kflags}")
    if midbar:
        a("    s_barrier")
    for u in range(U):
        o = sOff + 4 * u
        a(f"    s_mov_b32 s14, s{sNR+u}")
        for i in range(4):
            q = 4 * u + i
            a(f"    buffer_load_dwordx4 v[{vV+4*q}:{vV+4*q+3}], v{vVoff}, s[12:15], s{o+i} offen {vflags}")
    stamp(2)
    lgJ16 = int(math.log2(J * 16))
    a(f"""
    v_mov_b32 v{vC}, 0x{f32bits(SCALE):08x}
    v_and_b32 v{vTmp}, 1, v0
    v_lshlrev_b32 v{vTmp}, 4, v{vTmp}
    s_mov_b32 s{sTmp}, 0xffff
    v_lshlrev_b32_e64 v{vTmp}, v{vTmp}, s{sTmp}        ; 0xffff << 16*(l&1)
    v_bfe_u32 v{vTmp+1}, v0, 1, 2
    v_cmp_eq_u32_e64 s[{sMask}:{sMask+1}], 0, v{vTmp+1}
    v_cmp_eq_u32_e64 s[{sMask+2}:{sMask+3}], 1, v{vTmp+1}
    v_cmp_eq_u32_e64 s[{sMask+4}:{sMask+5}], 2, v{vTmp+1}
    v_cmp_eq_u32_e64 s[{sMask+6}:{sMask+7}], 3, v{vTmp+1}
    v_bfe_u32 v{vLr}, v0, 3, 1
    v_lshlrev_b32 v{vLr}, {lgJ16}, v{vLr}             ; h * J*16
    v_cndmask_b32_e64 v{vAM}, 0, v{vTmp}, s[{sMask}:{sMask+1}]
    v_cndmask_b32_e64 v{vAM+1}, 0, v{vTmp}, s[{sMask+2}:{sMask+3}]
    v_cndmask_b32_e64 v{vAM+2}, 0, v{vTmp}, s[{sMask+4}:{sMask+5}]
    v_cndmask_b32_e64 v{vAM+3}, 0, v{vTmp}, s[{sMask+6}:{sMask+7}]
    s_lshl_b32 s{sTmp}, s{sC}, {lgJ16+1}
    v_add_u32 v{vLr}, s{sTmp}, v{vLr}                ; + c * 2*J*16
    s_lshl_b32 s{sTmp}, s{sJ}, 4
    v_lshl_add_u32 v{vLw}, v{vG}, 2, v{vLr}
    v_add_u32 v{vLw}, s{sTmp}, v{vLw}                ; + (j*4+g)*4
    v_and_b32 v{vTmp}, 7, v0
    v_lshl_add_u32 v{vLr}, v{vTmp}, {lgJ16-3}, v{vLr}   ; + e*(J/2 floats)
    v_lshlrev_b32 v{vOw}, 4, v0                     ; tid*16  (= w*1024 + l*16)
""")
    nV = NQ
    for u in range(U):
        later = (U - 1 - u) * 4 + nV
        a(f"    s_waitcnt vmcnt({later})")
        if u == 0:
            stamp(3)
        for i in range(4):
            q = 4 * u + i
            a(f"    v_mfma_f32_16x16x32_bf16 v[{vK+4*q}:{vK+4*q+3}], v[{vK+4*q}:{vK+4*q+3}], v[{vQ}:{vQ+3}], 0")
        a(f"    s_add_u32 s{sTmp}, s{sB}, {u*256}")
        a(f"    s_lshl_b32 s{sTmp}, s{sTmp}, 4")
        a(f"    s_sub_i32 s{sTmp}, s{sCtx}, s{sTmp}")
        for i in range(4):
            a(f"    v_cmp_gt_i32_e64 s[{sMask+2*i}:{sMask+2*i+1}], s{sTmp}, v{vG}")
            if i < 3:
                a(f"    s_sub_i32 s{sTmp}, s{sTmp}, 4")
        a("    s_nop 1")
        for step in range(4):
            for i in range(4):
                q = 4 * u + i
                op = "v_mul_f32_dpp" if step == 0 else "v_fmac_f32_dpp"
                a(f"    {op} v{vT+q}, v{vK+4*q+step}, v{vC} quad_perm:[{step},{step},{step},{step}] row_mask:0xf bank_mask:0xf")
        for i in range(4):
            q = 4 * u + i
            a(f"    v_cndmask_b32_e64 v{vT+q}, v{vMV+u}, v{vT+q}, s[{sMask+2*i}:{sMask+2*i+1}]")
    a(f"    s_mov_b32 s{sTmp}, 0x{f32bits(TMASK):08x}")
    a(f"    v_max3_f32 v{vM}, v{vT}, v{vT+1}, s{sTmp}")
    for q in range(2, NQ, 2):
        a(f"    v_max3_f32 v{vM}, v{vT+q}, v{vT+q+1}, v{vM}")
    a(f"""    ds_write_b32 v{vLw}, v{vM} offset:{LDS_MAX}
    v_mov_b32 v{vTmp}, 0
    s_waitcnt lgkmcnt(0)
    s_barrier""")
    stamp(4)
    a(f"""    s_cmp_gt_u32 s{sW}, {N}
    s_cbranch_scc1 L_nordyld
    global_load_dwordx2 v[{vN}:{vN+1}], v{vTmp}, s[22:23] sc1
L_nordyld:""")
    nrd = J // 2
    r0 = vK

    def rd(dst, off):
        if nrd == 8:
            a(f"    ds_read_b128 v[{dst}:{dst+3}], v{vLr} offset:{off}")
            a(f"    ds_read_b128 v[{dst+4}:{dst+7}], v{vLr} offset:{off+16}")
        elif nrd == 4:
            a(f"    ds_read_b128 v[{dst}:{dst+3}], v{vLr} offset:{off}")
        else:
            a(f"    ds_read_b64 v[{dst}:{dst+1}], v{vLr} offset:{off}")

    rd(r0, LDS_MAX)
    a("    s_waitcnt lgkmcnt(0)")
    if nrd == 8:
        a(f"""    v_max3_f32 v{vM}, v{r0}, v{r0+1}, v{r0+2}
    v_max3_f32 v{vM}, v{vM}, v{r0+3}, v{r0+4}
    v_max3_f32 v{vM}, v{vM}, v{r0+5}, v{r0+6}
    v_max_f32 v{vM}, v{vM}, v{r0+7}""")
    elif nrd == 4:
        a(f"""    v_max3_f32 v{vM}, v{r0}, v{r0+1}, v{r0+2}
    v_max_f32 v{vM}, v{vM}, v{r0+3}""")
    else:
        a(f"    v_max_f32 v{vM}, v{r0}, v{r0+1}")
    a(f"""    s_nop 1
    v_max_f32_dpp v{vM}, v{vM}, v{vM} quad_perm:[1,0,3,2] row_mask:0xf bank_mask:0xf
    s_nop 1
    v_max_f32_dpp v{vM}, v{vM}, v{vM} quad_perm:[2,3,0,1] row_mask:0xf bank_mask:0xf
    s_nop 1
    v_max_f32_dpp v{vM}, v{vM}, v{vM} row_half_mirror row_mask:0xf bank_mask:0xf""")
    for q in range(NQ):
        a(f"    v_sub_f32 v{vT+q}, v{vT+q}, v{vM}")
    for q in range(NQ):
        a(f"    v_exp_f32 v{vT+q}, v{vT+q}")
    a("    s_nop 0")
    a(f"    v_add_f32 v{vL}, v{vT}, v{vT+1}")
    for q in range(2, NQ):
        a(f"    v_add_f32 v{vL}, v{vL}, v{vT+q}")
    a(f"    ds_write_b32 v{vLw}, v{vL} offset:{LDS_L}")
    for q in range(NQ):
        a(f"    v_cvt_pk_bf16_f32 v{vT+q}, v{vT+q}, v{vT+q}")
    for q in range(NQ):
        for r in range(4):
            a(f"    v_and_b32 v{vK+4*q+r}, v{vAM+r}, v{vT+q}")
    if KK == 4:
        a(f"""    s_and_b32 s{sTmp}, s{sIdx}, 1
    s_bfe_u32 s{sTmp+1}, s{sIdx}, 0x10002
    s_lshl1_add_u32 s{sTmp}, s{sTmp}, s{sTmp+1}
    s_bfe_u32 s{sTmp+1}, s{sIdx}, 0x10001
    s_lshl1_add_u32 s{sTmp}, s{sTmp}, s{sTmp+1}
    s_lshr_b32 s{sTmp+1}, s{sIdx}, 3
    s_lshl3_add_u32 s{sTmp}, s{sTmp}, s{sTmp+1}""")
    elif KK == 2:
        a(f"""    s_and_b32 s{sTmp}, s{sIdx}, 7
    s_lshr_b32 s{sTmp+1}, s{sIdx}, 3
    s_lshl2_add_u32 s{sTmp}, s{sTmp}, s{sTmp+1}""")
    else:
        a(f"    s_mov_b32 s{sTmp}, s{sIdx}")
    a(f"""    s_lshl_b32 s{sTmp+1}, s{sHead}, {lgWPG}
    s_add_u32 s{sTmp}, s{sTmp}, s{sTmp+1}
    s_mul_i32 s{sTmp}, s{sTmp}, {RS}
    v_and_b32 v{vPub}, 63, v0
    v_lshl_add_u32 v{vPub}, v{vPub}, 4, s{sTmp}        ; record + l*16
    v_and_b32 v{vTmp}, 8, v0
    v_lshl_add_u32 v{vTmp}, v{vTmp}, 1, s{sTmp}        ; record + h*16 (+1024)
    s_movk_i32 s{sNc}, 0x3ff""")
    for q in range(NQ):
        a(f"    s_waitcnt vmcnt({NQ-1-q})")
        c = "0" if q == 0 else f"v[{vO}:{vO+3}]"
        a(f"    v_mfma_f32_16x16x32_bf16 v[{vO}:{vO+3}], v[{vK+4*q}:{vK+4*q+3}], v[{vV+4*q}:{vV+4*q+3}], {c}")
    stamp(5)
    a(f"""    s_nop 7
    ds_write_b128 v{vOw}, v[{vO}:{vO+3}] offset:{LDS_O}
    s_waitcnt lgkmcnt(0)
    s_barrier
    s_cmp_gt_u32 s{sW}, {N}
    s_cbranch_scc1 L_done
    s_cmp_eq_u32 s{sW}, {N}
    s_cbranch_scc1 L_consume""")
    rl = vT
    rd(rl, LDS_L)
    for j in range(1, J):
        a(f"    ds_read_b128 v[{vK+4*j}:{vK+4*j+3}], v{vOw} offset:{LDS_O+1024*N*j}")
    a(f"    s_waitcnt lgkmcnt({min(15, J-1)})")
    a(f"    v_add_f32 v{vL}, v{rl}, v{rl+1}")
    for k in range(2, nrd):
        a(f"    v_add_f32 v{vL}, v{vL}, v{rl+k}")
    a(f"""    s_nop 1
    v_add_f32_dpp v{vL}, v{vL}, v{vL} quad_perm:[1,0,3,2] row_mask:0xf bank_mask:0xf
    s_nop 1
    v_add_f32_dpp v{vL}, v{vL}, v{vL} quad_perm:[2,3,0,1] row_mask:0xf bank_mask:0xf
    s_nop 1
    v_add_f32_dpp v{vL}, v{vL}, v{vL} row_half_mirror row_mask:0xf bank_mask:0xf""")
    for j in range(1, J):
        a(f"    s_waitcnt lgkmcnt({J-1-j})")
        a(f"    v_pk_add_f32 v[{vO}:{vO+1}], v[{vO}:{vO+1}], v[{vK+4*j}:{vK+4*j+1}]")
        a(f"    v_pk_add_f32 v[{vO+2}:{vO+3}], v[{vO+2}:{vO+3}], v[{vK+4*j+2}:{vK+4*j+3}]")
    a(f"""    s_waitcnt vmcnt(0)
    v_and_b32 v{vT}, v{vN}, v{vN+1}
    v_lshrrev_b32 v{vT+1}, 10, v{vN}
    v_readfirstlane_b32 s{sTmp}, v{vT}
    v_lshrrev_b32 v{vT+2}, 10, v{vN+1}
    v_mov_b32 v{vML}, v{vM}
    v_mov_b32 v{vML+1}, v{vL}
    s_cmp_lt_i32 s{sTmp}, 0
    s_cbranch_scc0 L_waitrdy
L_publish:
{"    s_branch L_done" if "nopub" in xp else ""}
    v_bfi_b32 v{vO}, s{sNc}, v{vN}, v{vO}
    v_bfi_b32 v{vO+1}, s{sNc}, v{vT+1}, v{vO+1}
    v_bfi_b32 v{vO+2}, s{sNc}, v{vN+1}, v{vO+2}
    v_bfi_b32 v{vO+3}, s{sNc}, v{vT+2}, v{vO+3}
    global_store_dwordx4 v{vPub}, v[{vO}:{vO+3}], s[24:25] {sf}
    s_mov_b64 exec, 0x101
    global_store_dwordx4 v{vTmp}, v[{vML}:{vML+3}], s[24:25] offset:1024 {sf}
    s_mov_b64 exec, -1""")
    stamp(6)
    a(f"""    s_branch L_done
L_waitrdy:
    v_mov_b32 v{vTmp+1}, 0
    s_mov_b32 s{sCnt}, 0
L_waitrdy_loop:
    s_sleep 8
    global_load_dwordx2 v[{vN}:{vN+1}], v{vTmp+1}, s[22:23] sc1
    s_add_u32 s{sCnt}, s{sCnt}, 1
    s_waitcnt vmcnt(0)
    v_and_b32 v{vT}, v{vN}, v{vN+1}
    v_lshrrev_b32 v{vT+1}, 10, v{vN}
    v_readfirstlane_b32 s{sTmp}, v{vT}
    v_lshrrev_b32 v{vT+2}, 10, v{vN+1}
    s_cmp_gt_u32 s{sCnt}, 20000
    s_cbranch_scc1 L_rdy_out
    s_cmp_lt_i32 s{sTmp}, 0
    s_cbranch_scc0 L_waitrdy_loop
L_rdy_out:
    s_cmp_eq_u32 s{sW}, {N}
    s_cbranch_scc1 L_consume2
    s_branch L_publish""")
    OP = 40
    ML = 56
    vA1, vA2 = 1, 2
    sMs = 40
    sRo = 48
    a(f"""L_consume:
    s_lshl_b32 s{sIn}, s{sG}, {lgWPG}
    s_add_u32 s{sIn}, s{sIn}, s{sIdx}
    s_movk_i32 s{sTmp}, {RS}
    v_bfe_u32 v{vA2}, v0, 2, 4
    v_mul_u32_u24 v{vA2}, s{sTmp}, v{vA2}             ; p'*RS,  p' = l>>2
    v_and_b32 v{vTmp}, 3, v0
    v_lshlrev_b32 v{vTmp}, 4, v{vTmp}                 ; qd*16
    s_and_b32 s{sTmp+1}, s{sIn}, 15
    s_lshl_b32 s{sTmp+2}, s{sTmp+1}, 6
    v_add3_u32 v{vA1}, v{vA2}, v{vTmp}, s{sTmp+2}       ; + k*64 + qd*16
    s_lshr_b32 s{sTmp+2}, s{sTmp+1}, 3
    s_lshl_b32 s{sTmp+2}, s{sTmp+2}, 4
    v_add_u32 v{vA2}, s{sTmp+2}, v{vA2}               ; + h*16 (+1024)
    s_lshr_b32 s{sRo}, s{sIn}, 4
    s_mul_i32 s{sRo}, s{sRo}, {WPG*RS}""")
    for kk in range(1, KK):
        a(f"    s_add_u32 s{sRo+kk}, s{sRo}, {kk*16*RS}")
    a(f"""    s_mov_b32 s8, s24
    s_mov_b32 s9, s25
    s_mov_b32 s10, {256*N*RS}
    s_lshr_b32 s{sTmp+2}, s{sIn}, 3
    s_lshl_b32 s{sTmp+2}, s{sTmp+2}, 8
    s_and_b32 s{sTmp+3}, s{sTmp+1}, 3
    s_lshl_b32 s{sTmp+3}, s{sTmp+3}, 6
    s_add_u32 s{sTmp+2}, s{sTmp+2}, s{sTmp+3}
    s_bfe_u32 s{sTmp+3}, s{sTmp+1}, 0x10002
    s_lshl3_add_u32 s{sTmp+2}, s{sTmp+3}, s{sTmp+2}
    v_add_u32 v{vTmp}, s{sTmp+2}, v{vTmp}
    v_bfe_u32 v{vT}, v0, 4, 1
    v_lshl_add_u32 v{vTmp}, v{vT}, 2, v{vTmp}
    v_bfe_u32 v{vT}, v0, 5, 1
    v_lshl_add_u32 v{vTmp}, v{vT}, 1, v{vTmp}
    s_waitcnt vmcnt(0)
    v_and_b32 v{vT}, v{vN}, v{vN+1}
    v_lshrrev_b32 v{vT+1}, 10, v{vN}
    v_readfirstlane_b32 s{sTmp}, v{vT}
    v_lshrrev_b32 v{vT+2}, 10, v{vN+1}
    s_cmp_lt_i32 s{sTmp}, 0
    s_cbranch_scc0 L_waitrdy
L_consume2:
    s_mov_b32 s{sCnt}, 0""")
    for kk in range(KK):
        a(f"    s_mov_b64 s[{sMs+2*kk}:{sMs+2*kk+1}], -1")
    if "latepoll" in xp:
        a(f"""    s_add_u32 s{sTmp}, s{sST}, 1050
L_late:
    s_sleep 4
    s_memrealtime s[{sTmp+2}:{sTmp+3}]
    s_waitcnt lgkmcnt(0)
    s_sub_u32 s{sTmp+1}, s{sTmp+2}, s{sTmp}
    s_cmp_lt_i32 s{sTmp+1}, 0
    s_cbranch_scc1 L_late""")
    a("L_poll:")
    for kk in range(KK):
        a(f"""    s_mov_b64 exec, s[{sMs+2*kk}:{sMs+2*kk+1}]
    s_cbranch_execz L_skip{kk}
    buffer_load_dwordx4 v[{OP+4*kk}:{OP+4*kk+3}], v{vA1}, s[8:11], s{sRo+kk} offen {lf}
    buffer_load_dwordx4 v[{ML+4*kk}:{ML+4*kk+3}], v{vA2}, s[8:11], s{sRo+kk} offen offset:1024 {lf}
L_skip{kk}:""")
    a(f"""    s_mov_b64 exec, -1
    s_add_u32 s{sCnt}, s{sCnt}, 1
    s_cmp_gt_u32 s{sCnt}, 20000
    s_cbranch_scc1 L_got
    s_mov_b32 s{sTmp}, 0
    s_waitcnt vmcnt({pw})""")
    for kk in range(KK):
        o, m = OP + 4 * kk, ML + 4 * kk
        a(f"""    s_cmp_eq_u64 s[{sMs+2*kk}:{sMs+2*kk+1}], 0
    s_cbranch_scc1 L_chk{kk}
    v_xor_b32 v8, v{o}, v{vN}
    v_xor_b32 v9, v{o+1}, v{vT+1}
    v_xor_b32 v10, v{o+2}, v{vN+1}
    v_xor_b32 v11, v{o+3}, v{vT+2}
    v_xor_b32 v12, v{m+2}, v{vN}
    v_or3_b32 v8, v8, v9, v10
    v_xor_b32 v13, v{m+3}, v{vN+1}
    v_or_b32 v8, v8, v11
    v_and_b32 v8, 0x3ff, v8
    v_or3_b32 v8, v8, v12, v13
    v_cmp_ne_u32_e64 s[{sMs+2*kk}:{sMs+2*kk+1}], 0, v8
    s_nop 0
    s_bcnt1_i32_b64 s{sTmp+1}, s[{sMs+2*kk}:{sMs+2*kk+1}]
    s_add_u32 s{sTmp}, s{sTmp}, s{sTmp+1}
L_chk{kk}:""")
    a(f"""    s_cmp_eq_u32 s{sTmp}, 0
    s_cbranch_scc1 L_got
    s_sub_i32 s{sTmp}, s{sTmp}, {4*thr}
    s_ashr_i32 s{sTmp}, s{sTmp}, {sleep}
L_nap:
    s_cmp_le_i32 s{sTmp}, 0
    s_cbranch_scc1 L_poll
    s_sleep 1
    s_sub_i32 s{sTmp}, s{sTmp}, 1
    s_branch L_nap""")
    a("L_got:")
    stamp(6)
    if KK == 1:
        a(f"    v_mov_b32 v{vM}, v{ML}")
    elif KK == 2:
        a(f"    v_max_f32 v{vM}, v{ML}, v{ML+4}")
    else:
        a(f"    v_max3_f32 v{vM}, v{ML}, v{ML+4}, v{ML+8}")
        a(f"    v_max_f32 v{vM}, v{vM}, v{ML+12}")
    a(f"""    s_nop 1
    v_max_f32_dpp v{vM}, v{vM}, v{vM} row_ror:4 row_mask:0xf bank_mask:0xf
    s_nop 1
    v_max_f32_dpp v{vM}, v{vM}, v{vM} row_ror:8 row_mask:0xf bank_mask:0xf
    s_nop 0
    v_mov_b32 v8, v{vM}
    s_nop 1
    v_permlane16_swap_b32 v{vM}, v8
    s_nop 0
    v_max_f32 v{vM}, v{vM}, v8
    v_mov_b32 v8, v{vM}
    s_nop 1
    v_permlane32_swap_b32 v{vM}, v8
    s_nop 0
    v_max_f32 v{vM}, v{vM}, v8""")
    WT = 72
    AC = 76
    for kk in range(KK):
        a(f"    v_sub_f32 v{WT+kk}, v{ML+4*kk}, v{vM}")
    for kk in range(KK):
        a(f"    v_exp_f32 v{WT+kk}, v{WT+kk}")
    a("    s_nop 0")
    a(f"    v_mul_f32 v{vL}, v{WT}, v{ML+1}")
    for r in range(4):
        a(f"    v_mul_f32 v{AC+r}, v{WT}, v{OP+r}")
    for kk in range(1, KK):
        a(f"    v_fmac_f32 v{vL}, v{WT+kk}, v{ML+4*kk+1}")
        for r in range(4):
            a(f"    v_fmac_f32 v{AC+r}, v{WT+kk}, v{OP+4*kk+r}")
    OP = AC
    a(f"""    v_mov_b32 v8, v{vL}
    s_nop 1
    v_permlane32_swap_b32 v{OP}, v{OP+1}
    v_permlane32_swap_b32 v{OP+2}, v{OP+3}
    v_permlane32_swap_b32 v{vL}, v8
    s_nop 0
    v_add_f32 v{OP}, v{OP}, v{OP+1}
    v_add_f32 v{OP+2}, v{OP+2}, v{OP+3}
    v_add_f32 v{vL}, v{vL}, v8
    v_mov_b32 v8, v{vL}
    s_nop 1
    v_permlane16_swap_b32 v{OP}, v{OP+2}
    v_permlane16_swap_b32 v{vL}, v8
    s_nop 0
    v_add_f32 v{OP}, v{OP}, v{OP+2}
    v_add_f32 v{vL}, v{vL}, v8
    s_nop 0
    v_add_f32_dpp v{OP}, v{OP}, v{OP} row_ror:4 row_mask:0xf bank_mask:0xf
    v_add_f32_dpp v{vL}, v{vL}, v{vL} row_ror:4 row_mask:0xf bank_mask:0xf
    s_nop 0
    v_add_f32_dpp v{OP}, v{OP}, v{OP} row_ror:8 row_mask:0xf bank_mask:0xf
    v_add_f32_dpp v{vL}, v{vL}, v{vL} row_ror:8 row_mask:0xf bank_mask:0xf""")
    if slow:
        a(f"""    s_mov_b32 s{sTmp+1}, 0x{f32bits(TMASK + 256.0):08x}
    v_cmp_ge_f32 vcc, s{sTmp+1}, v{vM}
    s_cbranch_vccnz L_slow
L_fin:""")
    a(f"""    v_rcp_f32 v{vL}, v{vL}
    s_mov_b32 exec_lo, 0x000f000f
    s_mov_b32 exec_hi, 0x000f000f
    v_mul_f32 v{OP}, v{OP}, v{vL}
    v_cvt_pk_bf16_f32 v{OP}, v{OP}, v{OP}
    global_store_short v{vTmp}, v{OP}, s[20:21]
    s_mov_b64 exec, -1""")
    if stamps or diag:
        a("    s_waitcnt vmcnt(0)")
    stamp(7)
    if diag:
        ka, kb, mult = diag
        if ka == 9:
            a(f"""    v_readfirstlane_b32 s{sTmp+2}, v{vN}
    v_readfirstlane_b32 s{sTmp+3}, v{vN+1}
    s_nop 3
    s_and_b32 s{sTmp+2}, s{sTmp+2}, 0xfffff
    s_lshl_b32 s{sTmp+3}, s{sTmp+3}, 20
    s_or_b32 s{sTmp+2}, s{sTmp+2}, s{sTmp+3}
    s_waitcnt lgkmcnt(0)
    s_sub_i32 s{sTmp}, s{sST+2*kb}, s{sTmp+2}
    s_max_i32 s{sTmp}, s{sTmp}, 0""")
        else:
            a(f"""    s_waitcnt lgkmcnt(0)
    s_sub_u32 s{sTmp}, s{sST+2*kb}, s{sST+2*ka}""")
        a(f"""
    s_mul_i32 s{sTmp}, s{sTmp}, {mult}
    s_min_u32 s{sTmp}, s{sTmp}, 20000
    s_add_u32 s{sTmp}, s{sTmp}, s{sST+14}
L_spin:
    s_memrealtime s[{sTmp+2}:{sTmp+3}]
    s_waitcnt lgkmcnt(0)
    s_sub_u32 s{sTmp+1}, s{sTmp+2}, s{sTmp}
    s_cmp_lt_i32 s{sTmp+1}, 0
    s_cbranch_scc1 L_spin""")
    a("L_done:")
    stamp_out()
    a("""L_exit:
    s_endpgm""")
    if slow:
        X = 80
        a(f"""L_slow:
    s_cmp_ge_u32 s{sNblk}, 512
    s_cbranch_scc1 L_fin
    s_lshr_b32 s{sTmp+1}, s{sIn}, 4
    s_lshl_b32 s{sTmp+1}, s{sTmp+1}, 8
    s_and_b32 s{sTmp}, s{sIn}, 3
    s_lshl_b32 s{sTmp}, s{sTmp}, 6                   ; (k&3)*4*16 B
    s_add_u32 s{sTmp+1}, s{sTmp+1}, s{sTmp}
    s_bfe_u32 s{sTmp}, s{sIn}, 0x10002
    s_lshl3_add_u32 s{sTmp+1}, s{sTmp}, s{sTmp+1}     ; + ((k>>2)&1)*8 B
    v_bfe_u32 v{X}, v0, 2, 4
    v_lshlrev_b32 v{X}, 12, v{X}
    v_and_b32 v{X+1}, 3, v0
    v_lshlrev_b32 v{X+1}, 4, v{X+1}
    v_add3_u32 v{X}, v{X+1}, v{X}, s{sTmp+1}
    v_mov_b32 v{X+4}, 0
    v_mov_b32 v{X+5}, 0
    v_mov_b32 v{X+6}, 0
    v_mov_b32 v{X+7}, 0
    s_mov_b32 s14, 0x2000000
    s_mov_b32 s{sCnt}, s{sNblk}
L_slow_loop:
    s_lshl_b32 s{sTmp}, s{sCnt}, 2
    s_load_dword s{sTmp+2}, s[16:17], s{sTmp}
    s_waitcnt lgkmcnt(0)
    s_and_b32 s{sTmp+2}, s{sTmp+2}, 511
    s_lshl_b32 s{sTmp+2}, s{sTmp+2}, 16
    buffer_load_dwordx2 v[{X+2}:{X+3}], v{X}, s[12:15], s{sTmp+2} offen
    s_waitcnt vmcnt(0)
    v_lshlrev_b32 v{X+1}, 16, v{X+2}
    v_add_f32 v{X+4}, v{X+4}, v{X+1}
    v_and_b32 v{X+1}, 0xffff0000, v{X+2}
    v_add_f32 v{X+5}, v{X+5}, v{X+1}
    v_lshlrev_b32 v{X+1}, 16, v{X+3}
    v_add_f32 v{X+6}, v{X+6}, v{X+1}
    v_and_b32 v{X+1}, 0xffff0000, v{X+3}
    v_add_f32 v{X+7}, v{X+7}, v{X+1}
    s_add_u32 s{sCnt}, s{sCnt}, 1
    s_cmp_lt_u32 s{sCnt}, 512
    s_cbranch_scc1 L_slow_loop""")
        a(f"""    s_nop 1
    v_permlane32_swap_b32 v{X+4}, v{X+5}
    v_permlane32_swap_b32 v{X+6}, v{X+7}
    s_nop 1
    v_add_f32 v{X+4}, v{X+4}, v{X+5}
    v_add_f32 v{X+6}, v{X+6}, v{X+7}
    s_nop 1
    v_permlane16_swap_b32 v{X+4}, v{X+6}
    s_nop 1
    v_add_f32 v{X+4}, v{X+4}, v{X+6}
    s_nop 1
    v_add_f32_dpp v{X+4}, v{X+4}, v{X+4} row_ror:4 row_mask:0xf bank_mask:0xf
    s_nop 1
    v_add_f32_dpp v{X+4}, v{X+4}, v{X+4} row_ror:8 row_mask:0xf bank_mask:0xf
    v_sub_f32 v{X+1}, 0x{f32bits(TMASK):08x}, v{vM}
    v_exp_f32 v{X+1}, v{X+1}
    s_sub_u32 s{sTmp}, 512, s{sNblk}
    s_lshl_b32 s{sTmp}, s{sTmp}, 4
    v_cvt_f32_u32 v{X+2}, s{sTmp}
    v_fmac_f32 v{vL}, v{X+1}, v{X+2}
    v_fmac_f32 v{OP}, v{X+1}, v{X+4}
    s_branch L_fin""")
    a(descriptor(main, nv, 96))
    return a.text()


if __name__ == "__main__":
    ap = argparse.ArgumentParser()
    ap.add_argument("-o", default="/dev/stdout")
    ap.add_argument("--N", type=int, default=4)
    ap.add_argument("--nospec", action="store_true")
    ap.add_argument("--kflags", default="")
    ap.add_argument("--vflags", default="")
    ap.add_argument("--nomidbar", action="store_true")
    ap.add_argument("--stamps", action="store_true")
    ap.add_argument("--diag", default=None)
    ap.add_argument("--sleep", type=int, default=2)
    ap.add_argument("--thr", type=int, default=8)
    ap.add_argument("--xp", default="")
    ap.add_argument("--pw", type=int, default=0)
    ap.add_argument("--lf", default="sc1")
    ap.add_argument("--sf", default="sc1")
    x = ap.parse_args()
    open(x.o, "w").write(gen(N=x.N, spec=not x.nospec, kflags=x.kflags, vflags=x.vflags,
                             midbar=not x.nomidbar, stamps=x.stamps, sleep=x.sleep, thr=x.thr, xp=x.xp, pw=x.pw, lf=x.lf, sf=x.sf,
                             diag=tuple(int(t) for t in x.diag.split(",")) if x.diag else None))
```

```python
import struct, sys, math, argparse
from gen import HEADER, NAME, f32bits, SCALE, TMASK, NEGINF, Asm, descriptor

W = 16
U = 2
NQ = 8


def gen(N=4, spec=True, kflags="", vflags="", midbar=True, stamps=False, diag=None, sleep=2, thr=8, slow=True, xp='', pw=0, lf='sc1', sf='sc1', local=False, ra=48, pf=0, earlyn=False, lfa='sc1', pre='', pearly=False):
    NG = 16 // N
    WPG = 16 * N
    J = 16 // N
    KK = WPG // 16
    lgN = int(math.log2(N))
    lgNG = int(math.log2(NG))
    lgWPG = int(math.log2(WPG))
    a = Asm()
    LDS_MAX, LDS_L, LDS_O = 0, 512, 1024
    lds_bytes = LDS_O + W * 1024
    NT = W * 64
    RS = 1152
    vKoff, vVoff, vG, vC, vLw, vM, vL, vTmp = 1, 2, 3, 4, 5, 6, 7, 30
    vQ = 8
    vAM = 12
    vO = 16
    vMV = 20
    vML = 24
    vN = 26
    vPub = 23
    vLr = 28
    vOw = 29
    vT = 32
    vK = 40
    vV = 72
    nv = 104
    sW = 3
    sC, sIdx = 26, 27
    sH256 = 28
    sB = 29
    sCtx = 30
    sNblk = 31
    sBT = 32
    sG = 34
    sHead = 35
    sJ = 36
    sIn = 37
    sOff = 40
    sST = 56
    sNR = 72
    sTmp = 80
    sMask = 84
    sCnt = 92
    sNc = 94
    main = f"{NAME}_kernel"

    def stamp(k):
        if stamps or diag:
            a(f"    s_memrealtime s[{sST+2*k}:{sST+2*k+1}]")

    def stamp_out():
        if not stamps:
            return
        a(f"    s_waitcnt lgkmcnt(0) vmcnt(0)")
        a(f"    s_getreg_b32 s{sST+1}, hwreg(HW_REG_XCC_ID)")
        a(f"    s_getreg_b32 s{sST+3}, hwreg(HW_REG_HW_ID)")
        for k in range(8):
            a(f"    v_mov_b32 v{40+k}, s{sST+2*k}")
        a(f"    v_mov_b32 v48, s{sST+1}")
        a(f"    v_mov_b32 v49, s{sCnt}")
        a(f"""    s_lshl_b32 s{sTmp}, s2, 10
    s_lshl_b32 s{sTmp+1}, s{sW}, 6
    s_add_u32 s{sTmp}, s{sTmp}, s{sTmp+1}
    s_add_u32 s{sTmp}, s{sTmp}, 0x400000
    v_mov_b32 v50, s{sTmp}
    s_mov_b64 exec, 1
    global_store_dwordx4 v50, v[40:43], s[24:25]
    global_store_dwordx4 v50, v[44:47], s[24:25] offset:16
    global_store_dwordx2 v50, v[48:49], s[24:25] offset:32
    s_mov_b64 exec, -1""")

    def pretouch():
        assert local
        a(f"""    s_cmp_lg_u32 s{sW}, {N}
    s_cbranch_scc1 L_nopre
    s_lshl_b32 s{sTmp}, s{sG}, {lgWPG}
    s_add_u32 s{sTmp}, s{sTmp}, s{sIdx}
    s_lshr_b32 s{sTmp+1}, s{sTmp}, 4
    s_mul_i32 s{sTmp+1}, s{sTmp+1}, {WPG*RS}
    s_and_b32 s{sTmp}, s{sTmp}, 15
    s_lshl_b32 s{sTmp}, s{sTmp}, 6
    s_movk_i32 s{sTmp+2}, {RS}
    v_and_b32 v22, 31, v0
    v_mul_u32_u24 v22, s{sTmp+2}, v22
    v_add_u32 v22, s{sTmp+1}, v22
    v_mov_b32 v31, s{sTmp}
    s_mov_b32 exec_lo, 0
    v_mov_b32 v31, 1024
    s_mov_b32 exec_lo, -1
    v_add_u32 v22, v22, v31
    global_load_dword v22, v22, s[24:25] {pre}
L_nopre:""")

    def nonce_ld(va):
        a(f"""    s_cmp_gt_u32 s{sW}, {N}
    s_cbranch_scc1 L_nordyld
    global_load_dwordx2 v[{vN}:{vN+1}], v{va}, s[22:23] sc1
L_nordyld:""")
        if "nononce" in xp:
            a.lines = a.lines[:-4]
            a(f"    v_mov_b32 v{vN}, 0x80012345\n    v_mov_b32 v{vN+1}, 0x80054321")

    idmap = f"""    s_bfe_u32 s{sG}, s2, {(lgNG << 16) | 3:#x}            ; G = (id>>3) % NG
    s_lshr_b32 s{sIdx}, s2, {3 + lgNG}
    s_and_b32 s{sTmp}, s2, 7
    s_lshl3_add_u32 s{sIdx}, s{sIdx}, s{sTmp}"""
    if local:
        assert N == 2
        idmap = f"""    s_and_b32 s{sG}, s2, 7                       ; group = id % 8 (one XCD under round-robin placement: speed only)
    s_lshr_b32 s{sIdx}, s2, 3"""
    BOFF = 0x200000
    pf_code = ""
    if pf:
        pf_code = f"""    s_cmp_lg_u32 s{sW}, 3
    s_cbranch_scc1 L_nopf
    s_getpc_b64 s[{sTmp+2}:{sTmp+3}]
    v_and_b32 v{vT+3}, 63, v0
    v_lshlrev_b32 v{vT+3}, 7, v{vT+3}
    s_mov_b64 exec, {(1 << pf) - 1:#x}
    global_load_dword v{vT+4}, v{vT+3}, s[{sTmp+2}:{sTmp+3}]
    s_mov_b64 exec, -1
L_nopf:"""
    a(HEADER.rstrip("\n"))
    a(f"; @launch grid=(256,1,1) block=({NT},1,1) lds={lds_bytes}")
    a(f""".amdgcn_target "amdgcn-amd-amdhsa--gfx950"
.text
.globl {main}
.p2align 8
.type {main},@function
{main}:
    s_cmp_ge_u32 s2, 256
    s_cbranch_scc1 L_exit""")
    stamp(0)
    if stamps:
        for k in range(1, 8):
            a(f"    s_mov_b32 s{sST+2*k}, 0")
        a(f"    s_mov_b32 s{sCnt}, 0")
    a(f"""    s_load_dwordx2 s[8:9], s[0:1], 8            ; K
    s_load_dwordx4 s[16:19], s[0:1], 24
    s_load_dwordx2 s[12:13], s[0:1], 16         ; V
    s_load_dwordx2 s[4:5], s[0:1], 0            ; q
    s_load_dwordx2 s[24:25], s[0:1], 56         ; ws
    s_load_dwordx4 s[20:23], s[0:1], 40
    v_readfirstlane_b32 s{sW}, v0
    v_and_b32 v{vTmp}, 3, v0
    v_lshlrev_b32 v{vTmp}, 4, v{vTmp}
    v_and_b32 v{vG}, 48, v0
    v_lshl_or_b32 v{vTmp}, v{vG}, 2, v{vTmp}
    v_and_b32 v{vKoff}, 12, v0
    v_lshl_or_b32 v{vKoff}, v{vKoff}, 10, v{vTmp}  ; + ((l>>2)&3)*4096
    s_lshr_b32 s{sW}, s{sW}, 6
{idmap}
    s_and_b32 s{sC}, s{sW}, {N-1}
    s_lshr_b32 s{sJ}, s{sW}, {lgN}
    s_lshl4_add_u32 s{sB}, s{sC}, s{sIdx}
    s_and_b32 s{sB}, s{sB}, {WPG-1}
    s_lshl_b32 s{sTmp}, s{sJ}, {lgWPG}
    s_add_u32 s{sB}, s{sB}, s{sTmp}                 ; b0 = j*WPG + (idx+16c)%WPG
    s_lshl_b32 s{sHead}, s{sG}, {lgN}
    s_add_u32 s{sHead}, s{sHead}, s{sC}
    s_lshl_b32 s{sH256}, s{sHead}, 8
    s_lshl_b32 s{sOff}, s{sB}, 16
    s_add_u32 s{sOff}, s{sOff}, s{sH256}
    s_add_u32 s{sOff+1}, s{sOff}, 0x4000
    s_add_u32 s{sOff+2}, s{sOff}, 0x8000
    s_add_u32 s{sOff+3}, s{sOff}, 0xc000
    s_mov_b32 s10, 0x2000000
    s_mov_b32 s11, 0x20000
    s_lshl_b32 s{sTmp}, s{sB}, 2
    s_waitcnt lgkmcnt(0)
""")
    if spec:
        for i in range(4):
            a(f"    buffer_load_dwordx4 v[{vK+4*i}:{vK+4*i+3}], v{vKoff}, s[8:11], s{sOff+i} offen {kflags}")
    stamp(1)
    for u in range(U):
        a(f"    s_load_dword s{sBT+u}, s[16:17], s{sTmp} offset:{u*1024}")
    a(f"    s_load_dword s{sCtx}, s[18:19], 0")
    a(f"""
    v_and_b32 v{vVoff}, 8, v0
    v_lshl_or_b32 v{vTmp}, v{vVoff}, 5, v{vTmp}     ; + h*256
    s_lshl_b32 s{sTmp+1}, s{sHead}, 9
    v_add_u32 v{vTmp}, s{sTmp+1}, v{vTmp}
    global_load_dwordx4 v[{vQ}:{vQ+3}], v{vTmp}, s[4:5]
    v_and_b32 v{vVoff}, 15, v0
    v_lshlrev_b32 v{vVoff}, 4, v{vVoff}
    v_lshl_or_b32 v{vVoff}, v{vG}, 8, v{vVoff}      ; (l>>4)*4096 + (l&15)*16
    v_lshrrev_b32 v{vG}, 4, v{vG}                  ; g = l>>4
    s_mov_b32 s14, 0x2000000
    s_mov_b32 s15, 0x20000
{pf_code}
    s_or_b32 s{sTmp+1}, s2, s{sW}
    s_cmp_lg_u32 s{sTmp+1}, 0
    s_cbranch_scc1 L_nolead
    s_memrealtime s[{sTmp+2}:{sTmp+3}]
    v_mov_b32 v{vT+2}, 0
    s_waitcnt lgkmcnt(0)
    s_lshr_b64 s[{sNc}:{sNc+1}], s[{sTmp+2}:{sTmp+3}], 20
    s_and_b32 s{sTmp+2}, s{sTmp+2}, 0xfffff
    s_and_b32 s{sNc}, s{sNc}, 0xfffff
    s_bitset1_b32 s{sTmp+2}, 31
    s_bitset1_b32 s{sNc}, 31
    v_mov_b32 v{vT}, s{sTmp+2}
    v_mov_b32 v{vT+1}, s{sNc}
    s_mov_b64 exec, 1
    global_store_dwordx2 v{vT+2}, v[{vT}:{vT+1}], s[22:23] sc1
    s_mov_b64 exec, -1
L_nolead:
    s_waitcnt lgkmcnt(0)
    s_max_i32 s{sCtx}, s{sCtx}, 0
    s_min_i32 s{sCtx}, s{sCtx}, 8192
    s_add_u32 s{sNblk}, s{sCtx}, 15
    s_lshr_b32 s{sNblk}, s{sNblk}, 4""")
    for u in range(U):
        a(f"    s_and_b32 s{sBT+u}, s{sBT+u}, 511")
    a(f"    s_mov_b32 s{sTmp+2}, 0x{NEGINF:08x}")
    for u in range(U):
        a(f"    s_add_u32 s{sTmp}, s{sB}, {u*256}")
        a(f"    s_cmp_lt_u32 s{sTmp}, s{sNblk}")
        a(f"    s_cselect_b32 s{sNR+u}, 0x2000000, 0")
        a(f"    s_cselect_b32 s{sTmp+1}, 0x{f32bits(TMASK):08x}, s{sTmp+2}")
        a(f"    v_mov_b32 v{vMV+u}, s{sTmp+1}")
    if spec:
        a(f"""    s_cmp_eq_u32 s{sBT}, s{sB}
    s_cbranch_scc1 L_spec_ok
    s_waitcnt vmcnt(0)
    s_lshl_b32 s{sOff}, s{sBT}, 16
    s_add_u32 s{sOff}, s{sOff}, s{sH256}
    s_add_u32 s{sOff+1}, s{sOff}, 0x4000
    s_add_u32 s{sOff+2}, s{sOff}, 0x8000
    s_add_u32 s{sOff+3}, s{sOff}, 0xc000""")
        for i in range(4):
            a(f"    buffer_load_dwordx4 v[{vK+4*i}:{vK+4*i+3}], v{vKoff}, s[8:11], s{sOff+i} offen {kflags}")
        a("L_spec_ok:")
    if pre and pearly:
        pretouch()
    for u in range(0 if not spec else 1, U):
        o = sOff + 4 * u
        a(f"""    s_lshl_b32 s{o}, s{sBT+u}, 16
    s_add_u32 s{o}, s{o}, s{sH256}
    s_add_u32 s{o+1}, s{o}, 0x4000
    s_add_u32 s{o+2}, s{o}, 0x8000
    s_add_u32 s{o+3}, s{o}, 0xc000
    s_mov_b32 s10, s{sNR+u}""")
        for i in range(4):
            q = 4 * u + i
            a(f"    buffer_load_dwordx4 v[{vK+4*q}:{vK+4*q+3}], v{vKoff}, s[8:11], s{o+i} offen {kflags}")
    if midbar:
        a("    s_barrier")
    if earlyn:
        a(f"    v_mov_b32 v{vT+5}, 0")
        nonce_ld(vT + 5)
    for u in range(U):
        o = sOff + 4 * u
        a(f"    s_mov_b32 s14, s{sNR+u}")
        for i in range(4):
            q = 4 * u + i
            a(f"    buffer_load_dwordx4 v[{vV+4*q}:{vV+4*q+3}], v{vVoff}, s[12:15], s{o+i} offen {vflags}")
    if pre and not pearly:
        pretouch()
    stamp(2)
    lgJ16 = int(math.log2(J * 16))
    a(f"""
    v_mov_b32 v{vC}, 0x{f32bits(SCALE):08x}
    v_and_b32 v{vTmp}, 1, v0
    v_lshlrev_b32 v{vTmp}, 4, v{vTmp}
    s_mov_b32 s{sTmp}, 0xffff
    v_lshlrev_b32_e64 v{vTmp}, v{vTmp}, s{sTmp}        ; 0xffff << 16*(l&1)
    v_bfe_u32 v{vTmp+1}, v0, 1, 2
    v_cmp_eq_u32_e64 s[{sMask}:{sMask+1}], 0, v{vTmp+1}
    v_cmp_eq_u32_e64 s[{sMask+2}:{sMask+3}], 1, v{vTmp+1}
    v_cmp_eq_u32_e64 s[{sMask+4}:{sMask+5}], 2, v{vTmp+1}
    v_cmp_eq_u32_e64 s[{sMask+6}:{sMask+7}], 3, v{vTmp+1}
    v_bfe_u32 v{vLr}, v0, 3, 1
    v_lshlrev_b32 v{vLr}, {lgJ16}, v{vLr}             ; h * J*16
    v_cndmask_b32_e64 v{vAM}, 0, v{vTmp}, s[{sMask}:{sMask+1}]
    v_cndmask_b32_e64 v{vAM+1}, 0, v{vTmp}, s[{sMask+2}:{sMask+3}]
    v_cndmask_b32_e64 v{vAM+2}, 0, v{vTmp}, s[{sMask+4}:{sMask+5}]
    v_cndmask_b32_e64 v{vAM+3}, 0, v{vTmp}, s[{sMask+6}:{sMask+7}]
    s_lshl_b32 s{sTmp}, s{sC}, {lgJ16+1}
    v_add_u32 v{vLr}, s{sTmp}, v{vLr}                ; + c * 2*J*16
    s_lshl_b32 s{sTmp}, s{sJ}, 4
    v_lshl_add_u32 v{vLw}, v{vG}, 2, v{vLr}
    v_add_u32 v{vLw}, s{sTmp}, v{vLw}                ; + (j*4+g)*4
    v_and_b32 v{vTmp}, 7, v0
    v_lshl_add_u32 v{vLr}, v{vTmp}, {lgJ16-3}, v{vLr}   ; + e*(J/2 floats)
    v_lshlrev_b32 v{vOw}, 4, v0                     ; tid*16  (= w*1024 + l*16)
""")
    nV = NQ
    for u in range(U):
        later = (U - 1 - u) * 4 + nV
        a(f"    s_waitcnt vmcnt({later})")
        if u == 0:
            stamp(3)
        for i in range(4):
            q = 4 * u + i
            a(f"    v_mfma_f32_16x16x32_bf16 v[{vK+4*q}:{vK+4*q+3}], v[{vK+4*q}:{vK+4*q+3}], v[{vQ}:{vQ+3}], 0")
        a(f"    s_add_u32 s{sTmp}, s{sB}, {u*256}")
        a(f"    s_lshl_b32 s{sTmp}, s{sTmp}, 4")
        a(f"    s_sub_i32 s{sTmp}, s{sCtx}, s{sTmp}")
        for i in range(4):
            a(f"    v_cmp_gt_i32_e64 s[{sMask+2*i}:{sMask+2*i+1}], s{sTmp}, v{vG}")
            if i < 3:
                a(f"    s_sub_i32 s{sTmp}, s{sTmp}, 4")
        a("    s_nop 1")
        for step in range(4):
            for i in range(4):
                q = 4 * u + i
                op = "v_mul_f32_dpp" if step == 0 else "v_fmac_f32_dpp"
                a(f"    {op} v{vT+q}, v{vK+4*q+step}, v{vC} quad_perm:[{step},{step},{step},{step}] row_mask:0xf bank_mask:0xf")
        for i in range(4):
            q = 4 * u + i
            a(f"    v_cndmask_b32_e64 v{vT+q}, v{vMV+u}, v{vT+q}, s[{sMask+2*i}:{sMask+2*i+1}]")
    a(f"    s_mov_b32 s{sTmp}, 0x{f32bits(TMASK):08x}")
    a(f"    v_max3_f32 v{vM}, v{vT}, v{vT+1}, s{sTmp}")
    for q in range(2, NQ, 2):
        a(f"    v_max3_f32 v{vM}, v{vT+q}, v{vT+q+1}, v{vM}")
    a(f"""    ds_write_b32 v{vLw}, v{vM} offset:{LDS_MAX}
    v_mov_b32 v{vTmp}, 0
    s_waitcnt lgkmcnt(0)
    s_barrier""")
    stamp(4)
    if not earlyn:
        nonce_ld(vTmp)
    nrd = J // 2
    r0 = vK

    def rd(dst, off):
        if nrd == 8:
            a(f"    ds_read_b128 v[{dst}:{dst+3}], v{vLr} offset:{off}")
            a(f"    ds_read_b128 v[{dst+4}:{dst+7}], v{vLr} offset:{off+16}")
        elif nrd == 4:
            a(f"    ds_read_b128 v[{dst}:{dst+3}], v{vLr} offset:{off}")
        else:
            a(f"    ds_read_b64 v[{dst}:{dst+1}], v{vLr} offset:{off}")

    rd(r0, LDS_MAX)
    a("    s_waitcnt lgkmcnt(0)")
    if nrd == 8:
        a(f"""    v_max3_f32 v{vM}, v{r0}, v{r0+1}, v{r0+2}
    v_max3_f32 v{vM}, v{vM}, v{r0+3}, v{r0+4}
    v_max3_f32 v{vM}, v{vM}, v{r0+5}, v{r0+6}
    v_max_f32 v{vM}, v{vM}, v{r0+7}""")
    elif nrd == 4:
        a(f"""    v_max3_f32 v{vM}, v{r0}, v{r0+1}, v{r0+2}
    v_max_f32 v{vM}, v{vM}, v{r0+3}""")
    else:
        a(f"    v_max_f32 v{vM}, v{r0}, v{r0+1}")
    a(f"""    s_nop 1
    v_max_f32_dpp v{vM}, v{vM}, v{vM} quad_perm:[1,0,3,2] row_mask:0xf bank_mask:0xf
    s_nop 1
    v_max_f32_dpp v{vM}, v{vM}, v{vM} quad_perm:[2,3,0,1] row_mask:0xf bank_mask:0xf
    s_nop 1
    v_max_f32_dpp v{vM}, v{vM}, v{vM} row_half_mirror row_mask:0xf bank_mask:0xf""")
    for q in range(NQ):
        a(f"    v_sub_f32 v{vT+q}, v{vT+q}, v{vM}")
    for q in range(NQ):
        a(f"    v_exp_f32 v{vT+q}, v{vT+q}")
    a("    s_nop 0")
    a(f"    v_add_f32 v{vL}, v{vT}, v{vT+1}")
    for q in range(2, NQ):
        a(f"    v_add_f32 v{vL}, v{vL}, v{vT+q}")
    a(f"    ds_write_b32 v{vLw}, v{vL} offset:{LDS_L}")
    for q in range(NQ):
        a(f"    v_cvt_pk_bf16_f32 v{vT+q}, v{vT+q}, v{vT+q}")
    for q in range(NQ):
        for r in range(4):
            a(f"    v_and_b32 v{vK+4*q+r}, v{vAM+r}, v{vT+q}")
    if KK == 4:
        a(f"""    s_and_b32 s{sTmp}, s{sIdx}, 1
    s_bfe_u32 s{sTmp+1}, s{sIdx}, 0x10002
    s_lshl1_add_u32 s{sTmp}, s{sTmp}, s{sTmp+1}
    s_bfe_u32 s{sTmp+1}, s{sIdx}, 0x10001
    s_lshl1_add_u32 s{sTmp}, s{sTmp}, s{sTmp+1}
    s_lshr_b32 s{sTmp+1}, s{sIdx}, 3
    s_lshl3_add_u32 s{sTmp}, s{sTmp}, s{sTmp+1}""")
    elif KK == 2 and not local:
        a(f"""    s_and_b32 s{sTmp}, s{sIdx}, 7
    s_lshr_b32 s{sTmp+1}, s{sIdx}, 3
    s_lshl2_add_u32 s{sTmp}, s{sTmp}, s{sTmp+1}""")
    else:
        a(f"    s_mov_b32 s{sTmp}, s{sIdx}")
    a(f"""    s_lshl_b32 s{sTmp+1}, s{sHead}, {lgWPG}
    s_add_u32 s{sTmp}, s{sTmp}, s{sTmp+1}
    s_mul_i32 s{sTmp}, s{sTmp}, {RS}
    v_and_b32 v{vPub}, 63, v0
    v_lshl_add_u32 v{vPub}, v{vPub}, 4, s{sTmp}        ; record + l*16
    v_and_b32 v{vTmp}, 8, v0
    v_lshl_add_u32 v{vTmp}, v{vTmp}, 1, s{sTmp}        ; record + h*16 (+1024)
    s_movk_i32 s{sNc}, 0x3ff""")
    for q in range(NQ):
        a(f"    s_waitcnt vmcnt({NQ-1-q})")
        c = "0" if q == 0 else f"v[{vO}:{vO+3}]"
        a(f"    v_mfma_f32_16x16x32_bf16 v[{vO}:{vO+3}], v[{vK+4*q}:{vK+4*q+3}], v[{vV+4*q}:{vV+4*q+3}], {c}")
    stamp(5)
    a(f"""    s_nop 7
    ds_write_b128 v{vOw}, v[{vO}:{vO+3}] offset:{LDS_O}
    s_waitcnt lgkmcnt(0)
    s_barrier
    s_cmp_gt_u32 s{sW}, {N}
    s_cbranch_scc1 L_done
    s_cmp_eq_u32 s{sW}, {N}
    s_cbranch_scc1 L_consume""")
    rl = vT
    if "tailst" in xp:
        stamp(1)
        a("    s_waitcnt lgkmcnt(0)")
    rd(rl, LDS_L)
    for j in range(1, J):
        a(f"    ds_read_b128 v[{vK+4*j}:{vK+4*j+3}], v{vOw} offset:{LDS_O+1024*N*j}")
    a(f"    s_waitcnt lgkmcnt({min(15, J-1)})")
    a(f"    v_add_f32 v{vL}, v{rl}, v{rl+1}")
    for k in range(2, nrd):
        a(f"    v_add_f32 v{vL}, v{vL}, v{rl+k}")
    a(f"""    s_nop 1
    v_add_f32_dpp v{vL}, v{vL}, v{vL} quad_perm:[1,0,3,2] row_mask:0xf bank_mask:0xf
    s_nop 1
    v_add_f32_dpp v{vL}, v{vL}, v{vL} quad_perm:[2,3,0,1] row_mask:0xf bank_mask:0xf
    s_nop 1
    v_add_f32_dpp v{vL}, v{vL}, v{vL} row_half_mirror row_mask:0xf bank_mask:0xf""")
    for j in range(1, J):
        a(f"    s_waitcnt lgkmcnt({J-1-j})")
        a(f"    v_pk_add_f32 v[{vO}:{vO+1}], v[{vO}:{vO+1}], v[{vK+4*j}:{vK+4*j+1}]")
        a(f"    v_pk_add_f32 v[{vO+2}:{vO+3}], v[{vO+2}:{vO+3}], v[{vK+4*j+2}:{vK+4*j+3}]")
    if "tailst" in xp:
        stamp(2)
    a(f"""    s_waitcnt vmcnt(0)
    v_and_b32 v{vT}, v{vN}, v{vN+1}
    v_lshrrev_b32 v{vT+1}, 10, v{vN}
    v_readfirstlane_b32 s{sTmp}, v{vT}
    v_lshrrev_b32 v{vT+2}, 10, v{vN+1}
    v_mov_b32 v{vML}, v{vM}
    v_mov_b32 v{vML+1}, v{vL}
    s_cmp_lt_i32 s{sTmp}, 0
    s_cbranch_scc0 L_waitrdy
L_publish:
{"    s_branch L_done" if "nopub" in xp else ""}
    v_bfi_b32 v{vO}, s{sNc}, v{vN}, v{vO}
    v_bfi_b32 v{vO+1}, s{sNc}, v{vT+1}, v{vO+1}
    v_bfi_b32 v{vO+2}, s{sNc}, v{vN+1}, v{vO+2}
    v_bfi_b32 v{vO+3}, s{sNc}, v{vT+2}, v{vO+3}
""")
    if local:
        a(f"""    global_store_dwordx4 v{vPub}, v[{vO}:{vO+3}], s[24:25]
    s_mov_b64 exec, 0x101
    global_store_dwordx4 v{vTmp}, v[{vML}:{vML+3}], s[24:25] offset:1024
    s_mov_b64 exec, -1
    s_add_u32 s24, s24, {BOFF}
    s_addc_u32 s25, s25, 0""")
        if "tailst" in xp:
            stamp(3)
    if "bdelay" in xp:
        a("    s_sleep 12")
    if "noB" not in xp:
        a(f"""    global_store_dwordx4 v{vPub}, v[{vO}:{vO+3}], s[24:25] {sf}
    s_mov_b64 exec, 0x101
    global_store_dwordx4 v{vTmp}, v[{vML}:{vML+3}], s[24:25] offset:1024 {sf}
    s_mov_b64 exec, -1""")
    if local and stamps:
        a(f"""    s_sub_u32 s24, s24, {BOFF}
    s_subb_u32 s25, s25, 0""")
    stamp(6)
    a(f"""    s_branch L_done
L_waitrdy:
    v_mov_b32 v{vTmp+1}, 0
    s_mov_b32 s{sCnt}, 0
L_waitrdy_loop:
    s_sleep 8
    global_load_dwordx2 v[{vN}:{vN+1}], v{vTmp+1}, s[22:23] sc1
    s_add_u32 s{sCnt}, s{sCnt}, 1
    s_waitcnt vmcnt(0)
    v_and_b32 v{vT}, v{vN}, v{vN+1}
    v_lshrrev_b32 v{vT+1}, 10, v{vN}
    v_readfirstlane_b32 s{sTmp}, v{vT}
    v_lshrrev_b32 v{vT+2}, 10, v{vN+1}
    s_cmp_gt_u32 s{sCnt}, 20000
    s_cbranch_scc1 L_rdy_out
    s_cmp_lt_i32 s{sTmp}, 0
    s_cbranch_scc0 L_waitrdy_loop
L_rdy_out:
    s_cmp_eq_u32 s{sW}, {N}
    s_cbranch_scc1 L_consume2
    s_branch L_publish""")
    OP = 40
    ML = 56
    vA1, vA2 = 1, 2
    sMs = 40
    sRo = 48
    a(f"""L_consume:
    s_lshl_b32 s{sIn}, s{sG}, {lgWPG}
    s_add_u32 s{sIn}, s{sIn}, s{sIdx}
    s_movk_i32 s{sTmp}, {RS}
    v_bfe_u32 v{vA2}, v0, 2, 4
    v_mul_u32_u24 v{vA2}, s{sTmp}, v{vA2}             ; p'*RS,  p' = l>>2
    v_and_b32 v{vTmp}, 3, v0
    v_lshlrev_b32 v{vTmp}, 4, v{vTmp}                 ; qd*16
    s_and_b32 s{sTmp+1}, s{sIn}, 15
    s_lshl_b32 s{sTmp+2}, s{sTmp+1}, 6
    v_add3_u32 v{vA1}, v{vA2}, v{vTmp}, s{sTmp+2}       ; + k*64 + qd*16
    s_lshr_b32 s{sTmp+2}, s{sTmp+1}, 3
    s_lshl_b32 s{sTmp+2}, s{sTmp+2}, 4
    v_add_u32 v{vA2}, s{sTmp+2}, v{vA2}               ; + h*16 (+1024)
    s_lshr_b32 s{sRo}, s{sIn}, 4
    s_mul_i32 s{sRo}, s{sRo}, {WPG*RS}""")
    for kk in range(1, KK):
        a(f"    s_add_u32 s{sRo+kk}, s{sRo}, {kk*16*RS}")
    a(f"""    s_mov_b32 s8, s24
    s_mov_b32 s9, s25
    s_mov_b32 s10, {256*N*RS + (BOFF if local else 0)}
    s_lshr_b32 s{sTmp+2}, s{sIn}, 3
    s_lshl_b32 s{sTmp+2}, s{sTmp+2}, 8
    s_and_b32 s{sTmp+3}, s{sTmp+1}, 3
    s_lshl_b32 s{sTmp+3}, s{sTmp+3}, 6
    s_add_u32 s{sTmp+2}, s{sTmp+2}, s{sTmp+3}
    s_bfe_u32 s{sTmp+3}, s{sTmp+1}, 0x10002
    s_lshl3_add_u32 s{sTmp+2}, s{sTmp+3}, s{sTmp+2}
    v_add_u32 v{vTmp}, s{sTmp+2}, v{vTmp}
    v_bfe_u32 v{vT}, v0, 4, 1
    v_lshl_add_u32 v{vTmp}, v{vT}, 2, v{vTmp}
    v_bfe_u32 v{vT}, v0, 5, 1
    v_lshl_add_u32 v{vTmp}, v{vT}, 1, v{vTmp}
    s_waitcnt vmcnt(0)
    v_and_b32 v{vT}, v{vN}, v{vN+1}
    v_lshrrev_b32 v{vT+1}, 10, v{vN}
    v_readfirstlane_b32 s{sTmp}, v{vT}
    v_lshrrev_b32 v{vT+2}, 10, v{vN+1}
    s_cmp_lt_i32 s{sTmp}, 0
    s_cbranch_scc0 L_waitrdy
L_consume2:
    s_mov_b32 s{sCnt}, 0""")
    if "tailst" in xp:
        stamp(2)
    for kk in range(KK):
        a(f"    s_mov_b64 s[{sMs+2*kk}:{sMs+2*kk+1}], -1")
    if "latepoll" in xp:
        a(f"""    s_add_u32 s{sTmp}, s{sST}, 1050
L_late:
    s_sleep 4
    s_memrealtime s[{sTmp+2}:{sTmp+3}]
    s_waitcnt lgkmcnt(0)
    s_sub_u32 s{sTmp+1}, s{sTmp+2}, s{sTmp}
    s_cmp_lt_i32 s{sTmp+1}, 0
    s_cbranch_scc1 L_late""")
    def poll_loads(tag, fl):
        for kk in range(KK):
            a(f"""    s_mov_b64 exec, s[{sMs+2*kk}:{sMs+2*kk+1}]
    s_cbranch_execz L_skip{tag}{kk}
    buffer_load_dwordx4 v[{OP+4*kk}:{OP+4*kk+3}], v{vA1}, s[8:11], s{sRo+kk} offen {fl}
    buffer_load_dwordx4 v[{ML+4*kk}:{ML+4*kk+3}], v{vA2}, s[8:11], s{sRo+kk} offen offset:1024 {fl}
L_skip{tag}{kk}:""")
    if local and lfa != lf:
        a("    s_branch L_poll\nL_pollB:")
        poll_loads("b", lf)
        a("    s_branch L_issued")
        a("L_poll:")
        poll_loads("a", lfa)
        a("L_issued:")
    else:
        a("L_poll:\nL_pollB:")
        poll_loads("", lf)
    a(f"""    s_mov_b64 exec, -1
    s_add_u32 s{sCnt}, s{sCnt}, 1
    s_cmp_gt_u32 s{sCnt}, 20000
    s_cbranch_scc1 L_got
    s_mov_b32 s{sTmp}, 0
    s_waitcnt vmcnt({pw})""")
    for kk in range(KK):
        o, m = OP + 4 * kk, ML + 4 * kk
        a(f"""    s_cmp_eq_u64 s[{sMs+2*kk}:{sMs+2*kk+1}], 0
    s_cbranch_scc1 L_chk{kk}
    v_xor_b32 v8, v{o}, v{vN}
    v_xor_b32 v9, v{o+1}, v{vT+1}
    v_xor_b32 v10, v{o+2}, v{vN+1}
    v_xor_b32 v11, v{o+3}, v{vT+2}
    v_xor_b32 v12, v{m+2}, v{vN}
    v_or3_b32 v8, v8, v9, v10
    v_xor_b32 v13, v{m+3}, v{vN+1}
    v_or_b32 v8, v8, v11
    v_and_b32 v8, 0x3ff, v8
    v_or3_b32 v8, v8, v12, v13
    v_cmp_ne_u32_e64 s[{sMs+2*kk}:{sMs+2*kk+1}], 0, v8
    s_nop 0
    s_bcnt1_i32_b64 s{sTmp+1}, s[{sMs+2*kk}:{sMs+2*kk+1}]
    s_add_u32 s{sTmp}, s{sTmp}, s{sTmp+1}
L_chk{kk}:""")
    a(f"""    s_cmp_eq_u32 s{sTmp}, 0
    s_cbranch_scc1 L_got""")
    if local:
        a(f"""    s_cmp_lt_u32 s{sCnt}, {ra}
    s_cbranch_scc1 L_poll
    s_cmp_lg_u32 s{sCnt}, {ra}
    s_cbranch_scc1 L_slowpoll""")
        for kk in range(KK):
            a(f"    s_add_u32 s{sRo+kk}, s{sRo+kk}, {BOFF}")
        a("L_slowpoll:")
    a(f"""
    s_sub_i32 s{sTmp}, s{sTmp}, {4*thr}
    s_ashr_i32 s{sTmp}, s{sTmp}, {sleep}
L_nap:
    s_cmp_le_i32 s{sTmp}, 0
    s_cbranch_scc1 L_pollB
    s_sleep 1
    s_sub_i32 s{sTmp}, s{sTmp}, 1
    s_branch L_nap""")
    a("L_got:")
    stamp(6)
    if KK == 1:
        a(f"    v_mov_b32 v{vM}, v{ML}")
    elif KK == 2:
        a(f"    v_max_f32 v{vM}, v{ML}, v{ML+4}")
    else:
        a(f"    v_max3_f32 v{vM}, v{ML}, v{ML+4}, v{ML+8}")
        a(f"    v_max_f32 v{vM}, v{vM}, v{ML+12}")
    a(f"""    s_nop 1
    v_max_f32_dpp v{vM}, v{vM}, v{vM} row_ror:4 row_mask:0xf bank_mask:0xf
    s_nop 1
    v_max_f32_dpp v{vM}, v{vM}, v{vM} row_ror:8 row_mask:0xf bank_mask:0xf
    s_nop 0
    v_mov_b32 v8, v{vM}
    s_nop 1
    v_permlane16_swap_b32 v{vM}, v8
    s_nop 0
    v_max_f32 v{vM}, v{vM}, v8
    v_mov_b32 v8, v{vM}
    s_nop 1
    v_permlane32_swap_b32 v{vM}, v8
    s_nop 0
    v_max_f32 v{vM}, v{vM}, v8""")
    WT = 72
    AC = 76
    for kk in range(KK):
        a(f"    v_sub_f32 v{WT+kk}, v{ML+4*kk}, v{vM}")
    for kk in range(KK):
        a(f"    v_exp_f32 v{WT+kk}, v{WT+kk}")
    a("    s_nop 0")
    a(f"    v_mul_f32 v{vL}, v{WT}, v{ML+1}")
    for r in range(4):
        a(f"    v_mul_f32 v{AC+r}, v{WT}, v{OP+r}")
    for kk in range(1, KK):
        a(f"    v_fmac_f32 v{vL}, v{WT+kk}, v{ML+4*kk+1}")
        for r in range(4):
            a(f"    v_fmac_f32 v{AC+r}, v{WT+kk}, v{OP+4*kk+r}")
    OP = AC
    a(f"""    v_mov_b32 v8, v{vL}
    s_nop 1
    v_permlane32_swap_b32 v{OP}, v{OP+1}
    v_permlane32_swap_b32 v{OP+2}, v{OP+3}
    v_permlane32_swap_b32 v{vL}, v8
    s_nop 0
    v_add_f32 v{OP}, v{OP}, v{OP+1}
    v_add_f32 v{OP+2}, v{OP+2}, v{OP+3}
    v_add_f32 v{vL}, v{vL}, v8
    v_mov_b32 v8, v{vL}
    s_nop 1
    v_permlane16_swap_b32 v{OP}, v{OP+2}
    v_permlane16_swap_b32 v{vL}, v8
    s_nop 0
    v_add_f32 v{OP}, v{OP}, v{OP+2}
    v_add_f32 v{vL}, v{vL}, v8
    s_nop 0
    v_add_f32_dpp v{OP}, v{OP}, v{OP} row_ror:4 row_mask:0xf bank_mask:0xf
    v_add_f32_dpp v{vL}, v{vL}, v{vL} row_ror:4 row_mask:0xf bank_mask:0xf
    s_nop 0
    v_add_f32_dpp v{OP}, v{OP}, v{OP} row_ror:8 row_mask:0xf bank_mask:0xf
    v_add_f32_dpp v{vL}, v{vL}, v{vL} row_ror:8 row_mask:0xf bank_mask:0xf""")
    if slow:
        a(f"""    s_mov_b32 s{sTmp+1}, 0x{f32bits(TMASK + 256.0):08x}
    v_cmp_ge_f32 vcc, s{sTmp+1}, v{vM}
    s_cbranch_vccnz L_slow
L_fin:""")
    a(f"""    v_rcp_f32 v{vL}, v{vL}
    s_mov_b32 exec_lo, 0x000f000f
    s_mov_b32 exec_hi, 0x000f000f
    v_mul_f32 v{OP}, v{OP}, v{vL}
    v_cvt_pk_bf16_f32 v{OP}, v{OP}, v{OP}
    global_store_short v{vTmp}, v{OP}, s[20:21]
    s_mov_b64 exec, -1""")
    if stamps or diag:
        a("    s_waitcnt vmcnt(0)")
    stamp(7)
    if diag:
        ka, kb, mult = diag
        if ka == 9:
            a(f"""    v_readfirstlane_b32 s{sTmp+2}, v{vN}
    v_readfirstlane_b32 s{sTmp+3}, v{vN+1}
    s_nop 3
    s_and_b32 s{sTmp+2}, s{sTmp+2}, 0xfffff
    s_lshl_b32 s{sTmp+3}, s{sTmp+3}, 20
    s_or_b32 s{sTmp+2}, s{sTmp+2}, s{sTmp+3}
    s_waitcnt lgkmcnt(0)
    s_sub_i32 s{sTmp}, s{sST+2*kb}, s{sTmp+2}
    s_max_i32 s{sTmp}, s{sTmp}, 0""")
        else:
            a(f"""    s_waitcnt lgkmcnt(0)
    s_sub_u32 s{sTmp}, s{sST+2*kb}, s{sST+2*ka}""")
        a(f"""
    s_mul_i32 s{sTmp}, s{sTmp}, {mult}
    s_min_u32 s{sTmp}, s{sTmp}, 20000
    s_add_u32 s{sTmp}, s{sTmp}, s{sST+14}
L_spin:
    s_memrealtime s[{sTmp+2}:{sTmp+3}]
    s_waitcnt lgkmcnt(0)
    s_sub_u32 s{sTmp+1}, s{sTmp+2}, s{sTmp}
    s_cmp_lt_i32 s{sTmp+1}, 0
    s_cbranch_scc1 L_spin""")
    a("L_done:")
    stamp_out()
    a("""L_exit:
    s_endpgm""")
    if slow:
        X = 80
        a(f"""L_slow:
    s_cmp_ge_u32 s{sNblk}, 512
    s_cbranch_scc1 L_fin
    s_lshr_b32 s{sTmp+1}, s{sIn}, 4
    s_lshl_b32 s{sTmp+1}, s{sTmp+1}, 8
    s_and_b32 s{sTmp}, s{sIn}, 3
    s_lshl_b32 s{sTmp}, s{sTmp}, 6                   ; (k&3)*4*16 B
    s_add_u32 s{sTmp+1}, s{sTmp+1}, s{sTmp}
    s_bfe_u32 s{sTmp}, s{sIn}, 0x10002
    s_lshl3_add_u32 s{sTmp+1}, s{sTmp}, s{sTmp+1}     ; + ((k>>2)&1)*8 B
    v_bfe_u32 v{X}, v0, 2, 4
    v_lshlrev_b32 v{X}, 12, v{X}
    v_and_b32 v{X+1}, 3, v0
    v_lshlrev_b32 v{X+1}, 4, v{X+1}
    v_add3_u32 v{X}, v{X+1}, v{X}, s{sTmp+1}
    v_mov_b32 v{X+4}, 0
    v_mov_b32 v{X+5}, 0
    v_mov_b32 v{X+6}, 0
    v_mov_b32 v{X+7}, 0
    s_mov_b32 s14, 0x2000000
    s_mov_b32 s{sCnt}, s{sNblk}
L_slow_loop:
    s_lshl_b32 s{sTmp}, s{sCnt}, 2
    s_load_dword s{sTmp+2}, s[16:17], s{sTmp}
    s_waitcnt lgkmcnt(0)
    s_and_b32 s{sTmp+2}, s{sTmp+2}, 511
    s_lshl_b32 s{sTmp+2}, s{sTmp+2}, 16
    buffer_load_dwordx2 v[{X+2}:{X+3}], v{X}, s[12:15], s{sTmp+2} offen
    s_waitcnt vmcnt(0)
    v_lshlrev_b32 v{X+1}, 16, v{X+2}
    v_add_f32 v{X+4}, v{X+4}, v{X+1}
    v_and_b32 v{X+1}, 0xffff0000, v{X+2}
    v_add_f32 v{X+5}, v{X+5}, v{X+1}
    v_lshlrev_b32 v{X+1}, 16, v{X+3}
    v_add_f32 v{X+6}, v{X+6}, v{X+1}
    v_and_b32 v{X+1}, 0xffff0000, v{X+3}
    v_add_f32 v{X+7}, v{X+7}, v{X+1}
    s_add_u32 s{sCnt}, s{sCnt}, 1
    s_cmp_lt_u32 s{sCnt}, 512
    s_cbranch_scc1 L_slow_loop""")
        a(f"""    s_nop 1
    v_permlane32_swap_b32 v{X+4}, v{X+5}
    v_permlane32_swap_b32 v{X+6}, v{X+7}
    s_nop 1
    v_add_f32 v{X+4}, v{X+4}, v{X+5}
    v_add_f32 v{X+6}, v{X+6}, v{X+7}
    s_nop 1
    v_permlane16_swap_b32 v{X+4}, v{X+6}
    s_nop 1
    v_add_f32 v{X+4}, v{X+4}, v{X+6}
    s_nop 1
    v_add_f32_dpp v{X+4}, v{X+4}, v{X+4} row_ror:4 row_mask:0xf bank_mask:0xf
    s_nop 1
    v_add_f32_dpp v{X+4}, v{X+4}, v{X+4} row_ror:8 row_mask:0xf bank_mask:0xf
    v_sub_f32 v{X+1}, 0x{f32bits(TMASK):08x}, v{vM}
    v_exp_f32 v{X+1}, v{X+1}
    s_sub_u32 s{sTmp}, 512, s{sNblk}
    s_lshl_b32 s{sTmp}, s{sTmp}, 4
    v_cvt_f32_u32 v{X+2}, s{sTmp}
    v_fmac_f32 v{vL}, v{X+1}, v{X+2}
    v_fmac_f32 v{OP}, v{X+1}, v{X+4}
    s_branch L_fin""")
    a(descriptor(main, nv, 96))
    return a.text()


if __name__ == "__main__":
    ap = argparse.ArgumentParser()
    ap.add_argument("-o", default="/dev/stdout")
    ap.add_argument("--N", type=int, default=4)
    ap.add_argument("--nospec", action="store_true")
    ap.add_argument("--kflags", default="")
    ap.add_argument("--vflags", default="")
    ap.add_argument("--nomidbar", action="store_true")
    ap.add_argument("--stamps", action="store_true")
    ap.add_argument("--diag", default=None)
    ap.add_argument("--sleep", type=int, default=2)
    ap.add_argument("--thr", type=int, default=8)
    ap.add_argument("--xp", default="")
    ap.add_argument("--pw", type=int, default=0)
    ap.add_argument("--lf", default="sc1")
    ap.add_argument("--sf", default="sc1")
    ap.add_argument("--local", action="store_true")
    ap.add_argument("--ra", type=int, default=48)
    ap.add_argument("--pf", type=int, default=0)
    ap.add_argument("--earlyn", action="store_true")
    ap.add_argument("--lfa", default="sc1")
    ap.add_argument("--pre", default="")
    ap.add_argument("--pearly", action="store_true")
    x = ap.parse_args()
    open(x.o, "w").write(gen(N=x.N, spec=not x.nospec, kflags=x.kflags, vflags=x.vflags,
                             midbar=not x.nomidbar, stamps=x.stamps, sleep=x.sleep, thr=x.thr, xp=x.xp, pw=x.pw, lf=x.lf, sf=x.sf, local=x.local, ra=x.ra, pf=x.pf, earlyn=x.earlyn, lfa=x.lfa, pre=x.pre, pearly=x.pearly,
                             diag=tuple(int(t) for t in x.diag.split(",")) if x.diag else None))
```

```python
import struct, sys, math, argparse
from gen import HEADER, NAME, f32bits, SCALE, TMASK, NEGINF, Asm, descriptor

W = 16
U = 2
NQ = 8


def gen(N=4, spec=True, kflags="", vflags="", midbar=True, stamps=False, diag=None, sleep=2, thr=8, slow=True, xp='', pw=0, lf='sc1', sf='sc1', local=False, ra=48, pf=0, earlyn=False, lfa='sc1', pre='', pearly=False, dummy=False):
    NG = 16 // N
    WPG = 16 * N
    J = 16 // N
    KK = WPG // 16
    lgN = int(math.log2(N))
    lgNG = int(math.log2(NG))
    lgWPG = int(math.log2(WPG))
    a = Asm()
    LDS_MAX, LDS_L, LDS_O = 0, 512, 1024
    lds_bytes = LDS_O + W * 1024
    NT = W * 64
    RS = 1152
    vKoff, vVoff, vG, vC, vLw, vM, vL, vTmp = 1, 2, 3, 4, 5, 6, 7, 30
    vQ = 8
    vAM = 12
    vO = 16
    vMV = 20
    vML = 24
    vN = 26
    vPub = 23
    vLr = 28
    vOw = 29
    vT = 32
    vK = 40
    vV = 72
    nv = 104
    sW = 3
    sC, sIdx = 26, 27
    sH256 = 28
    sB = 29
    sCtx = 30
    sNblk = 31
    sBT = 32
    sG = 34
    sHead = 35
    sJ = 36
    sIn = 37
    sOff = 40
    sST = 56
    sNR = 72
    sTmp = 80
    sMask = 84
    sCnt = 92
    sNc = 94
    main = f"{NAME}_kernel"

    def stamp(k):
        if stamps or diag:
            a(f"    s_memrealtime s[{sST+2*k}:{sST+2*k+1}]")

    def stamp_out():
        if not stamps:
            return
        a(f"    s_waitcnt lgkmcnt(0) vmcnt(0)")
        a(f"    s_getreg_b32 s{sST+1}, hwreg(HW_REG_XCC_ID)")
        a(f"    s_getreg_b32 s{sST+3}, hwreg(HW_REG_HW_ID)")
        for k in range(8):
            a(f"    v_mov_b32 v{40+k}, s{sST+2*k}")
        a(f"    v_mov_b32 v48, s{sST+1}")
        a(f"    v_mov_b32 v49, s{sCnt}")
        a(f"""    s_lshl_b32 s{sTmp}, s2, 10
    s_lshl_b32 s{sTmp+1}, s{sW}, 6
    s_add_u32 s{sTmp}, s{sTmp}, s{sTmp+1}
    s_add_u32 s{sTmp}, s{sTmp}, 0x400000
    v_mov_b32 v50, s{sTmp}
    s_mov_b64 exec, 1
    global_store_dwordx4 v50, v[40:43], s[24:25]
    global_store_dwordx4 v50, v[44:47], s[24:25] offset:16
    global_store_dwordx2 v50, v[48:49], s[24:25] offset:32
    s_mov_b64 exec, -1""")

    def pretouch():
        assert local
        a(f"""    s_cmp_lg_u32 s{sW}, {N}
    s_cbranch_scc1 L_nopre
    s_lshl_b32 s{sTmp}, s{sG}, {lgWPG}
    s_add_u32 s{sTmp}, s{sTmp}, s{sIdx}
    s_lshr_b32 s{sTmp+1}, s{sTmp}, 4
    s_mul_i32 s{sTmp+1}, s{sTmp+1}, {WPG*RS}
    s_and_b32 s{sTmp}, s{sTmp}, 15
    s_lshl_b32 s{sTmp}, s{sTmp}, 6
    s_movk_i32 s{sTmp+2}, {RS}
    v_and_b32 v22, 31, v0
    v_mul_u32_u24 v22, s{sTmp+2}, v22
    v_add_u32 v22, s{sTmp+1}, v22
    v_mov_b32 v31, s{sTmp}
    s_mov_b32 exec_lo, 0
    v_mov_b32 v31, 1024
    s_mov_b32 exec_lo, -1
    v_add_u32 v22, v22, v31
    global_load_dword v22, v22, s[24:25] {pre}
L_nopre:""")

    def rec_addr(vml):
        if KK == 4:
            a(f"""    s_and_b32 s{sTmp}, s{sIdx}, 1
    s_bfe_u32 s{sTmp+1}, s{sIdx}, 0x10002
    s_lshl1_add_u32 s{sTmp}, s{sTmp}, s{sTmp+1}
    s_bfe_u32 s{sTmp+1}, s{sIdx}, 0x10001
    s_lshl1_add_u32 s{sTmp}, s{sTmp}, s{sTmp+1}
    s_lshr_b32 s{sTmp+1}, s{sIdx}, 3
    s_lshl3_add_u32 s{sTmp}, s{sTmp}, s{sTmp+1}""")
        elif KK == 2 and not local:
            a(f"""    s_and_b32 s{sTmp}, s{sIdx}, 7
    s_lshr_b32 s{sTmp+1}, s{sIdx}, 3
    s_lshl2_add_u32 s{sTmp}, s{sTmp}, s{sTmp+1}""")
        else:
            a(f"    s_mov_b32 s{sTmp}, s{sIdx}")
        a(f"""    s_lshl_b32 s{sTmp+1}, s{sHead}, {lgWPG}
    s_add_u32 s{sTmp}, s{sTmp}, s{sTmp+1}
    s_mul_i32 s{sTmp}, s{sTmp}, {RS}
    v_and_b32 v{vPub}, 63, v0
    v_lshl_add_u32 v{vPub}, v{vPub}, 4, s{sTmp}        ; record + l*16
    v_and_b32 v{vml}, 8, v0
    v_lshl_add_u32 v{vml}, v{vml}, 1, s{sTmp}        ; record + h*16 (+1024)
    s_movk_i32 s{sNc}, 0x3ff""")

    def nonce_ld(va):
        a(f"""    s_cmp_gt_u32 s{sW}, {N}
    s_cbranch_scc1 L_nordyld
    global_load_dwordx2 v[{vN}:{vN+1}], v{va}, s[22:23] sc1
L_nordyld:""")
        if "nononce" in xp:
            a.lines = a.lines[:-4]
            a(f"    v_mov_b32 v{vN}, 0x80012345\n    v_mov_b32 v{vN+1}, 0x80054321")

    idmap = f"""    s_bfe_u32 s{sG}, s2, {(lgNG << 16) | 3:#x}            ; G = (id>>3) % NG
    s_lshr_b32 s{sIdx}, s2, {3 + lgNG}
    s_and_b32 s{sTmp}, s2, 7
    s_lshl3_add_u32 s{sIdx}, s{sIdx}, s{sTmp}"""
    if local:
        assert N == 2
        idmap = f"""    s_and_b32 s{sG}, s2, 7                       ; group = id % 8 (one XCD under round-robin placement: speed only)
    s_lshr_b32 s{sIdx}, s2, 3"""
    BOFF = 0x100000
    pf_code = ""
    if pf:
        pf_code = f"""    s_cmp_lg_u32 s{sW}, 3
    s_cbranch_scc1 L_nopf
    s_getpc_b64 s[{sTmp+2}:{sTmp+3}]
    v_and_b32 v{vT+3}, 63, v0
    v_lshlrev_b32 v{vT+3}, 7, v{vT+3}
    s_mov_b64 exec, {(1 << pf) - 1:#x}
    global_load_dword v{vT+4}, v{vT+3}, s[{sTmp+2}:{sTmp+3}]
    s_mov_b64 exec, -1
L_nopf:"""
    a(HEADER.rstrip("\n"))
    a(f"; @launch grid=(256,1,1) block=({NT},1,1) lds={lds_bytes}")
    a(f""".amdgcn_target "amdgcn-amd-amdhsa--gfx950"
.text
.globl {main}
.p2align 8
.type {main},@function
{main}:
    s_cmp_ge_u32 s2, 256
    s_cbranch_scc1 L_exit""")
    stamp(0)
    if stamps:
        for k in range(1, 8):
            a(f"    s_mov_b32 s{sST+2*k}, 0")
        a(f"    s_mov_b32 s{sCnt}, 0")
    a(f"""    s_load_dwordx2 s[8:9], s[0:1], 8            ; K
    s_load_dwordx4 s[16:19], s[0:1], 24
    s_load_dwordx2 s[12:13], s[0:1], 16         ; V
    s_load_dwordx2 s[4:5], s[0:1], 0            ; q
    s_load_dwordx2 s[24:25], s[0:1], 56         ; ws
    s_load_dwordx4 s[20:23], s[0:1], 40
    v_readfirstlane_b32 s{sW}, v0
    v_and_b32 v{vTmp}, 3, v0
    v_lshlrev_b32 v{vTmp}, 4, v{vTmp}
    v_and_b32 v{vG}, 48, v0
    v_lshl_or_b32 v{vTmp}, v{vG}, 2, v{vTmp}
    v_and_b32 v{vKoff}, 12, v0
    v_lshl_or_b32 v{vKoff}, v{vKoff}, 10, v{vTmp}  ; + ((l>>2)&3)*4096
    s_lshr_b32 s{sW}, s{sW}, 6
{idmap}
    s_and_b32 s{sC}, s{sW}, {N-1}
    s_lshr_b32 s{sJ}, s{sW}, {lgN}
    s_lshl4_add_u32 s{sB}, s{sC}, s{sIdx}
    s_and_b32 s{sB}, s{sB}, {WPG-1}
    s_lshl_b32 s{sTmp}, s{sJ}, {lgWPG}
    s_add_u32 s{sB}, s{sB}, s{sTmp}                 ; b0 = j*WPG + (idx+16c)%WPG
    s_lshl_b32 s{sHead}, s{sG}, {lgN}
    s_add_u32 s{sHead}, s{sHead}, s{sC}
    s_lshl_b32 s{sH256}, s{sHead}, 8
    s_lshl_b32 s{sOff}, s{sB}, 16
    s_add_u32 s{sOff}, s{sOff}, s{sH256}
    s_add_u32 s{sOff+1}, s{sOff}, 0x4000
    s_add_u32 s{sOff+2}, s{sOff}, 0x8000
    s_add_u32 s{sOff+3}, s{sOff}, 0xc000
    s_mov_b32 s10, 0x2000000
    s_mov_b32 s11, 0x20000
    s_lshl_b32 s{sTmp}, s{sB}, 2
    s_waitcnt lgkmcnt(0)
""")
    if spec:
        for i in range(4):
            a(f"    buffer_load_dwordx4 v[{vK+4*i}:{vK+4*i+3}], v{vKoff}, s[8:11], s{sOff+i} offen {kflags}")
    stamp(1)
    for u in range(U):
        a(f"    s_load_dword s{sBT+u}, s[16:17], s{sTmp} offset:{u*1024}")
    a(f"    s_load_dword s{sCtx}, s[18:19], 0")
    a(f"""
    v_and_b32 v{vVoff}, 8, v0
    v_lshl_or_b32 v{vTmp}, v{vVoff}, 5, v{vTmp}     ; + h*256
    s_lshl_b32 s{sTmp+1}, s{sHead}, 9
    v_add_u32 v{vTmp}, s{sTmp+1}, v{vTmp}
    global_load_dwordx4 v[{vQ}:{vQ+3}], v{vTmp}, s[4:5]
    v_and_b32 v{vVoff}, 15, v0
    v_lshlrev_b32 v{vVoff}, 4, v{vVoff}
    v_lshl_or_b32 v{vVoff}, v{vG}, 8, v{vVoff}      ; (l>>4)*4096 + (l&15)*16
    v_lshrrev_b32 v{vG}, 4, v{vG}                  ; g = l>>4
    s_mov_b32 s14, 0x2000000
    s_mov_b32 s15, 0x20000
{pf_code}
    s_or_b32 s{sTmp+1}, s2, s{sW}
    s_cmp_lg_u32 s{sTmp+1}, 0
    s_cbranch_scc1 L_nolead
    s_memrealtime s[{sTmp+2}:{sTmp+3}]
    v_mov_b32 v{vT+2}, 0
    s_waitcnt lgkmcnt(0)
    s_lshr_b64 s[{sNc}:{sNc+1}], s[{sTmp+2}:{sTmp+3}], 20
    s_and_b32 s{sTmp+2}, s{sTmp+2}, 0xfffff
    s_and_b32 s{sNc}, s{sNc}, 0xfffff
    s_bitset1_b32 s{sTmp+2}, 31
    s_bitset1_b32 s{sNc}, 31
    v_mov_b32 v{vT}, s{sTmp+2}
    v_mov_b32 v{vT+1}, s{sNc}
    s_mov_b64 exec, 1
    global_store_dwordx2 v{vT+2}, v[{vT}:{vT+1}], s[22:23] sc1
    s_mov_b64 exec, -1
L_nolead:
    s_waitcnt lgkmcnt(0)
    s_max_i32 s{sCtx}, s{sCtx}, 0
    s_min_i32 s{sCtx}, s{sCtx}, 8192
    s_add_u32 s{sNblk}, s{sCtx}, 15
    s_lshr_b32 s{sNblk}, s{sNblk}, 4""")
    for u in range(U):
        a(f"    s_and_b32 s{sBT+u}, s{sBT+u}, 511")
    a(f"    s_mov_b32 s{sTmp+2}, 0x{NEGINF:08x}")
    for u in range(U):
        a(f"    s_add_u32 s{sTmp}, s{sB}, {u*256}")
        a(f"    s_cmp_lt_u32 s{sTmp}, s{sNblk}")
        a(f"    s_cselect_b32 s{sNR+u}, 0x2000000, 0")
        a(f"    s_cselect_b32 s{sTmp+1}, 0x{f32bits(TMASK):08x}, s{sTmp+2}")
        a(f"    v_mov_b32 v{vMV+u}, s{sTmp+1}")
    if spec:
        a(f"""    s_cmp_eq_u32 s{sBT}, s{sB}
    s_cbranch_scc1 L_spec_ok
    s_waitcnt vmcnt(0)
    s_lshl_b32 s{sOff}, s{sBT}, 16
    s_add_u32 s{sOff}, s{sOff}, s{sH256}
    s_add_u32 s{sOff+1}, s{sOff}, 0x4000
    s_add_u32 s{sOff+2}, s{sOff}, 0x8000
    s_add_u32 s{sOff+3}, s{sOff}, 0xc000""")
        for i in range(4):
            a(f"    buffer_load_dwordx4 v[{vK+4*i}:{vK+4*i+3}], v{vKoff}, s[8:11], s{sOff+i} offen {kflags}")
        a("L_spec_ok:")
    if pre and pearly:
        pretouch()
    for u in range(0 if not spec else 1, U):
        o = sOff + 4 * u
        a(f"""    s_lshl_b32 s{o}, s{sBT+u}, 16
    s_add_u32 s{o}, s{o}, s{sH256}
    s_add_u32 s{o+1}, s{o}, 0x4000
    s_add_u32 s{o+2}, s{o}, 0x8000
    s_add_u32 s{o+3}, s{o}, 0xc000
    s_mov_b32 s10, s{sNR+u}""")
        for i in range(4):
            q = 4 * u + i
            a(f"    buffer_load_dwordx4 v[{vK+4*q}:{vK+4*q+3}], v{vKoff}, s[8:11], s{o+i} offen {kflags}")
    if midbar:
        a("    s_barrier")
    if earlyn:
        a(f"    v_mov_b32 v{vT+5}, 0")
        nonce_ld(vT + 5)
    for u in range(U):
        o = sOff + 4 * u
        a(f"    s_mov_b32 s14, s{sNR+u}")
        for i in range(4):
            q = 4 * u + i
            a(f"    buffer_load_dwordx4 v[{vV+4*q}:{vV+4*q+3}], v{vVoff}, s[12:15], s{o+i} offen {vflags}")
    if pre and not pearly:
        pretouch()
    if dummy:
        rec_addr(22)
        a(f"""    s_cmp_ge_u32 s{sW}, {N}
    s_cbranch_scc1 L_nodummy
    v_mov_b32 v{vO}, 0
    v_mov_b32 v{vO+1}, 0
    v_mov_b32 v{vO+2}, 0
    v_mov_b32 v{vO+3}, 0
    global_store_dwordx4 v{vPub}, v[{vO}:{vO+3}], s[24:25]
    s_mov_b64 exec, 0xff
    global_store_dwordx4 v{vPub}, v[{vO}:{vO+3}], s[24:25] offset:1024
    s_mov_b64 exec, -1
L_nodummy:""")
    stamp(2)
    lgJ16 = int(math.log2(J * 16))
    a(f"""
    v_mov_b32 v{vC}, 0x{f32bits(SCALE):08x}
    v_and_b32 v{vTmp}, 1, v0
    v_lshlrev_b32 v{vTmp}, 4, v{vTmp}
    s_mov_b32 s{sTmp}, 0xffff
    v_lshlrev_b32_e64 v{vTmp}, v{vTmp}, s{sTmp}        ; 0xffff << 16*(l&1)
    v_bfe_u32 v{vTmp+1}, v0, 1, 2
    v_cmp_eq_u32_e64 s[{sMask}:{sMask+1}], 0, v{vTmp+1}
    v_cmp_eq_u32_e64 s[{sMask+2}:{sMask+3}], 1, v{vTmp+1}
    v_cmp_eq_u32_e64 s[{sMask+4}:{sMask+5}], 2, v{vTmp+1}
    v_cmp_eq_u32_e64 s[{sMask+6}:{sMask+7}], 3, v{vTmp+1}
    v_bfe_u32 v{vLr}, v0, 3, 1
    v_lshlrev_b32 v{vLr}, {lgJ16}, v{vLr}             ; h * J*16
    v_cndmask_b32_e64 v{vAM}, 0, v{vTmp}, s[{sMask}:{sMask+1}]
    v_cndmask_b32_e64 v{vAM+1}, 0, v{vTmp}, s[{sMask+2}:{sMask+3}]
    v_cndmask_b32_e64 v{vAM+2}, 0, v{vTmp}, s[{sMask+4}:{sMask+5}]
    v_cndmask_b32_e64 v{vAM+3}, 0, v{vTmp}, s[{sMask+6}:{sMask+7}]
    s_lshl_b32 s{sTmp}, s{sC}, {lgJ16+1}
    v_add_u32 v{vLr}, s{sTmp}, v{vLr}                ; + c * 2*J*16
    s_lshl_b32 s{sTmp}, s{sJ}, 4
    v_lshl_add_u32 v{vLw}, v{vG}, 2, v{vLr}
    v_add_u32 v{vLw}, s{sTmp}, v{vLw}                ; + (j*4+g)*4
    v_and_b32 v{vTmp}, 7, v0
    v_lshl_add_u32 v{vLr}, v{vTmp}, {lgJ16-3}, v{vLr}   ; + e*(J/2 floats)
    v_lshlrev_b32 v{vOw}, 4, v0                     ; tid*16  (= w*1024 + l*16)
""")
    nV = NQ
    for u in range(U):
        later = (U - 1 - u) * 4 + nV
        a(f"    s_waitcnt vmcnt({later})")
        if u == 0:
            stamp(3)
        for i in range(4):
            q = 4 * u + i
            a(f"    v_mfma_f32_16x16x32_bf16 v[{vK+4*q}:{vK+4*q+3}], v[{vK+4*q}:{vK+4*q+3}], v[{vQ}:{vQ+3}], 0")
        a(f"    s_add_u32 s{sTmp}, s{sB}, {u*256}")
        a(f"    s_lshl_b32 s{sTmp}, s{sTmp}, 4")
        a(f"    s_sub_i32 s{sTmp}, s{sCtx}, s{sTmp}")
        for i in range(4):
            a(f"    v_cmp_gt_i32_e64 s[{sMask+2*i}:{sMask+2*i+1}], s{sTmp}, v{vG}")
            if i < 3:
                a(f"    s_sub_i32 s{sTmp}, s{sTmp}, 4")
        a("    s_nop 1")
        for step in range(4):
            for i in range(4):
                q = 4 * u + i
                op = "v_mul_f32_dpp" if step == 0 else "v_fmac_f32_dpp"
                a(f"    {op} v{vT+q}, v{vK+4*q+step}, v{vC} quad_perm:[{step},{step},{step},{step}] row_mask:0xf bank_mask:0xf")
        for i in range(4):
            q = 4 * u + i
            a(f"    v_cndmask_b32_e64 v{vT+q}, v{vMV+u}, v{vT+q}, s[{sMask+2*i}:{sMask+2*i+1}]")
    a(f"    s_mov_b32 s{sTmp}, 0x{f32bits(TMASK):08x}")
    a(f"    v_max3_f32 v{vM}, v{vT}, v{vT+1}, s{sTmp}")
    for q in range(2, NQ, 2):
        a(f"    v_max3_f32 v{vM}, v{vT+q}, v{vT+q+1}, v{vM}")
    a(f"""    ds_write_b32 v{vLw}, v{vM} offset:{LDS_MAX}
    v_mov_b32 v{vTmp}, 0
    s_waitcnt lgkmcnt(0)
    s_barrier""")
    stamp(4)
    if not earlyn:
        nonce_ld(vTmp)
    nrd = J // 2
    r0 = vK

    def rd(dst, off):
        if nrd == 8:
            a(f"    ds_read_b128 v[{dst}:{dst+3}], v{vLr} offset:{off}")
            a(f"    ds_read_b128 v[{dst+4}:{dst+7}], v{vLr} offset:{off+16}")
        elif nrd == 4:
            a(f"    ds_read_b128 v[{dst}:{dst+3}], v{vLr} offset:{off}")
        else:
            a(f"    ds_read_b64 v[{dst}:{dst+1}], v{vLr} offset:{off}")

    rd(r0, LDS_MAX)
    a("    s_waitcnt lgkmcnt(0)")
    if nrd == 8:
        a(f"""    v_max3_f32 v{vM}, v{r0}, v{r0+1}, v{r0+2}
    v_max3_f32 v{vM}, v{vM}, v{r0+3}, v{r0+4}
    v_max3_f32 v{vM}, v{vM}, v{r0+5}, v{r0+6}
    v_max_f32 v{vM}, v{vM}, v{r0+7}""")
    elif nrd == 4:
        a(f"""    v_max3_f32 v{vM}, v{r0}, v{r0+1}, v{r0+2}
    v_max_f32 v{vM}, v{vM}, v{r0+3}""")
    else:
        a(f"    v_max_f32 v{vM}, v{r0}, v{r0+1}")
    a(f"""    s_nop 1
    v_max_f32_dpp v{vM}, v{vM}, v{vM} quad_perm:[1,0,3,2] row_mask:0xf bank_mask:0xf
    s_nop 1
    v_max_f32_dpp v{vM}, v{vM}, v{vM} quad_perm:[2,3,0,1] row_mask:0xf bank_mask:0xf
    s_nop 1
    v_max_f32_dpp v{vM}, v{vM}, v{vM} row_half_mirror row_mask:0xf bank_mask:0xf""")
    for q in range(NQ):
        a(f"    v_sub_f32 v{vT+q}, v{vT+q}, v{vM}")
    for q in range(NQ):
        a(f"    v_exp_f32 v{vT+q}, v{vT+q}")
    a("    s_nop 0")
    a(f"    v_add_f32 v{vL}, v{vT}, v{vT+1}")
    for q in range(2, NQ):
        a(f"    v_add_f32 v{vL}, v{vL}, v{vT+q}")
    a(f"    ds_write_b32 v{vLw}, v{vL} offset:{LDS_L}")
    for q in range(NQ):
        a(f"    v_cvt_pk_bf16_f32 v{vT+q}, v{vT+q}, v{vT+q}")
    for q in range(NQ):
        for r in range(4):
            a(f"    v_and_b32 v{vK+4*q+r}, v{vAM+r}, v{vT+q}")
    if not dummy:
        rec_addr(vTmp)
    for q in range(NQ):
        a(f"    s_waitcnt vmcnt({NQ-1-q})")
        c = "0" if q == 0 else f"v[{vO}:{vO+3}]"
        a(f"    v_mfma_f32_16x16x32_bf16 v[{vO}:{vO+3}], v[{vK+4*q}:{vK+4*q+3}], v[{vV+4*q}:{vV+4*q+3}], {c}")
    stamp(5)
    a(f"""    s_nop 7
    ds_write_b128 v{vOw}, v[{vO}:{vO+3}] offset:{LDS_O}
    s_waitcnt lgkmcnt(0)
    s_barrier
    s_cmp_gt_u32 s{sW}, {N}
    s_cbranch_scc1 L_done
    s_cmp_eq_u32 s{sW}, {N}
    s_cbranch_scc1 L_consume""")
    rl = vT
    if "tailst" in xp:
        stamp(1)
        a("    s_waitcnt lgkmcnt(0)")
    rd(rl, LDS_L)
    for j in range(1, J):
        a(f"    ds_read_b128 v[{vK+4*j}:{vK+4*j+3}], v{vOw} offset:{LDS_O+1024*N*j}")
    a(f"    s_waitcnt lgkmcnt({min(15, J-1)})")
    a(f"    v_add_f32 v{vL}, v{rl}, v{rl+1}")
    for k in range(2, nrd):
        a(f"    v_add_f32 v{vL}, v{vL}, v{rl+k}")
    a(f"""    s_nop 1
    v_add_f32_dpp v{vL}, v{vL}, v{vL} quad_perm:[1,0,3,2] row_mask:0xf bank_mask:0xf
    s_nop 1
    v_add_f32_dpp v{vL}, v{vL}, v{vL} quad_perm:[2,3,0,1] row_mask:0xf bank_mask:0xf
    s_nop 1
    v_add_f32_dpp v{vL}, v{vL}, v{vL} row_half_mirror row_mask:0xf bank_mask:0xf""")
    for j in range(1, J):
        a(f"    s_waitcnt lgkmcnt({J-1-j})")
        a(f"    v_pk_add_f32 v[{vO}:{vO+1}], v[{vO}:{vO+1}], v[{vK+4*j}:{vK+4*j+1}]")
        a(f"    v_pk_add_f32 v[{vO+2}:{vO+3}], v[{vO+2}:{vO+3}], v[{vK+4*j+2}:{vK+4*j+3}]")
    if "tailst" in xp:
        stamp(2)
    a(f"""    s_waitcnt vmcnt(0)
    v_and_b32 v{vT}, v{vN}, v{vN+1}
    v_lshrrev_b32 v{vT+1}, 10, v{vN}
    v_readfirstlane_b32 s{sTmp}, v{vT}
    v_lshrrev_b32 v{vT+2}, 10, v{vN+1}
    v_mov_b32 v{vML}, v{vM}
    v_mov_b32 v{vML+1}, v{vL}
    s_cmp_lt_i32 s{sTmp}, 0
    s_cbranch_scc0 L_waitrdy
L_publish:
{"    s_branch L_done" if "nopub" in xp else ""}
    v_bfi_b32 v{vO}, s{sNc}, v{vN}, v{vO}
    v_bfi_b32 v{vO+1}, s{sNc}, v{vT+1}, v{vO+1}
    v_bfi_b32 v{vO+2}, s{sNc}, v{vN+1}, v{vO+2}
    v_bfi_b32 v{vO+3}, s{sNc}, v{vT+2}, v{vO+3}
""")
    if local:
        a(f"""    global_store_dwordx4 v{vPub}, v[{vO}:{vO+3}], s[24:25]
    s_mov_b64 exec, 0x101
    global_store_dwordx4 v{22 if dummy else vTmp}, v[{vML}:{vML+3}], s[24:25] offset:1024
    s_mov_b64 exec, -1
    s_add_u32 s24, s24, {BOFF}
    s_addc_u32 s25, s25, 0""")
        if "tailst" in xp:
            stamp(3)
    if "bdelay" in xp:
        a("    s_sleep 12")
    if "noB" not in xp:
        a(f"""    global_store_dwordx4 v{vPub}, v[{vO}:{vO+3}], s[24:25] {sf}
    s_mov_b64 exec, 0x101
    global_store_dwordx4 v{22 if dummy else vTmp}, v[{vML}:{vML+3}], s[24:25] offset:1024 {sf}
    s_mov_b64 exec, -1""")
    if local and stamps:
        a(f"""    s_sub_u32 s24, s24, {BOFF}
    s_subb_u32 s25, s25, 0""")
    stamp(6)
    a(f"""    s_branch L_done
L_waitrdy:
    v_mov_b32 v{vTmp+1}, 0
    s_mov_b32 s{sCnt}, 0
L_waitrdy_loop:
    s_sleep 8
    global_load_dwordx2 v[{vN}:{vN+1}], v{vTmp+1}, s[22:23] sc1
    s_add_u32 s{sCnt}, s{sCnt}, 1
    s_waitcnt vmcnt(0)
    v_and_b32 v{vT}, v{vN}, v{vN+1}
    v_lshrrev_b32 v{vT+1}, 10, v{vN}
    v_readfirstlane_b32 s{sTmp}, v{vT}
    v_lshrrev_b32 v{vT+2}, 10, v{vN+1}
    s_cmp_gt_u32 s{sCnt}, 20000
    s_cbranch_scc1 L_rdy_out
    s_cmp_lt_i32 s{sTmp}, 0
    s_cbranch_scc0 L_waitrdy_loop
L_rdy_out:
    s_cmp_eq_u32 s{sW}, {N}
    s_cbranch_scc1 L_consume2
    s_branch L_publish""")
    OP = 40
    ML = 56
    vA1, vA2 = 1, 2
    sMs = 40
    sRo = 48
    a(f"""L_consume:
    s_lshl_b32 s{sIn}, s{sG}, {lgWPG}
    s_add_u32 s{sIn}, s{sIn}, s{sIdx}
    s_movk_i32 s{sTmp}, {RS}
    v_bfe_u32 v{vA2}, v0, 2, 4
    v_mul_u32_u24 v{vA2}, s{sTmp}, v{vA2}             ; p'*RS,  p' = l>>2
    v_and_b32 v{vTmp}, 3, v0
    v_lshlrev_b32 v{vTmp}, 4, v{vTmp}                 ; qd*16
    s_and_b32 s{sTmp+1}, s{sIn}, 15
    s_lshl_b32 s{sTmp+2}, s{sTmp+1}, 6
    v_add3_u32 v{vA1}, v{vA2}, v{vTmp}, s{sTmp+2}       ; + k*64 + qd*16
    s_lshr_b32 s{sTmp+2}, s{sTmp+1}, 3
    s_lshl_b32 s{sTmp+2}, s{sTmp+2}, 4
    v_add_u32 v{vA2}, s{sTmp+2}, v{vA2}               ; + h*16 (+1024)
    s_lshr_b32 s{sRo}, s{sIn}, 4
    s_mul_i32 s{sRo}, s{sRo}, {WPG*RS}""")
    for kk in range(1, KK):
        a(f"    s_add_u32 s{sRo+kk}, s{sRo}, {kk*16*RS}")
    a(f"""    s_mov_b32 s8, s24
    s_mov_b32 s9, s25
    s_mov_b32 s10, {256*N*RS + (BOFF if local else 0)}
    s_lshr_b32 s{sTmp+2}, s{sIn}, 3
    s_lshl_b32 s{sTmp+2}, s{sTmp+2}, 8
    s_and_b32 s{sTmp+3}, s{sTmp+1}, 3
    s_lshl_b32 s{sTmp+3}, s{sTmp+3}, 6
    s_add_u32 s{sTmp+2}, s{sTmp+2}, s{sTmp+3}
    s_bfe_u32 s{sTmp+3}, s{sTmp+1}, 0x10002
    s_lshl3_add_u32 s{sTmp+2}, s{sTmp+3}, s{sTmp+2}
    v_add_u32 v{vTmp}, s{sTmp+2}, v{vTmp}
    v_bfe_u32 v{vT}, v0, 4, 1
    v_lshl_add_u32 v{vTmp}, v{vT}, 2, v{vTmp}
    v_bfe_u32 v{vT}, v0, 5, 1
    v_lshl_add_u32 v{vTmp}, v{vT}, 1, v{vTmp}
    s_waitcnt vmcnt(0)
    v_and_b32 v{vT}, v{vN}, v{vN+1}
    v_lshrrev_b32 v{vT+1}, 10, v{vN}
    v_readfirstlane_b32 s{sTmp}, v{vT}
    v_lshrrev_b32 v{vT+2}, 10, v{vN+1}
    s_cmp_lt_i32 s{sTmp}, 0
    s_cbranch_scc0 L_waitrdy
L_consume2:
    s_mov_b32 s{sCnt}, 0""")
    if "tailst" in xp:
        stamp(2)
    for kk in range(KK):
        a(f"    s_mov_b64 s[{sMs+2*kk}:{sMs+2*kk+1}], -1")
    if "latepoll" in xp:
        a(f"""    s_add_u32 s{sTmp}, s{sST}, 1050
L_late:
    s_sleep 4
    s_memrealtime s[{sTmp+2}:{sTmp+3}]
    s_waitcnt lgkmcnt(0)
    s_sub_u32 s{sTmp+1}, s{sTmp+2}, s{sTmp}
    s_cmp_lt_i32 s{sTmp+1}, 0
    s_cbranch_scc1 L_late""")
    def poll_loads(tag, fl):
        for kk in range(KK):
            a(f"""    s_mov_b64 exec, s[{sMs+2*kk}:{sMs+2*kk+1}]
    s_cbranch_execz L_skip{tag}{kk}
    buffer_load_dwordx4 v[{OP+4*kk}:{OP+4*kk+3}], v{vA1}, s[8:11], s{sRo+kk} offen {fl}
    buffer_load_dwordx4 v[{ML+4*kk}:{ML+4*kk+3}], v{vA2}, s[8:11], s{sRo+kk} offen offset:1024 {fl}
L_skip{tag}{kk}:""")
    if local and lfa != lf:
        a("    s_branch L_poll\nL_pollB:")
        poll_loads("b", lf)
        a("    s_branch L_issued")
        a("L_poll:")
        poll_loads("a", lfa)
        a("L_issued:")
    else:
        a("L_poll:\nL_pollB:")
        poll_loads("", lf)
    a(f"""    s_mov_b64 exec, -1
    s_add_u32 s{sCnt}, s{sCnt}, 1
    s_cmp_gt_u32 s{sCnt}, 20000
    s_cbranch_scc1 L_got
    s_mov_b32 s{sTmp}, 0
    s_waitcnt vmcnt({pw})""")
    for kk in range(KK):
        o, m = OP + 4 * kk, ML + 4 * kk
        a(f"""    s_cmp_eq_u64 s[{sMs+2*kk}:{sMs+2*kk+1}], 0
    s_cbranch_scc1 L_chk{kk}
    v_xor_b32 v8, v{o}, v{vN}
    v_xor_b32 v9, v{o+1}, v{vT+1}
    v_xor_b32 v10, v{o+2}, v{vN+1}
    v_xor_b32 v11, v{o+3}, v{vT+2}
    v_xor_b32 v12, v{m+2}, v{vN}
    v_or3_b32 v8, v8, v9, v10
    v_xor_b32 v13, v{m+3}, v{vN+1}
    v_or_b32 v8, v8, v11
    v_and_b32 v8, 0x3ff, v8
    v_or3_b32 v8, v8, v12, v13
    v_cmp_ne_u32_e64 s[{sMs+2*kk}:{sMs+2*kk+1}], 0, v8
    s_nop 0
    s_bcnt1_i32_b64 s{sTmp+1}, s[{sMs+2*kk}:{sMs+2*kk+1}]
    s_add_u32 s{sTmp}, s{sTmp}, s{sTmp+1}
L_chk{kk}:""")
    a(f"""    s_cmp_eq_u32 s{sTmp}, 0
    s_cbranch_scc1 L_got""")
    if local:
        a(f"""    s_cmp_lt_u32 s{sCnt}, {ra}
    s_cbranch_scc1 L_poll
    s_cmp_lg_u32 s{sCnt}, {ra}
    s_cbranch_scc1 L_slowpoll""")
        for kk in range(KK):
            a(f"    s_add_u32 s{sRo+kk}, s{sRo+kk}, {BOFF}")
        a("L_slowpoll:")
    a(f"""
    s_sub_i32 s{sTmp}, s{sTmp}, {4*thr}
    s_ashr_i32 s{sTmp}, s{sTmp}, {sleep}
L_nap:
    s_cmp_le_i32 s{sTmp}, 0
    s_cbranch_scc1 L_pollB
    s_sleep 1
    s_sub_i32 s{sTmp}, s{sTmp}, 1
    s_branch L_nap""")
    a("L_got:")
    stamp(6)
    if KK == 1:
        a(f"    v_mov_b32 v{vM}, v{ML}")
    elif KK == 2:
        a(f"    v_max_f32 v{vM}, v{ML}, v{ML+4}")
    else:
        a(f"    v_max3_f32 v{vM}, v{ML}, v{ML+4}, v{ML+8}")
        a(f"    v_max_f32 v{vM}, v{vM}, v{ML+12}")
    a(f"""    s_nop 1
    v_max_f32_dpp v{vM}, v{vM}, v{vM} row_ror:4 row_mask:0xf bank_mask:0xf
    s_nop 1
    v_max_f32_dpp v{vM}, v{vM}, v{vM} row_ror:8 row_mask:0xf bank_mask:0xf
    s_nop 0
    v_mov_b32 v8, v{vM}
    s_nop 1
    v_permlane16_swap_b32 v{vM}, v8
    s_nop 0
    v_max_f32 v{vM}, v{vM}, v8
    v_mov_b32 v8, v{vM}
    s_nop 1
    v_permlane32_swap_b32 v{vM}, v8
    s_nop 0
    v_max_f32 v{vM}, v{vM}, v8""")
    WT = 72
    AC = 76
    for kk in range(KK):
        a(f"    v_sub_f32 v{WT+kk}, v{ML+4*kk}, v{vM}")
    for kk in range(KK):
        a(f"    v_exp_f32 v{WT+kk}, v{WT+kk}")
    a("    s_nop 0")
    a(f"    v_mul_f32 v{vL}, v{WT}, v{ML+1}")
    for r in range(4):
        a(f"    v_mul_f32 v{AC+r}, v{WT}, v{OP+r}")
    for kk in range(1, KK):
        a(f"    v_fmac_f32 v{vL}, v{WT+kk}, v{ML+4*kk+1}")
        for r in range(4):
            a(f"    v_fmac_f32 v{AC+r}, v{WT+kk}, v{OP+4*kk+r}")
    OP = AC
    a(f"""    v_mov_b32 v8, v{vL}
    s_nop 1
    v_permlane32_swap_b32 v{OP}, v{OP+1}
    v_permlane32_swap_b32 v{OP+2}, v{OP+3}
    v_permlane32_swap_b32 v{vL}, v8
    s_nop 0
    v_add_f32 v{OP}, v{OP}, v{OP+1}
    v_add_f32 v{OP+2}, v{OP+2}, v{OP+3}
    v_add_f32 v{vL}, v{vL}, v8
    v_mov_b32 v8, v{vL}
    s_nop 1
    v_permlane16_swap_b32 v{OP}, v{OP+2}
    v_permlane16_swap_b32 v{vL}, v8
    s_nop 0
    v_add_f32 v{OP}, v{OP}, v{OP+2}
    v_add_f32 v{vL}, v{vL}, v8
    s_nop 0
    v_add_f32_dpp v{OP}, v{OP}, v{OP} row_ror:4 row_mask:0xf bank_mask:0xf
    v_add_f32_dpp v{vL}, v{vL}, v{vL} row_ror:4 row_mask:0xf bank_mask:0xf
    s_nop 0
    v_add_f32_dpp v{OP}, v{OP}, v{OP} row_ror:8 row_mask:0xf bank_mask:0xf
    v_add_f32_dpp v{vL}, v{vL}, v{vL} row_ror:8 row_mask:0xf bank_mask:0xf""")
    if slow:
        a(f"""    s_mov_b32 s{sTmp+1}, 0x{f32bits(TMASK + 256.0):08x}
    v_cmp_ge_f32 vcc, s{sTmp+1}, v{vM}
    s_cbranch_vccnz L_slow
L_fin:""")
    a(f"""    v_rcp_f32 v{vL}, v{vL}
    s_mov_b32 exec_lo, 0x000f000f
    s_mov_b32 exec_hi, 0x000f000f
    v_mul_f32 v{OP}, v{OP}, v{vL}
    v_cvt_pk_bf16_f32 v{OP}, v{OP}, v{OP}
    global_store_short v{vTmp}, v{OP}, s[20:21]
    s_mov_b64 exec, -1""")
    if stamps or diag:
        a("    s_waitcnt vmcnt(0)")
    stamp(7)
    if diag:
        ka, kb, mult = diag
        if ka == 9:
            a(f"""    v_readfirstlane_b32 s{sTmp+2}, v{vN}
    v_readfirstlane_b32 s{sTmp+3}, v{vN+1}
    s_nop 3
    s_and_b32 s{sTmp+2}, s{sTmp+2}, 0xfffff
    s_lshl_b32 s{sTmp+3}, s{sTmp+3}, 20
    s_or_b32 s{sTmp+2}, s{sTmp+2}, s{sTmp+3}
    s_waitcnt lgkmcnt(0)
    s_sub_i32 s{sTmp}, s{sST+2*kb}, s{sTmp+2}
    s_max_i32 s{sTmp}, s{sTmp}, 0""")
        else:
            a(f"""    s_waitcnt lgkmcnt(0)
    s_sub_u32 s{sTmp}, s{sST+2*kb}, s{sST+2*ka}""")
        a(f"""
    s_mul_i32 s{sTmp}, s{sTmp}, {mult}
    s_min_u32 s{sTmp}, s{sTmp}, 20000
    s_add_u32 s{sTmp}, s{sTmp}, s{sST+14}
L_spin:
    s_memrealtime s[{sTmp+2}:{sTmp+3}]
    s_waitcnt lgkmcnt(0)
    s_sub_u32 s{sTmp+1}, s{sTmp+2}, s{sTmp}
    s_cmp_lt_i32 s{sTmp+1}, 0
    s_cbranch_scc1 L_spin""")
    a("L_done:")
    stamp_out()
    a("""L_exit:
    s_endpgm""")
    if slow:
        X = 80
        a(f"""L_slow:
    s_cmp_ge_u32 s{sNblk}, 512
    s_cbranch_scc1 L_fin
    s_lshr_b32 s{sTmp+1}, s{sIn}, 4
    s_lshl_b32 s{sTmp+1}, s{sTmp+1}, 8
    s_and_b32 s{sTmp}, s{sIn}, 3
    s_lshl_b32 s{sTmp}, s{sTmp}, 6                   ; (k&3)*4*16 B
    s_add_u32 s{sTmp+1}, s{sTmp+1}, s{sTmp}
    s_bfe_u32 s{sTmp}, s{sIn}, 0x10002
    s_lshl3_add_u32 s{sTmp+1}, s{sTmp}, s{sTmp+1}     ; + ((k>>2)&1)*8 B
    v_bfe_u32 v{X}, v0, 2, 4
    v_lshlrev_b32 v{X}, 12, v{X}
    v_and_b32 v{X+1}, 3, v0
    v_lshlrev_b32 v{X+1}, 4, v{X+1}
    v_add3_u32 v{X}, v{X+1}, v{X}, s{sTmp+1}
    v_mov_b32 v{X+4}, 0
    v_mov_b32 v{X+5}, 0
    v_mov_b32 v{X+6}, 0
    v_mov_b32 v{X+7}, 0
    s_mov_b32 s14, 0x2000000
    s_mov_b32 s{sCnt}, s{sNblk}
L_slow_loop:
    s_lshl_b32 s{sTmp}, s{sCnt}, 2
    s_load_dword s{sTmp+2}, s[16:17], s{sTmp}
    s_waitcnt lgkmcnt(0)
    s_and_b32 s{sTmp+2}, s{sTmp+2}, 511
    s_lshl_b32 s{sTmp+2}, s{sTmp+2}, 16
    buffer_load_dwordx2 v[{X+2}:{X+3}], v{X}, s[12:15], s{sTmp+2} offen
    s_waitcnt vmcnt(0)
    v_lshlrev_b32 v{X+1}, 16, v{X+2}
    v_add_f32 v{X+4}, v{X+4}, v{X+1}
    v_and_b32 v{X+1}, 0xffff0000, v{X+2}
    v_add_f32 v{X+5}, v{X+5}, v{X+1}
    v_lshlrev_b32 v{X+1}, 16, v{X+3}
    v_add_f32 v{X+6}, v{X+6}, v{X+1}
    v_and_b32 v{X+1}, 0xffff0000, v{X+3}
    v_add_f32 v{X+7}, v{X+7}, v{X+1}
    s_add_u32 s{sCnt}, s{sCnt}, 1
    s_cmp_lt_u32 s{sCnt}, 512
    s_cbranch_scc1 L_slow_loop""")
        a(f"""    s_nop 1
    v_permlane32_swap_b32 v{X+4}, v{X+5}
    v_permlane32_swap_b32 v{X+6}, v{X+7}
    s_nop 1
    v_add_f32 v{X+4}, v{X+4}, v{X+5}
    v_add_f32 v{X+6}, v{X+6}, v{X+7}
    s_nop 1
    v_permlane16_swap_b32 v{X+4}, v{X+6}
    s_nop 1
    v_add_f32 v{X+4}, v{X+4}, v{X+6}
    s_nop 1
    v_add_f32_dpp v{X+4}, v{X+4}, v{X+4} row_ror:4 row_mask:0xf bank_mask:0xf
    s_nop 1
    v_add_f32_dpp v{X+4}, v{X+4}, v{X+4} row_ror:8 row_mask:0xf bank_mask:0xf
    v_sub_f32 v{X+1}, 0x{f32bits(TMASK):08x}, v{vM}
    v_exp_f32 v{X+1}, v{X+1}
    s_sub_u32 s{sTmp}, 512, s{sNblk}
    s_lshl_b32 s{sTmp}, s{sTmp}, 4
    v_cvt_f32_u32 v{X+2}, s{sTmp}
    v_fmac_f32 v{vL}, v{X+1}, v{X+2}
    v_fmac_f32 v{OP}, v{X+1}, v{X+4}
    s_branch L_fin""")
    a(descriptor(main, nv, 96))
    return a.text()


if __name__ == "__main__":
    ap = argparse.ArgumentParser()
    ap.add_argument("-o", default="/dev/stdout")
    ap.add_argument("--N", type=int, default=4)
    ap.add_argument("--nospec", action="store_true")
    ap.add_argument("--kflags", default="")
    ap.add_argument("--vflags", default="")
    ap.add_argument("--nomidbar", action="store_true")
    ap.add_argument("--stamps", action="store_true")
    ap.add_argument("--diag", default=None)
    ap.add_argument("--sleep", type=int, default=2)
    ap.add_argument("--thr", type=int, default=8)
    ap.add_argument("--xp", default="")
    ap.add_argument("--pw", type=int, default=0)
    ap.add_argument("--lf", default="sc1")
    ap.add_argument("--sf", default="sc1")
    ap.add_argument("--local", action="store_true")
    ap.add_argument("--ra", type=int, default=48)
    ap.add_argument("--pf", type=int, default=0)
    ap.add_argument("--earlyn", action="store_true")
    ap.add_argument("--lfa", default="sc1")
    ap.add_argument("--pre", default="")
    ap.add_argument("--pearly", action="store_true")
    ap.add_argument("--dummy", action="store_true")
    x = ap.parse_args()
    open(x.o, "w").write(gen(N=x.N, spec=not x.nospec, kflags=x.kflags, vflags=x.vflags,
                             midbar=not x.nomidbar, stamps=x.stamps, sleep=x.sleep, thr=x.thr, xp=x.xp, pw=x.pw, lf=x.lf, sf=x.sf, local=x.local, ra=x.ra, pf=x.pf, earlyn=x.earlyn, lfa=x.lfa, pre=x.pre, pearly=x.pearly, dummy=x.dummy,
                             diag=tuple(int(t) for t in x.diag.split(",")) if x.diag else None))
```

```python
import struct, sys, math, argparse
from gen import HEADER, NAME, f32bits, SCALE, TMASK, NEGINF, Asm, descriptor

NQ = 8
RS = 1152
BOFF = 0x100000
LDS_MAX, LDS_L, LDS_O = 0, 512, 1024
LDS_BYTES = LDS_O + 16 * 1024


def gen(kv="nt", stamps=False, diag=None, ra=48, pf=28, eq=True, xp=""):
    a = Asm()
    vKoff, vVoff, vG, vC, vLw, vM, vL = 1, 2, 3, 4, 5, 6, 7
    vQ, vAM, vO = 8, 12, 16
    vMV = 20
    vPub, vPm = 25, 26
    vLr, vOw, vTmp = 28, 29, 30
    vT, vK, vV = 32, 40, 72
    vML = 104
    vN = 106
    vS = 108
    nv = 112
    sW, sC, sIdx, sH256, sB, sCtx, sNblk = 3, 26, 27, 28, 29, 30, 31
    sBT = 32
    sG, sHead, sJ, sR = 36, 37, 38, 39
    sOff = 40
    sB1, sSh, sNR0, sOK = 48, 49, 50, 51
    sNR1 = 52
    sST = 56
    sR1 = 72
    sIn, sNc, sCnt = 73, 74, 76
    sTmp = 80
    sMask = 84
    main = f"{NAME}_kernel"
    timed = stamps or diag

    def stamp(k):
        if timed:
            a(f"    s_memrealtime s[{sST+2*k}:{sST+2*k+1}]")

    pf_code = "" if not pf else f"""    v_cmp_gt_u32 vcc, {pf}, v0
    s_getpc_b64 s[{sTmp+2}:{sTmp+3}]
    v_lshlrev_b32 v{vT+3}, 7, v0
    s_and_saveexec_b64 s[{sMask}:{sMask+1}], vcc
    s_cbranch_execz L_nopf
    global_load_dword v{vT+4}, v{vT+3}, s[{sTmp+2}:{sTmp+3}]
L_nopf:
    s_mov_b64 exec, -1"""
    a(HEADER.rstrip("\n"))
    a(f"; @launch grid=(256,1,1) block=(1024,1,1) lds={LDS_BYTES}")
    a(f""";
; Split-K decode attention, one launch.  Workgroup id -> group G = id % 8 (kv heads 2G, 2G+1), idx = id / 8.
.amdgcn_target "amdgcn-amd-amdhsa--gfx950"
.text
.globl {main}
.p2align 8
.type {main},@function
{main}:
    s_load_dwordx2 s[8:9], s[0:1], 8             ; K""")
    if timed:
        stamp(0)
    a(f"""    v_and_b32 v{vTmp}, 3, v0
    v_lshlrev_b32 v{vTmp}, 4, v{vTmp}
    v_and_b32 v{vG}, 48, v0
    v_lshl_or_b32 v{vTmp}, v{vG}, 2, v{vTmp}         ; 16-B chunk ((l>>4)*4 + (l&3))
    v_and_b32 v{vKoff}, 12, v0
    v_lshl_or_b32 v{vKoff}, v{vKoff}, 10, v{vTmp}     ; + token ((l>>2)&3)*4096
    v_and_b32 v{vT}, 64, v0
    v_lshl_or_b32 v{vT}, v{vT}, 2, v{vKoff}          ; + c*256
    v_lshrrev_b32 v{vT+1}, 7, v0
    v_lshl_or_b32 v{vT}, v{vT+1}, 21, v{vT}          ; + j*32 blocks
    s_and_b32 s{sG}, s2, 7
    s_lshr_b32 s{sIdx}, s2, 3
    s_lshl_b32 s{sOff}, s{sIdx}, 7
    s_add_u32 s{sOff}, s{sOff}, s{sG}
    s_lshl_b32 s{sOff}, s{sOff}, 9                   ; idx*65536 + 2G*256
    s_lshl_b32 s10, 1, 25
    s_lshl_b32 s11, 1, 17
    s_movk_i32 s{sTmp}, 0x4000
    s_waitcnt lgkmcnt(0)
    buffer_load_dwordx4 v[{vK}:{vK+3}], v{vT}, s[8:11], s{sOff} offen {kv}
    s_add_u32 s{sOff+1}, s{sOff}, s{sTmp}
    buffer_load_dwordx4 v[{vK+4}:{vK+7}], v{vT}, s[8:11], s{sOff+1} offen {kv}
    s_add_u32 s{sOff+2}, s{sOff+1}, s{sTmp}
    buffer_load_dwordx4 v[{vK+8}:{vK+11}], v{vT}, s[8:11], s{sOff+2} offen {kv}
    s_add_u32 s{sOff+3}, s{sOff+2}, s{sTmp}
    buffer_load_dwordx4 v[{vK+12}:{vK+15}], v{vT}, s[8:11], s{sOff+3} offen {kv}
    s_cmpk_ge_u32 s2, 0x100
    s_cbranch_scc1 L_exit
{pf_code}
    s_load_dwordx4 s[16:19], s[0:1], 24
    s_load_dwordx2 s[4:5], s[0:1], 0             ; q
    s_load_dwordx2 s[12:13], s[0:1], 16          ; V
    s_load_dwordx4 s[20:23], s[0:1], 40
    s_load_dwordx2 s[24:25], s[0:1], 56          ; ws
    v_readfirstlane_b32 s{sW}, v0""")
    stamp(1)
    if stamps:
        for k in range(2, 8):
            a(f"    s_mov_b32 s{sST+2*k}, 0")
        a(f"    s_mov_b32 s{sCnt}, 0")
    a(f"""    v_and_b32 v{vVoff}, 8, v0
    v_lshl_or_b32 v{vTmp}, v{vVoff}, 5, v{vTmp}        ; q: + h*256
    v_and_b32 v{vVoff}, 15, v0
    v_lshlrev_b32 v{vVoff}, 4, v{vVoff}
    v_lshl_or_b32 v{vVoff}, v{vG}, 8, v{vVoff}         ; V: (l>>4)*4096 + (l&15)*16
    v_lshrrev_b32 v{vG}, 4, v{vG}                     ; g = l>>4
    s_lshr_b32 s{sW}, s{sW}, 6
    s_and_b32 s{sC}, s{sW}, 1
    s_lshr_b32 s{sJ}, s{sW}, 1
    s_lshl1_add_u32 s{sHead}, s{sG}, s{sC}
    s_lshl_b32 s{sH256}, s{sHead}, 8
    s_lshl_b32 s{sB}, s{sJ}, 5
    s_add_u32 s{sB1}, s{sB}, 256
    s_add_u32 s{sB}, s{sB}, s{sIdx}                  ; b0 = j*32 + idx
    s_lshl4_add_u32 s{sR}, s{sC}, s{sIdx}
    s_and_b32 s{sR}, s{sR}, 31                       ; r = (idx + 16c) % 32
    s_lshl_b32 s{sTmp}, s{sB}, 2
    s_add_u32 s{sTmp+1}, s{sB1}, s{sR}
    s_lshl_b32 s{sTmp+1}, s{sTmp+1}, 2
    s_lshr_b32 s{sTmp+2}, s{sR}, 1
    s_add_u32 s{sTmp+2}, s{sTmp+2}, s{sB1}
    s_lshl_b32 s{sTmp+2}, s{sTmp+2}, 2
    s_lshr_b32 s{sTmp+3}, s{sR}, 2
    s_add_u32 s{sTmp+3}, s{sTmp+3}, s{sB1}
    s_lshl_b32 s{sTmp+3}, s{sTmp+3}, 2
    s_lshl_b32 s{sR1}, s{sHead}, 9
    v_add_u32 v{vTmp}, s{sR1}, v{vTmp}
    s_mov_b32 s15, 0x20000
    s_waitcnt lgkmcnt(0)
    s_load_dword s{sCtx}, s[18:19], 0
    s_load_dword s{sBT}, s[16:17], s{sTmp}
    s_load_dword s{sBT+1}, s[16:17], s{sTmp+1}
    s_load_dword s{sBT+2}, s[16:17], s{sTmp+2}
    s_load_dword s{sBT+3}, s[16:17], s{sTmp+3}
    global_load_dwordx4 v[{vQ}:{vQ+3}], v{vTmp}, s[4:5]""")
    a(f"""    s_or_b32 s{sTmp+1}, s2, s{sW}
    s_cmp_lg_u32 s{sTmp+1}, 0
    s_cbranch_scc1 L_nolead
    s_memrealtime s[{sTmp+2}:{sTmp+3}]
    v_mov_b32 v{vT+2}, 0
    s_waitcnt lgkmcnt(0)
    s_lshr_b64 s[{sNc}:{sNc+1}], s[{sTmp+2}:{sTmp+3}], 20
    s_and_b32 s{sTmp+2}, s{sTmp+2}, 0xfffff
    s_and_b32 s{sNc}, s{sNc}, 0xfffff
    s_bitset1_b32 s{sTmp+2}, 31
    s_bitset1_b32 s{sNc}, 31
    v_mov_b32 v{vT}, s{sTmp+2}
    v_mov_b32 v{vT+1}, s{sNc}
    s_mov_b64 exec, 1
    global_store_dwordx2 v{vT+2}, v[{vT}:{vT+1}], s[22:23] sc1
    s_mov_b64 exec, -1
L_nolead:
    s_mov_b32 s{sTmp+2}, 0x{NEGINF:08x}
    s_mov_b32 s{sTmp+3}, 0x{f32bits(TMASK):08x}
    s_waitcnt lgkmcnt(0)
    s_max_i32 s{sCtx}, s{sCtx}, 0
    s_min_i32 s{sCtx}, s{sCtx}, 8192
    s_add_u32 s{sNblk}, s{sCtx}, 15
    s_lshr_b32 s{sNblk}, s{sNblk}, 4
    s_and_b32 s{sBT}, s{sBT}, 511
    s_cmp_lt_u32 s{sB}, s{sNblk}
    s_cselect_b32 s{sNR0}, s10, 0
    s_cselect_b32 s{sTmp}, s{sTmp+3}, s{sTmp+2}
    v_mov_b32 v{vMV}, s{sTmp}
    s_mov_b32 s{sSh}, 0""")
    if eq:
        a(f"""    s_cmp_lg_u32 s{sJ}, 7
    s_cbranch_scc1 L_whole
    s_cmpk_le_u32 s{sNblk}, 496
    s_cselect_b32 s{sSh}, 1, 0
    s_cselect_b32 s{sBT+1}, s{sBT+2}, s{sBT+1}
    s_cmpk_le_u32 s{sNblk}, 488
    s_cselect_b32 s{sSh}, 2, s{sSh}
    s_cselect_b32 s{sBT+1}, s{sBT+3}, s{sBT+1}
L_whole:""")
    a(f"""    s_and_b32 s{sBT+1}, s{sBT+1}, 511
    s_lshr_b32 s{sTmp}, s{sR}, s{sSh}
    s_add_u32 s{sB1}, s{sB1}, s{sTmp}
    s_lshl_b32 s{sTmp}, s{sTmp}, s{sSh}
    s_sub_u32 s{sTmp}, s{sR}, s{sTmp}
    s_lshr_b32 s{sOK}, 4, s{sSh}
    s_mul_i32 s{sTmp}, s{sTmp}, s{sOK}
    s_cmp_lt_u32 s{sB1}, s{sNblk}
    s_cselect_b32 s{sOK}, s{sOK}, 0
    s_lshl_b32 s{sR1}, s{sB1}, 2
    s_add_u32 s{sR1}, s{sR1}, s{sTmp}
    s_lshl_b32 s{sR1}, s{sR1}, 2
    s_sub_i32 s{sR1}, s{sCtx}, s{sR1}
    s_lshl_b32 s{sOff+4}, s{sBT+1}, 2
    s_add_u32 s{sOff+4}, s{sOff+4}, s{sTmp}
    s_lshl_b32 s{sOff+4}, s{sOff+4}, 14
    s_add_u32 s{sOff+4}, s{sOff+4}, s{sH256}
    s_add_u32 s{sOff+5}, s{sOff+4}, 0x4000
    s_add_u32 s{sOff+6}, s{sOff+4}, 0x8000
    s_add_u32 s{sOff+7}, s{sOff+4}, 0xc000
    s_lshl_b32 s{sOff}, s{sBT}, 16
    s_add_u32 s{sOff}, s{sOff}, s{sH256}
    s_add_u32 s{sOff+1}, s{sOff}, 0x4000
    s_add_u32 s{sOff+2}, s{sOff}, 0x8000
    s_add_u32 s{sOff+3}, s{sOff}, 0xc000
    s_cmp_eq_u32 s{sBT}, s{sB}
    s_cbranch_scc1 L_spec_ok
    s_waitcnt vmcnt(0)""")
    for i in range(4):
        a(f"    buffer_load_dwordx4 v[{vK+4*i}:{vK+4*i+3}], v{vKoff}, s[8:11], s{sOff+i} offen {kv}")
    a("L_spec_ok:")
    for i in range(4):
        q = 4 + i
        a(f"""    s_cmp_gt_u32 s{sOK}, {i}
    s_cselect_b32 s{sNR1+i}, 0x2000000, 0
    s_cselect_b32 s{sTmp}, s{sTmp+3}, s{sTmp+2}
    s_mov_b32 s10, s{sNR1+i}
    v_mov_b32 v{vMV+1+i}, s{sTmp}
    buffer_load_dwordx4 v[{vK+4*q}:{vK+4*q+3}], v{vKoff}, s[8:11], s{sOff+q} offen {kv}""")
    a(f"""    v_mov_b32 v{vT+5}, 0
    s_mov_b32 s14, s{sNR0}
    s_barrier
    s_cmp_gt_u32 s{sW}, 2
    s_cbranch_scc1 L_notag
    global_load_dwordx2 v[{vN}:{vN+1}], v{vT+5}, s[22:23] sc1
L_notag:""")
    for q in range(NQ):
        if q >= 4:
            a(f"    s_mov_b32 s14, s{sNR1+q-4}")
        a(f"    buffer_load_dwordx4 v[{vV+4*q}:{vV+4*q+3}], v{vVoff}, s[12:15], s{sOff+q} offen {kv}")
    a(f"""    s_lshl_b32 s{sTmp}, s{sHead}, 5
    s_add_u32 s{sTmp}, s{sTmp}, s{sIdx}
    s_mul_i32 s{sTmp}, s{sTmp}, {RS}
    v_and_b32 v{vPub}, 63, v0
    v_lshl_add_u32 v{vPub}, v{vPub}, 4, s{sTmp}
    v_and_b32 v{vPm}, 8, v0
    v_lshl_add_u32 v{vPm}, v{vPm}, 1, s{sTmp}
    s_cmp_ge_u32 s{sW}, 2
    s_cbranch_scc1 L_nodummy
    v_mov_b32 v{vO}, 0
    v_mov_b32 v{vO+1}, 0
    v_mov_b32 v{vO+2}, 0
    v_mov_b32 v{vO+3}, 0
    global_store_dwordx4 v{vPub}, v[{vO}:{vO+3}], s[24:25]
    s_mov_b64 exec, 0xff
    global_store_dwordx4 v{vPub}, v[{vO}:{vO+3}], s[24:25] offset:1024
    s_mov_b64 exec, -1
L_nodummy:""")
    stamp(2)
    a(f"""    v_mov_b32 v{vC}, 0x{f32bits(SCALE):08x}
    v_and_b32 v{vTmp}, 1, v0
    v_lshlrev_b32 v{vTmp}, 4, v{vTmp}
    s_mov_b32 s{sTmp}, 0xffff
    v_lshlrev_b32_e64 v{vTmp}, v{vTmp}, s{sTmp}        ; 0xffff << 16*(l&1)
    v_bfe_u32 v{vTmp+1}, v0, 1, 2
    v_cmp_eq_u32_e64 s[{sMask}:{sMask+1}], 0, v{vTmp+1}
    v_cmp_eq_u32_e64 s[{sMask+2}:{sMask+3}], 1, v{vTmp+1}
    v_cmp_eq_u32_e64 s[{sMask+4}:{sMask+5}], 2, v{vTmp+1}
    v_cmp_eq_u32_e64 s[{sMask+6}:{sMask+7}], 3, v{vTmp+1}
    v_bfe_u32 v{vLr}, v0, 3, 1
    v_lshlrev_b32 v{vLr}, 7, v{vLr}                   ; h*128
    v_cndmask_b32_e64 v{vAM}, 0, v{vTmp}, s[{sMask}:{sMask+1}]
    v_cndmask_b32_e64 v{vAM+1}, 0, v{vTmp}, s[{sMask+2}:{sMask+3}]
    v_cndmask_b32_e64 v{vAM+2}, 0, v{vTmp}, s[{sMask+4}:{sMask+5}]
    v_cndmask_b32_e64 v{vAM+3}, 0, v{vTmp}, s[{sMask+6}:{sMask+7}]
    s_lshl_b32 s{sTmp}, s{sC}, 8
    v_add_u32 v{vLr}, s{sTmp}, v{vLr}                ; + c*256
    s_lshl_b32 s{sTmp}, s{sJ}, 4
    v_lshl_add_u32 v{vLw}, v{vG}, 2, v{vLr}
    v_add_u32 v{vLw}, s{sTmp}, v{vLw}                ; + (j*4+g)*4
    v_and_b32 v{vTmp}, 7, v0
    v_lshl_add_u32 v{vLr}, v{vTmp}, 4, v{vLr}         ; + e*16
    v_lshlrev_b32 v{vOw}, 4, v0                      ; w*1024 + l*16
    s_movk_i32 s{sNc}, 0x3ff
    s_lshl_b32 s{sTmp}, s{sB}, 4
    s_sub_i32 s{sTmp}, s{sCtx}, s{sTmp}""")
    for u in range(2):
        a(f"    s_waitcnt vmcnt({12 if u == 0 else 8})")
        if u == 0:
            stamp(3)
        for i in range(4):
            q = 4 * u + i
            a(f"    v_mfma_f32_16x16x32_bf16 v[{vK+4*q}:{vK+4*q+3}], v[{vK+4*q}:{vK+4*q+3}], v[{vQ}:{vQ+3}], 0")
        sr = sTmp if u == 0 else sR1
        for i in range(4):
            if u == 1:
                a(f"    s_cmp_gt_u32 s{sOK}, {i}")
                a(f"    s_cselect_b32 s{sTmp}, s{sr}, 0")
                a(f"    v_cmp_gt_i32_e64 s[{sMask+2*i}:{sMask+2*i+1}], s{sTmp}, v{vG}")
            else:
                a(f"    v_cmp_gt_i32_e64 s[{sMask+2*i}:{sMask+2*i+1}], s{sr}, v{vG}")
            if i < 3:
                a(f"    s_sub_i32 s{sr}, s{sr}, 4")
        a("    s_nop 1" if u == 0 else "    s_nop 0")
        for step in range(4):
            for i in range(4):
                q = 4 * u + i
                op = "v_mul_f32_dpp" if step == 0 else "v_fmac_f32_dpp"
                a(f"    {op} v{vT+q}, v{vK+4*q+step}, v{vC} quad_perm:[{step},{step},{step},{step}] row_mask:0xf bank_mask:0xf")
        for i in range(4):
            q = 4 * u + i
            mv = vMV if u == 0 else vMV + 1 + i
            a(f"    v_cndmask_b32_e64 v{vT+q}, v{mv}, v{vT+q}, s[{sMask+2*i}:{sMask+2*i+1}]")
    a(f"    v_max3_f32 v{vM}, v{vT}, v{vT+1}, s{sTmp+3}")
    for q in range(2, NQ, 2):
        a(f"    v_max3_f32 v{vM}, v{vT+q}, v{vT+q+1}, v{vM}")
    a(f"""    ds_write_b32 v{vLw}, v{vM} offset:{LDS_MAX}
    v_and_b32 v{vTmp}, v{vN}, v{vN+1}
    v_lshrrev_b32 v{vS}, 10, v{vN}
    v_readfirstlane_b32 s{sOK}, v{vTmp}
    v_lshrrev_b32 v{vS+1}, 10, v{vN+1}
    s_waitcnt lgkmcnt(0)
    s_barrier""")
    stamp(4)
    a(f"""    ds_read_b128 v[{vK}:{vK+3}], v{vLr} offset:{LDS_MAX}
    s_waitcnt lgkmcnt(0)
    v_max3_f32 v{vM}, v{vK}, v{vK+1}, v{vK+2}
    v_max_f32 v{vM}, v{vM}, v{vK+3}
    s_nop 1
    v_max_f32_dpp v{vM}, v{vM}, v{vM} quad_perm:[1,0,3,2] row_mask:0xf bank_mask:0xf
    s_nop 1
    v_max_f32_dpp v{vM}, v{vM}, v{vM} quad_perm:[2,3,0,1] row_mask:0xf bank_mask:0xf
    s_nop 1
    v_max_f32_dpp v{vM}, v{vM}, v{vM} row_half_mirror row_mask:0xf bank_mask:0xf""")
    for q in range(NQ):
        a(f"    v_sub_f32 v{vT+q}, v{vT+q}, v{vM}")
    for q in range(NQ):
        a(f"    v_exp_f32 v{vT+q}, v{vT+q}")
    a(f"    v_mov_b32 v{vML}, v{vM}")
    a(f"    v_add_f32 v{vL}, v{vT}, v{vT+1}")
    for q in range(2, NQ):
        a(f"    v_add_f32 v{vL}, v{vL}, v{vT+q}")
    a(f"    ds_write_b32 v{vLw}, v{vL} offset:{LDS_L}")
    for q in range(NQ):
        a(f"    v_cvt_pk_bf16_f32 v{vT+q}, v{vT+q}, v{vT+q}")
    for q in range(NQ):
        for r in range(4):
            a(f"    v_and_b32 v{vK+4*q+r}, v{vAM+r}, v{vT+q}")
    a("    s_nop 0")
    for q in range(NQ):
        a(f"    s_waitcnt vmcnt({NQ-1-q})")
        c = "0" if q == 0 else f"v[{vO}:{vO+3}]"
        a(f"    v_mfma_f32_16x16x32_bf16 v[{vO}:{vO+3}], v[{vK+4*q}:{vK+4*q+3}], v[{vV+4*q}:{vV+4*q+3}], {c}")
    stamp(5)
    a(f"""    s_nop 7
    ds_write_b128 v{vOw}, v[{vO}:{vO+3}] offset:{LDS_O}
    s_waitcnt lgkmcnt(0)
    s_barrier
    s_cmp_gt_u32 s{sW}, 2
    s_cbranch_scc1 L_done
    s_cmp_lt_i32 s{sOK}, 0
    s_cbranch_scc0 L_waittag
L_tagok:
    s_cmp_eq_u32 s{sW}, 2
    s_cbranch_scc1 L_consume
    ds_read_b128 v[{vT}:{vT+3}], v{vLr} offset:{LDS_L}""")
    for j in range(1, 8):
        a(f"    ds_read_b128 v[{vK+4*j}:{vK+4*j+3}], v{vOw} offset:{LDS_O+2048*j}")
    a(f"""    s_waitcnt lgkmcnt(7)
    v_add_f32 v{vL}, v{vT}, v{vT+1}
    v_add_f32 v{vT+2}, v{vT+2}, v{vT+3}
    v_add_f32 v{vL}, v{vL}, v{vT+2}
    s_waitcnt lgkmcnt(6)
    v_pk_add_f32 v[{vO}:{vO+1}], v[{vO}:{vO+1}], v[{vK+4}:{vK+5}]
    v_pk_add_f32 v[{vO+2}:{vO+3}], v[{vO+2}:{vO+3}], v[{vK+6}:{vK+7}]
    v_add_f32_dpp v{vL}, v{vL}, v{vL} quad_perm:[1,0,3,2] row_mask:0xf bank_mask:0xf
    s_waitcnt lgkmcnt(5)
    v_pk_add_f32 v[{vO}:{vO+1}], v[{vO}:{vO+1}], v[{vK+8}:{vK+9}]
    v_pk_add_f32 v[{vO+2}:{vO+3}], v[{vO+2}:{vO+3}], v[{vK+10}:{vK+11}]
    v_add_f32_dpp v{vL}, v{vL}, v{vL} quad_perm:[2,3,0,1] row_mask:0xf bank_mask:0xf
    s_waitcnt lgkmcnt(4)
    v_pk_add_f32 v[{vO}:{vO+1}], v[{vO}:{vO+1}], v[{vK+12}:{vK+13}]
    v_pk_add_f32 v[{vO+2}:{vO+3}], v[{vO+2}:{vO+3}], v[{vK+14}:{vK+15}]
    v_add_f32_dpp v{vML+1}, v{vL}, v{vL} row_half_mirror row_mask:0xf bank_mask:0xf""")
    for j in range(4, 8):
        a(f"    s_waitcnt lgkmcnt({7-j})")
        a(f"    v_pk_add_f32 v[{vO}:{vO+1}], v[{vO}:{vO+1}], v[{vK+4*j}:{vK+4*j+1}]")
        a(f"    v_pk_add_f32 v[{vO+2}:{vO+3}], v[{vO+2}:{vO+3}], v[{vK+4*j+2}:{vK+4*j+3}]")
    a(f"""    v_bfi_b32 v{vO}, s{sNc}, v{vN}, v{vO}
    v_bfi_b32 v{vO+1}, s{sNc}, v{vS}, v{vO+1}
    v_bfi_b32 v{vO+2}, s{sNc}, v{vN+1}, v{vO+2}
    v_bfi_b32 v{vO+3}, s{sNc}, v{vS+1}, v{vO+3}
    global_store_dwordx4 v{vPub}, v[{vO}:{vO+3}], s[24:25]
    s_mov_b64 exec, 0x101
    global_store_dwordx4 v{vPm}, v[{vML}:{vML+3}], s[24:25] offset:1024
    s_mov_b64 exec, -1""")
    if stamps:
        stamp(3)
    a(f"""    s_add_u32 s{sTmp}, s24, {BOFF}
    s_addc_u32 s{sTmp+1}, s25, 0
    global_store_dwordx4 v{vPub}, v[{vO}:{vO+3}], s[{sTmp}:{sTmp+1}] sc1
    s_mov_b64 exec, 0x101
    global_store_dwordx4 v{vPm}, v[{vML}:{vML+3}], s[{sTmp}:{sTmp+1}] offset:1024 sc1
    s_mov_b64 exec, -1""")
    stamp(6)
    a(f"""    s_branch L_done
L_waittag:                                           ; rare: the leader had not published yet when the tag was read
    v_mov_b32 v{vTmp+1}, 0
    s_mov_b32 s{sCnt}, 0
L_waittag_loop:
    s_sleep 8
    global_load_dwordx2 v[{vN}:{vN+1}], v{vTmp+1}, s[22:23] sc1
    s_add_u32 s{sCnt}, s{sCnt}, 1
    s_waitcnt vmcnt(0)
    v_and_b32 v{vTmp}, v{vN}, v{vN+1}
    v_lshrrev_b32 v{vS}, 10, v{vN}
    v_readfirstlane_b32 s{sOK}, v{vTmp}
    v_lshrrev_b32 v{vS+1}, 10, v{vN+1}
    s_cmp_gt_u32 s{sCnt}, 20000
    s_cbranch_scc1 L_tagok
    s_cmp_lt_i32 s{sOK}, 0
    s_cbranch_scc0 L_waittag_loop
    s_branch L_tagok""")
    OP, ML, WT, AC = 40, 48, 56, 60
    vA1, vA2 = 1, 2
    sMs, sRo = 40, 44
    a(f"""L_consume:
    s_lshl_b32 s{sIn}, s{sG}, 5
    s_add_u32 s{sIn}, s{sIn}, s{sIdx}
    s_movk_i32 s{sTmp}, {RS}
    v_bfe_u32 v{vA2}, v0, 2, 4
    v_mul_u32_u24 v{vA2}, s{sTmp}, v{vA2}             ; p*RS,  p = l>>2
    v_and_b32 v{vTmp}, 3, v0
    v_lshlrev_b32 v{vTmp}, 4, v{vTmp}                 ; qd*16
    s_and_b32 s{sTmp+1}, s{sIn}, 15
    s_lshl_b32 s{sTmp+2}, s{sTmp+1}, 6
    v_add3_u32 v{vA1}, v{vA2}, v{vTmp}, s{sTmp+2}       ; + k*64 + qd*16
    s_lshr_b32 s{sTmp+2}, s{sTmp+1}, 3
    s_lshl_b32 s{sTmp+2}, s{sTmp+2}, 4
    v_add_u32 v{vA2}, s{sTmp+2}, v{vA2}               ; + h*16 (+1024)
    s_lshr_b32 s{sRo}, s{sIn}, 4
    s_mul_i32 s{sRo}, s{sRo}, {32*RS}
    s_add_u32 s{sRo+1}, s{sRo}, {16*RS}
    s_mov_b32 s8, s24
    s_mov_b32 s9, s25
    s_mov_b32 s10, {BOFF + 512*RS}
    s_mov_b32 s{sCnt}, 0
    s_mov_b64 s[{sMs}:{sMs+1}], -1
    s_mov_b64 s[{sMs+2}:{sMs+3}], -1
    s_branch L_pollA""")

    def poll_loads(tag, fl):
        for kk in range(2):
            a(f"""    s_mov_b64 exec, s[{sMs+2*kk}:{sMs+2*kk+1}]
    s_cbranch_execz L_skip{tag}{kk}
    buffer_load_dwordx4 v[{OP+4*kk}:{OP+4*kk+3}], v{vA1}, s[8:11], s{sRo+kk} offen {fl}
    buffer_load_dwordx4 v[{ML+4*kk}:{ML+4*kk+3}], v{vA2}, s[8:11], s{sRo+kk} offen offset:1024 {fl}
L_skip{tag}{kk}:""")

    a("L_pollB:\n    s_sleep 4")
    poll_loads("b", "sc1")
    a("    s_branch L_issued\nL_pollA:")
    poll_loads("a", "nt")
    a(f"""L_issued:
    s_mov_b64 exec, -1
    s_add_u32 s{sCnt}, s{sCnt}, 1
    s_cmp_gt_u32 s{sCnt}, 20000
    s_cbranch_scc1 L_got
    s_waitcnt vmcnt(0)""")
    for kk in range(2):
        o, m, t = OP + 4 * kk, ML + 4 * kk, 8 + 6 * kk
        a(f"""    v_xor_b32 v{t}, v{o}, v{vN}
    v_xor_b32 v{t+1}, v{o+1}, v{vS}
    v_xor_b32 v{t+2}, v{o+2}, v{vN+1}
    v_xor_b32 v{t+3}, v{o+3}, v{vS+1}
    v_xor_b32 v{t+4}, v{m+2}, v{vN}
    v_xor_b32 v{t+5}, v{m+3}, v{vN+1}""")
    for kk in range(2):
        t = 8 + 6 * kk
        a(f"    v_or3_b32 v{t}, v{t}, v{t+1}, v{t+2}")
    for kk in range(2):
        t = 8 + 6 * kk
        a(f"    v_or_b32 v{t}, v{t}, v{t+3}")
        a(f"    v_or_b32 v{t+4}, v{t+4}, v{t+5}")
    for kk in range(2):
        t = 8 + 6 * kk
        a(f"    v_and_or_b32 v{t}, v{t}, s{sNc}, v{t+4}")
    for kk in range(2):
        t = 8 + 6 * kk
        a(f"    v_cmp_ne_u32_e64 s[{sMs+2*kk}:{sMs+2*kk+1}], 0, v{t}")
    a(f"""    v_max_f32 v{vM}, v{ML}, v{ML+4}
    s_or_b64 s[{sTmp}:{sTmp+1}], s[{sMs}:{sMs+1}], s[{sMs+2}:{sMs+3}]
    s_cbranch_scc0 L_got
    s_cmp_lt_u32 s{sCnt}, {ra}
    s_cbranch_scc1 L_pollA
    s_cmp_lg_u32 s{sCnt}, {ra}
    s_cbranch_scc1 L_pollB
    s_add_u32 s{sRo}, s{sRo}, {BOFF}
    s_add_u32 s{sRo+1}, s{sRo+1}, {BOFF}
    s_branch L_pollB
L_got:""")
    stamp(6)
    a(f"""    ; output byte address: kvhead*512 + (k>>3)*256 + ((4k+qd)&15)*16 + ((k>>2)&1)*8 + component*2
    v_max_f32_dpp v{vM}, v{vM}, v{vM} row_ror:4 row_mask:0xf bank_mask:0xf
    s_lshr_b32 s{sTmp+2}, s{sIn}, 3
    s_lshl_b32 s{sTmp+2}, s{sTmp+2}, 8
    v_max_f32_dpp v{vM}, v{vM}, v{vM} row_ror:8 row_mask:0xf bank_mask:0xf
    s_and_b32 s{sTmp+3}, s{sIn}, 3
    v_mov_b32 v8, v{vM}
    s_lshl_b32 s{sTmp+3}, s{sTmp+3}, 6
    s_add_u32 s{sTmp+2}, s{sTmp+2}, s{sTmp+3}
    v_permlane16_swap_b32 v{vM}, v8
    s_bfe_u32 s{sTmp+3}, s{sIn}, 0x10002
    v_max_f32 v{vM}, v{vM}, v8
    v_mov_b32 v8, v{vM}
    s_lshl3_add_u32 s{sTmp+2}, s{sTmp+3}, s{sTmp+2}
    v_add_u32 v{vTmp}, s{sTmp+2}, v{vTmp}
    v_permlane32_swap_b32 v{vM}, v8
    v_bfe_u32 v9, v0, 4, 1
    v_max_f32 v{vM}, v{vM}, v8
    v_sub_f32 v{WT}, v{ML}, v{vM}
    v_sub_f32 v{WT+1}, v{ML+4}, v{vM}
    v_exp_f32 v{WT}, v{WT}
    v_exp_f32 v{WT+1}, v{WT+1}
    v_lshl_add_u32 v{vTmp}, v9, 2, v{vTmp}
    v_bfe_u32 v9, v0, 5, 1
    v_mul_f32 v{vL}, v{WT}, v{ML+1}
    v_mul_f32 v{AC}, v{WT}, v{OP}
    v_mul_f32 v{AC+1}, v{WT}, v{OP+1}
    v_mul_f32 v{AC+2}, v{WT}, v{OP+2}
    v_mul_f32 v{AC+3}, v{WT}, v{OP+3}
    v_fmac_f32 v{vL}, v{WT+1}, v{ML+5}
    v_fmac_f32 v{AC}, v{WT+1}, v{OP+4}
    v_fmac_f32 v{AC+1}, v{WT+1}, v{OP+5}
    v_fmac_f32 v{AC+2}, v{WT+1}, v{OP+6}
    v_fmac_f32 v{AC+3}, v{WT+1}, v{OP+7}
    v_mov_b32 v8, v{vL}
    v_lshl_add_u32 v{vTmp}, v9, 1, v{vTmp}
    v_permlane32_swap_b32 v{AC}, v{AC+1}
    v_permlane32_swap_b32 v{AC+2}, v{AC+3}
    v_permlane32_swap_b32 v{vL}, v8
    v_add_f32 v{AC}, v{AC}, v{AC+1}
    v_add_f32 v{AC+2}, v{AC+2}, v{AC+3}
    v_add_f32 v{vL}, v{vL}, v8
    v_mov_b32 v8, v{vL}
    s_mov_b32 s{sTmp+1}, 0x{f32bits(TMASK + 256.0):08x}
    v_permlane16_swap_b32 v{AC}, v{AC+2}
    v_cmp_ge_f32 vcc, s{sTmp+1}, v{vM}
    v_permlane16_swap_b32 v{vL}, v8
    v_add_f32 v{AC}, v{AC}, v{AC+2}
    v_add_f32 v{vL}, v{vL}, v8
    s_nop 0
    v_add_f32_dpp v{AC}, v{AC}, v{AC} row_ror:4 row_mask:0xf bank_mask:0xf
    v_add_f32_dpp v{vL}, v{vL}, v{vL} row_ror:4 row_mask:0xf bank_mask:0xf
    s_nop 0
    v_add_f32_dpp v{AC}, v{AC}, v{AC} row_ror:8 row_mask:0xf bank_mask:0xf
    v_add_f32_dpp v{vL}, v{vL}, v{vL} row_ror:8 row_mask:0xf bank_mask:0xf
    s_cbranch_vccnz L_slow
L_fin:
    v_rcp_f32 v{vL}, v{vL}
    s_mov_b32 exec_lo, 0x000f000f
    s_mov_b32 exec_hi, 0x000f000f
    v_mul_f32 v{AC}, v{AC}, v{vL}
    v_cvt_pk_bf16_f32 v{AC}, v{AC}, v{AC}
    global_store_short v{vTmp}, v{AC}, s[20:21]""")
    if timed:
        a("    s_mov_b64 exec, -1\n    s_waitcnt vmcnt(0)")
    stamp(7)
    if diag:
        ka, kb, mult = diag
        a(f"""    s_waitcnt lgkmcnt(0)
    s_sub_u32 s{sTmp}, s{sST+2*kb}, s{sST+2*ka}
    s_mul_i32 s{sTmp}, s{sTmp}, {mult}
    s_min_u32 s{sTmp}, s{sTmp}, 20000
    s_add_u32 s{sTmp}, s{sTmp}, s{sST+14}
L_spin:
    s_memrealtime s[{sTmp+2}:{sTmp+3}]
    s_waitcnt lgkmcnt(0)
    s_sub_u32 s{sTmp+1}, s{sTmp+2}, s{sTmp}
    s_cmp_lt_i32 s{sTmp+1}, 0
    s_cbranch_scc1 L_spin""")
    a("L_done:")
    if stamps:
        a(f"    s_waitcnt lgkmcnt(0) vmcnt(0)")
        a(f"    s_getreg_b32 s{sST+1}, hwreg(HW_REG_XCC_ID)")
        for k in range(8):
            a(f"    v_mov_b32 v{40+k}, s{sST+2*k}")
        a(f"    v_mov_b32 v48, s{sST+1}")
        a(f"    v_mov_b32 v49, s{sCnt}")
        a(f"""    s_lshl_b32 s{sTmp}, s2, 10
    s_lshl_b32 s{sTmp+1}, s{sW}, 6
    s_add_u32 s{sTmp}, s{sTmp}, s{sTmp+1}
    s_add_u32 s{sTmp}, s{sTmp}, 0x400000
    v_mov_b32 v50, s{sTmp}
    s_mov_b64 exec, 1
    global_store_dwordx4 v50, v[40:43], s[24:25]
    global_store_dwordx4 v50, v[44:47], s[24:25] offset:16
    global_store_dwordx2 v50, v[48:49], s[24:25] offset:32""")
    X = 64
    a(f"""L_exit:
    s_endpgm
L_slow:
    s_cmp_ge_u32 s{sNblk}, 512
    s_cbranch_scc1 L_fin
    s_lshr_b32 s{sTmp+1}, s{sIn}, 4
    s_lshl_b32 s{sTmp+1}, s{sTmp+1}, 8
    s_and_b32 s{sTmp}, s{sIn}, 3
    s_lshl_b32 s{sTmp}, s{sTmp}, 6
    s_add_u32 s{sTmp+1}, s{sTmp+1}, s{sTmp}
    s_bfe_u32 s{sTmp}, s{sIn}, 0x10002
    s_lshl3_add_u32 s{sTmp+1}, s{sTmp}, s{sTmp+1}
    v_bfe_u32 v{X}, v0, 2, 4
    v_lshlrev_b32 v{X}, 12, v{X}
    v_and_b32 v{X+1}, 3, v0
    v_lshlrev_b32 v{X+1}, 4, v{X+1}
    v_add3_u32 v{X}, v{X+1}, v{X}, s{sTmp+1}
    v_mov_b32 v{X+4}, 0
    v_mov_b32 v{X+5}, 0
    v_mov_b32 v{X+6}, 0
    v_mov_b32 v{X+7}, 0
    s_mov_b32 s14, 0x2000000
    s_mov_b32 s{sCnt}, s{sNblk}
L_slow_loop:
    s_lshl_b32 s{sTmp}, s{sCnt}, 2
    s_load_dword s{sTmp+2}, s[16:17], s{sTmp}
    s_waitcnt lgkmcnt(0)
    s_and_b32 s{sTmp+2}, s{sTmp+2}, 511
    s_lshl_b32 s{sTmp+2}, s{sTmp+2}, 16
    buffer_load_dwordx2 v[{X+2}:{X+3}], v{X}, s[12:15], s{sTmp+2} offen
    s_waitcnt vmcnt(0)
    v_lshlrev_b32 v{X+1}, 16, v{X+2}
    v_add_f32 v{X+4}, v{X+4}, v{X+1}
    v_and_b32 v{X+1}, 0xffff0000, v{X+2}
    v_add_f32 v{X+5}, v{X+5}, v{X+1}
    v_lshlrev_b32 v{X+1}, 16, v{X+3}
    v_add_f32 v{X+6}, v{X+6}, v{X+1}
    v_and_b32 v{X+1}, 0xffff0000, v{X+3}
    v_add_f32 v{X+7}, v{X+7}, v{X+1}
    s_add_u32 s{sCnt}, s{sCnt}, 1
    s_cmp_lt_u32 s{sCnt}, 512
    s_cbranch_scc1 L_slow_loop
    s_nop 1
    v_permlane32_swap_b32 v{X+4}, v{X+5}
    v_permlane32_swap_b32 v{X+6}, v{X+7}
    s_nop 1
    v_add_f32 v{X+4}, v{X+4}, v{X+5}
    v_add_f32 v{X+6}, v{X+6}, v{X+7}
    s_nop 1
    v_permlane16_swap_b32 v{X+4}, v{X+6}
    s_nop 1
    v_add_f32 v{X+4}, v{X+4}, v{X+6}
    s_nop 1
    v_add_f32_dpp v{X+4}, v{X+4}, v{X+4} row_ror:4 row_mask:0xf bank_mask:0xf
    s_nop 1
    v_add_f32_dpp v{X+4}, v{X+4}, v{X+4} row_ror:8 row_mask:0xf bank_mask:0xf
    v_sub_f32 v{X+1}, 0x{f32bits(TMASK):08x}, v{vM}
    v_exp_f32 v{X+1}, v{X+1}
    s_sub_u32 s{sTmp}, 512, s{sNblk}
    s_lshl_b32 s{sTmp}, s{sTmp}, 4
    v_cvt_f32_u32 v{X+2}, s{sTmp}
    v_fmac_f32 v{vL}, v{X+1}, v{X+2}
    v_fmac_f32 v{AC}, v{X+1}, v{X+4}
    s_branch L_fin""")
    a(descriptor(main, nv, 96))
    return a.text()


if __name__ == "__main__":
    ap = argparse.ArgumentParser()
    ap.add_argument("-o", default="/dev/stdout")
    ap.add_argument("--kv", default="nt")
    ap.add_argument("--stamps", action="store_true")
    ap.add_argument("--diag", default=None)
    ap.add_argument("--ra", type=int, default=48)
    ap.add_argument("--pf", type=int, default=28)
    ap.add_argument("--noeq", action="store_true")
    ap.add_argument("--xp", default="")
    x = ap.parse_args()
    open(x.o, "w").write(gen(kv=x.kv, stamps=x.stamps, ra=x.ra, pf=x.pf, eq=not x.noeq, xp=x.xp,
                             diag=tuple(int(t) for t in x.diag.split(",")) if x.diag else None))
```

```python
import struct, sys, math, argparse
from gen import HEADER, NAME, f32bits, SCALE, TMASK, NEGINF, Asm, descriptor

NQ = 8
RS = 1152
BOFF = 0x100000
LDS_MAX, LDS_L, LDS_O = 0, 512, 1024
LDS_BYTES = LDS_O + 16 * 1024


def gen(kv="nt", stamps=False, diag=None, ra=48, pf=28, eq=True, xp=""):
    a = Asm()
    vKoff, vVoff, vG, vC, vLw, vM, vL = 1, 2, 3, 4, 5, 6, 7
    vQ, vAM, vO = 8, 12, 16
    vMV = 20
    vPub, vPm = 25, 26
    vLr, vOw, vTmp = 28, 29, 30
    vT, vK, vV = 32, 40, 72
    vML = 104
    vN = 106
    vS = 108
    nv = 112
    sW, sC, sIdx, sH256, sB, sCtx, sNblk = 3, 26, 27, 28, 29, 30, 31
    sBT = 32
    sG, sHead, sJ, sR = 36, 37, 38, 39
    sOff = 40
    sB1, sSh, sNR0, sOK = 48, 49, 50, 51
    sNR1 = 52
    sST = 56
    sR1 = 72
    sIn, sNc, sCnt = 73, 74, 76
    sTmp = 80
    sMask = 84
    main = f"{NAME}_kernel"
    timed = stamps or diag

    def stamp(k):
        if timed:
            a(f"    s_memrealtime s[{sST+2*k}:{sST+2*k+1}]")

    st1 = f"    s_memrealtime s[{sST+2}:{sST+3}]"
    st1a = st1 if "st1a" in xp else ""
    st1b = st1 if "st1b" in xp else ""
    pf_code = "" if not pf else f"""    v_cmp_gt_u32 vcc, {pf}, v0
    s_getpc_b64 s[{sTmp+2}:{sTmp+3}]
    v_lshlrev_b32 v{vT+3}, 7, v0
    s_and_saveexec_b64 s[{sMask}:{sMask+1}], vcc
    s_cbranch_execz L_nopf
    global_load_dword v{vT+4}, v{vT+3}, s[{sTmp+2}:{sTmp+3}]
L_nopf:
    s_mov_b64 exec, -1"""
    a(HEADER.rstrip("\n"))
    a(f"; @launch grid=(256,1,1) block=(1024,1,1) lds={LDS_BYTES}")
    a(f""";
; Split-K decode attention, one launch.  Workgroup id -> group G = id % 8 (kv heads 2G, 2G+1), idx = id / 8.
.amdgcn_target "amdgcn-amd-amdhsa--gfx950"
.text
.globl {main}
.p2align 8
.type {main},@function
{main}:
    s_load_dwordx2 s[8:9], s[0:1], 8             ; K""")
    if timed:
        stamp(0)
    a(f"""    v_and_b32 v{vTmp}, 3, v0
    v_lshlrev_b32 v{vTmp}, 4, v{vTmp}
    v_and_b32 v{vG}, 48, v0
    v_lshl_or_b32 v{vTmp}, v{vG}, 2, v{vTmp}         ; 16-B chunk ((l>>4)*4 + (l&3))
    v_and_b32 v{vKoff}, 12, v0
    v_lshl_or_b32 v{vKoff}, v{vKoff}, 10, v{vTmp}     ; + token ((l>>2)&3)*4096
    v_and_b32 v{vT}, 64, v0
    v_lshl_or_b32 v{vT}, v{vT}, 2, v{vKoff}          ; + c*256
    v_lshrrev_b32 v{vT+1}, 7, v0
    v_lshl_or_b32 v{vT}, v{vT+1}, 21, v{vT}          ; + j*32 blocks
    s_and_b32 s{sG}, s2, 7
    s_lshr_b32 s{sIdx}, s2, 3
    s_lshl_b32 s{sOff}, s{sIdx}, 7
    s_add_u32 s{sOff}, s{sOff}, s{sG}
    s_lshl_b32 s{sOff}, s{sOff}, 9                   ; idx*65536 + 2G*256
    s_lshl_b32 s10, 1, 25
    s_lshl_b32 s11, 1, 17
    s_movk_i32 s{sTmp}, 0x4000
    s_waitcnt lgkmcnt(0)
{st1a}
    buffer_load_dwordx4 v[{vK}:{vK+3}], v{vT}, s[8:11], s{sOff} offen {kv}
    s_add_u32 s{sOff+1}, s{sOff}, s{sTmp}
    buffer_load_dwordx4 v[{vK+4}:{vK+7}], v{vT}, s[8:11], s{sOff+1} offen {kv}
    s_add_u32 s{sOff+2}, s{sOff+1}, s{sTmp}
    buffer_load_dwordx4 v[{vK+8}:{vK+11}], v{vT}, s[8:11], s{sOff+2} offen {kv}
    s_add_u32 s{sOff+3}, s{sOff+2}, s{sTmp}
    buffer_load_dwordx4 v[{vK+12}:{vK+15}], v{vT}, s[8:11], s{sOff+3} offen {kv}
{st1b}
    s_cmpk_ge_u32 s2, 0x100
    s_cbranch_scc1 L_exit
{pf_code}
    s_load_dwordx4 s[16:19], s[0:1], 24
    s_load_dwordx2 s[4:5], s[0:1], 0             ; q
    s_load_dwordx2 s[12:13], s[0:1], 16          ; V
    s_load_dwordx4 s[20:23], s[0:1], 40
    s_load_dwordx2 s[24:25], s[0:1], 56          ; ws
    v_readfirstlane_b32 s{sW}, v0""")
    if "st1" not in xp:
        stamp(1)
    if stamps:
        for k in range(2, 8):
            a(f"    s_mov_b32 s{sST+2*k}, 0")
        a(f"    s_mov_b32 s{sCnt}, 0")
    a(f"""    v_and_b32 v{vVoff}, 8, v0
    v_lshl_or_b32 v{vTmp}, v{vVoff}, 5, v{vTmp}        ; q: + h*256
    v_and_b32 v{vVoff}, 15, v0
    v_lshlrev_b32 v{vVoff}, 4, v{vVoff}
    v_lshl_or_b32 v{vVoff}, v{vG}, 8, v{vVoff}         ; V: (l>>4)*4096 + (l&15)*16
    v_lshrrev_b32 v{vG}, 4, v{vG}                     ; g = l>>4
    s_lshr_b32 s{sW}, s{sW}, 6
    s_and_b32 s{sC}, s{sW}, 1
    s_lshr_b32 s{sJ}, s{sW}, 1
    s_lshl1_add_u32 s{sHead}, s{sG}, s{sC}
    s_lshl_b32 s{sH256}, s{sHead}, 8
    s_lshl_b32 s{sB}, s{sJ}, 5
    s_add_u32 s{sB1}, s{sB}, 256
    s_add_u32 s{sB}, s{sB}, s{sIdx}                  ; b0 = j*32 + idx
    s_lshl4_add_u32 s{sR}, s{sC}, s{sIdx}
    s_and_b32 s{sR}, s{sR}, 31                       ; r = (idx + 16c) % 32
    s_lshl_b32 s{sTmp}, s{sB}, 2
    s_add_u32 s{sTmp+1}, s{sB1}, s{sR}
    s_lshl_b32 s{sTmp+1}, s{sTmp+1}, 2
    s_lshr_b32 s{sTmp+2}, s{sR}, 1
    s_add_u32 s{sTmp+2}, s{sTmp+2}, s{sB1}
    s_lshl_b32 s{sTmp+2}, s{sTmp+2}, 2
    s_lshr_b32 s{sTmp+3}, s{sR}, 2
    s_add_u32 s{sTmp+3}, s{sTmp+3}, s{sB1}
    s_lshl_b32 s{sTmp+3}, s{sTmp+3}, 2
    s_lshl_b32 s{sR1}, s{sHead}, 9
    v_add_u32 v{vTmp}, s{sR1}, v{vTmp}
    s_mov_b32 s15, 0x20000
    s_waitcnt lgkmcnt(0)
    s_load_dword s{sCtx}, s[18:19], 0
    s_load_dword s{sBT}, s[16:17], s{sTmp}
    s_load_dword s{sBT+1}, s[16:17], s{sTmp+1}
    s_load_dword s{sBT+2}, s[16:17], s{sTmp+2}
    s_load_dword s{sBT+3}, s[16:17], s{sTmp+3}
    global_load_dwordx4 v[{vQ}:{vQ+3}], v{vTmp}, s[4:5]""")
    a(f"""    s_or_b32 s{sTmp+1}, s2, s{sW}
    s_cmp_lg_u32 s{sTmp+1}, 0
    s_cbranch_scc1 L_nolead
    s_memrealtime s[{sTmp+2}:{sTmp+3}]
    v_mov_b32 v{vT+2}, 0
    s_waitcnt lgkmcnt(0)
    s_lshr_b64 s[{sNc}:{sNc+1}], s[{sTmp+2}:{sTmp+3}], 20
    s_and_b32 s{sTmp+2}, s{sTmp+2}, 0xfffff
    s_and_b32 s{sNc}, s{sNc}, 0xfffff
    s_bitset1_b32 s{sTmp+2}, 31
    s_bitset1_b32 s{sNc}, 31
    v_mov_b32 v{vT}, s{sTmp+2}
    v_mov_b32 v{vT+1}, s{sNc}
    s_mov_b64 exec, 1
    global_store_dwordx2 v{vT+2}, v[{vT}:{vT+1}], s[22:23] sc1
    s_mov_b64 exec, -1
L_nolead:
    s_mov_b32 s{sTmp+2}, 0x{NEGINF:08x}
    s_mov_b32 s{sTmp+3}, 0x{f32bits(TMASK):08x}
    s_waitcnt lgkmcnt(0)
    s_max_i32 s{sCtx}, s{sCtx}, 0
    s_min_i32 s{sCtx}, s{sCtx}, 8192
    s_add_u32 s{sNblk}, s{sCtx}, 15
    s_lshr_b32 s{sNblk}, s{sNblk}, 4
    s_and_b32 s{sBT}, s{sBT}, 511
    s_cmp_lt_u32 s{sB}, s{sNblk}
    s_cselect_b32 s{sNR0}, s10, 0
    s_cselect_b32 s{sTmp}, s{sTmp+3}, s{sTmp+2}
    v_mov_b32 v{vMV}, s{sTmp}
    s_mov_b32 s{sSh}, 0""")
    if eq:
        a(f"""    s_cmp_lg_u32 s{sJ}, 7
    s_cbranch_scc1 L_whole
    s_cmpk_le_u32 s{sNblk}, 496
    s_cselect_b32 s{sSh}, 1, 0
    s_cselect_b32 s{sBT+1}, s{sBT+2}, s{sBT+1}
    s_cmpk_le_u32 s{sNblk}, 488
    s_cselect_b32 s{sSh}, 2, s{sSh}
    s_cselect_b32 s{sBT+1}, s{sBT+3}, s{sBT+1}
L_whole:""")
    a(f"""    s_and_b32 s{sBT+1}, s{sBT+1}, 511
    s_lshr_b32 s{sTmp}, s{sR}, s{sSh}
    s_add_u32 s{sB1}, s{sB1}, s{sTmp}
    s_lshl_b32 s{sTmp}, s{sTmp}, s{sSh}
    s_sub_u32 s{sTmp}, s{sR}, s{sTmp}
    s_lshr_b32 s{sOK}, 4, s{sSh}
    s_mul_i32 s{sTmp}, s{sTmp}, s{sOK}
    s_cmp_lt_u32 s{sB1}, s{sNblk}
    s_cselect_b32 s{sOK}, s{sOK}, 0
    s_lshl_b32 s{sR1}, s{sB1}, 2
    s_add_u32 s{sR1}, s{sR1}, s{sTmp}
    s_lshl_b32 s{sR1}, s{sR1}, 2
    s_sub_i32 s{sR1}, s{sCtx}, s{sR1}
    s_lshl_b32 s{sOff+4}, s{sBT+1}, 2
    s_add_u32 s{sOff+4}, s{sOff+4}, s{sTmp}
    s_lshl_b32 s{sOff+4}, s{sOff+4}, 14
    s_add_u32 s{sOff+4}, s{sOff+4}, s{sH256}
    s_add_u32 s{sOff+5}, s{sOff+4}, 0x4000
    s_add_u32 s{sOff+6}, s{sOff+4}, 0x8000
    s_add_u32 s{sOff+7}, s{sOff+4}, 0xc000
    s_lshl_b32 s{sOff}, s{sBT}, 16
    s_add_u32 s{sOff}, s{sOff}, s{sH256}
    s_add_u32 s{sOff+1}, s{sOff}, 0x4000
    s_add_u32 s{sOff+2}, s{sOff}, 0x8000
    s_add_u32 s{sOff+3}, s{sOff}, 0xc000
    s_cmp_eq_u32 s{sBT}, s{sB}
    s_cbranch_scc1 L_spec_ok
    s_waitcnt vmcnt(0)""")
    for i in range(4):
        a(f"    buffer_load_dwordx4 v[{vK+4*i}:{vK+4*i+3}], v{vKoff}, s[8:11], s{sOff+i} offen {kv}")
    a("L_spec_ok:")
    for i in range(4):
        q = 4 + i
        a(f"""    s_cmp_gt_u32 s{sOK}, {i}
    s_cselect_b32 s{sNR1+i}, 0x2000000, 0
    s_cselect_b32 s{sTmp}, s{sTmp+3}, s{sTmp+2}
    s_mov_b32 s10, s{sNR1+i}
    v_mov_b32 v{vMV+1+i}, s{sTmp}
    buffer_load_dwordx4 v[{vK+4*q}:{vK+4*q+3}], v{vKoff}, s[8:11], s{sOff+q} offen {kv}""")
    a(f"""    v_mov_b32 v{vT+5}, 0
    s_mov_b32 s14, s{sNR0}
    s_barrier
    s_cmp_gt_u32 s{sW}, 2
    s_cbranch_scc1 L_notag
    global_load_dwordx2 v[{vN}:{vN+1}], v{vT+5}, s[22:23] sc1
L_notag:""")
    for q in range(NQ):
        if q >= 4:
            a(f"    s_mov_b32 s14, s{sNR1+q-4}")
        a(f"    buffer_load_dwordx4 v[{vV+4*q}:{vV+4*q+3}], v{vVoff}, s[12:15], s{sOff+q} offen {kv}")
    a(f"""    s_lshl_b32 s{sTmp}, s{sHead}, 5
    s_add_u32 s{sTmp}, s{sTmp}, s{sIdx}
    s_mul_i32 s{sTmp}, s{sTmp}, {RS}
    v_and_b32 v{vPub}, 63, v0
    v_lshl_add_u32 v{vPub}, v{vPub}, 4, s{sTmp}
    v_and_b32 v{vPm}, 8, v0
    v_lshl_add_u32 v{vPm}, v{vPm}, 1, s{sTmp}
    s_cmp_ge_u32 s{sW}, 2
    s_cbranch_scc1 L_nodummy
    v_mov_b32 v{vO}, 0
    v_mov_b32 v{vO+1}, 0
    v_mov_b32 v{vO+2}, 0
    v_mov_b32 v{vO+3}, 0
    global_store_dwordx4 v{vPub}, v[{vO}:{vO+3}], s[24:25]
    s_mov_b64 exec, 0xff
    global_store_dwordx4 v{vPub}, v[{vO}:{vO+3}], s[24:25] offset:1024
    s_mov_b64 exec, -1
L_nodummy:""")
    stamp(2)
    a(f"""    v_mov_b32 v{vC}, 0x{f32bits(SCALE):08x}
    v_and_b32 v{vTmp}, 1, v0
    v_lshlrev_b32 v{vTmp}, 4, v{vTmp}
    s_mov_b32 s{sTmp}, 0xffff
    v_lshlrev_b32_e64 v{vTmp}, v{vTmp}, s{sTmp}        ; 0xffff << 16*(l&1)
    v_bfe_u32 v{vTmp+1}, v0, 1, 2
    v_cmp_eq_u32_e64 s[{sMask}:{sMask+1}], 0, v{vTmp+1}
    v_cmp_eq_u32_e64 s[{sMask+2}:{sMask+3}], 1, v{vTmp+1}
    v_cmp_eq_u32_e64 s[{sMask+4}:{sMask+5}], 2, v{vTmp+1}
    v_cmp_eq_u32_e64 s[{sMask+6}:{sMask+7}], 3, v{vTmp+1}
    v_bfe_u32 v{vLr}, v0, 3, 1
    v_lshlrev_b32 v{vLr}, 7, v{vLr}                   ; h*128
    v_cndmask_b32_e64 v{vAM}, 0, v{vTmp}, s[{sMask}:{sMask+1}]
    v_cndmask_b32_e64 v{vAM+1}, 0, v{vTmp}, s[{sMask+2}:{sMask+3}]
    v_cndmask_b32_e64 v{vAM+2}, 0, v{vTmp}, s[{sMask+4}:{sMask+5}]
    v_cndmask_b32_e64 v{vAM+3}, 0, v{vTmp}, s[{sMask+6}:{sMask+7}]
    s_lshl_b32 s{sTmp}, s{sC}, 8
    v_add_u32 v{vLr}, s{sTmp}, v{vLr}                ; + c*256
    s_lshl_b32 s{sTmp}, s{sJ}, 4
    v_lshl_add_u32 v{vLw}, v{vG}, 2, v{vLr}
    v_add_u32 v{vLw}, s{sTmp}, v{vLw}                ; + (j*4+g)*4
    v_and_b32 v{vTmp}, 7, v0
    v_lshl_add_u32 v{vLr}, v{vTmp}, 4, v{vLr}         ; + e*16
    v_lshlrev_b32 v{vOw}, 4, v0                      ; w*1024 + l*16
    s_movk_i32 s{sNc}, 0x3ff
    s_lshl_b32 s{sTmp}, s{sB}, 4
    s_sub_i32 s{sTmp}, s{sCtx}, s{sTmp}""")
    for u in range(2):
        a(f"    s_waitcnt vmcnt({12 if u == 0 else 8})")
        if u == 0:
            stamp(3)
        for i in range(4):
            q = 4 * u + i
            a(f"    v_mfma_f32_16x16x32_bf16 v[{vK+4*q}:{vK+4*q+3}], v[{vK+4*q}:{vK+4*q+3}], v[{vQ}:{vQ+3}], 0")
        sr = sTmp if u == 0 else sR1
        for i in range(4):
            if u == 1:
                a(f"    s_cmp_gt_u32 s{sOK}, {i}")
                a(f"    s_cselect_b32 s{sTmp}, s{sr}, 0")
                a(f"    v_cmp_gt_i32_e64 s[{sMask+2*i}:{sMask+2*i+1}], s{sTmp}, v{vG}")
            else:
                a(f"    v_cmp_gt_i32_e64 s[{sMask+2*i}:{sMask+2*i+1}], s{sr}, v{vG}")
            if i < 3:
                a(f"    s_sub_i32 s{sr}, s{sr}, 4")
        a("    s_nop 1" if u == 0 else "    s_nop 0")
        for step in range(4):
            for i in range(4):
                q = 4 * u + i
                op = "v_mul_f32_dpp" if step == 0 else "v_fmac_f32_dpp"
                a(f"    {op} v{vT+q}, v{vK+4*q+step}, v{vC} quad_perm:[{step},{step},{step},{step}] row_mask:0xf bank_mask:0xf")
        for i in range(4):
            q = 4 * u + i
            mv = vMV if u == 0 else vMV + 1 + i
            a(f"    v_cndmask_b32_e64 v{vT+q}, v{mv}, v{vT+q}, s[{sMask+2*i}:{sMask+2*i+1}]")
    a(f"    v_max3_f32 v{vM}, v{vT}, v{vT+1}, s{sTmp+3}")
    for q in range(2, NQ, 2):
        a(f"    v_max3_f32 v{vM}, v{vT+q}, v{vT+q+1}, v{vM}")
    a(f"""    ds_write_b32 v{vLw}, v{vM} offset:{LDS_MAX}
    v_and_b32 v{vTmp}, v{vN}, v{vN+1}
    v_lshrrev_b32 v{vS}, 10, v{vN}
    v_readfirstlane_b32 s{sOK}, v{vTmp}
    v_lshrrev_b32 v{vS+1}, 10, v{vN+1}
    s_waitcnt lgkmcnt(0)
    s_barrier""")
    stamp(4)
    a(f"""    ds_read_b128 v[{vK}:{vK+3}], v{vLr} offset:{LDS_MAX}
    s_waitcnt lgkmcnt(0)
    v_max3_f32 v{vM}, v{vK}, v{vK+1}, v{vK+2}
    v_max_f32 v{vM}, v{vM}, v{vK+3}
    s_nop 1
    v_max_f32_dpp v{vM}, v{vM}, v{vM} quad_perm:[1,0,3,2] row_mask:0xf bank_mask:0xf
    s_nop 1
    v_max_f32_dpp v{vM}, v{vM}, v{vM} quad_perm:[2,3,0,1] row_mask:0xf bank_mask:0xf
    s_nop 1
    v_max_f32_dpp v{vM}, v{vM}, v{vM} row_half_mirror row_mask:0xf bank_mask:0xf""")
    for q in range(NQ):
        a(f"    v_sub_f32 v{vT+q}, v{vT+q}, v{vM}")
    for q in range(NQ):
        a(f"    v_exp_f32 v{vT+q}, v{vT+q}")
    a(f"    v_mov_b32 v{vML}, v{vM}")
    a(f"    v_add_f32 v{vL}, v{vT}, v{vT+1}")
    for q in range(2, NQ):
        a(f"    v_add_f32 v{vL}, v{vL}, v{vT+q}")
    a(f"    ds_write_b32 v{vLw}, v{vL} offset:{LDS_L}")
    for q in range(NQ):
        a(f"    v_cvt_pk_bf16_f32 v{vT+q}, v{vT+q}, v{vT+q}")
    for q in range(NQ):
        for r in range(4):
            a(f"    v_and_b32 v{vK+4*q+r}, v{vAM+r}, v{vT+q}")
    a("    s_nop 0")
    for q in range(NQ):
        a(f"    s_waitcnt vmcnt({NQ-1-q})")
        c = "0" if q == 0 else f"v[{vO}:{vO+3}]"
        a(f"    v_mfma_f32_16x16x32_bf16 v[{vO}:{vO+3}], v[{vK+4*q}:{vK+4*q+3}], v[{vV+4*q}:{vV+4*q+3}], {c}")
    stamp(5)
    a(f"""    s_nop 7
    ds_write_b128 v{vOw}, v[{vO}:{vO+3}] offset:{LDS_O}
    s_waitcnt lgkmcnt(0)
    s_barrier
    s_cmp_gt_u32 s{sW}, 2
    s_cbranch_scc1 L_done
    s_cmp_lt_i32 s{sOK}, 0
    s_cbranch_scc0 L_waittag
L_tagok:
    s_cmp_eq_u32 s{sW}, 2
    s_cbranch_scc1 L_consume
    ds_read_b128 v[{vT}:{vT+3}], v{vLr} offset:{LDS_L}""")
    for j in range(1, 8):
        a(f"    ds_read_b128 v[{vK+4*j}:{vK+4*j+3}], v{vOw} offset:{LDS_O+2048*j}")
    a(f"""    s_waitcnt lgkmcnt(7)
    v_add_f32 v{vL}, v{vT}, v{vT+1}
    v_add_f32 v{vT+2}, v{vT+2}, v{vT+3}
    v_add_f32 v{vL}, v{vL}, v{vT+2}
    s_waitcnt lgkmcnt(6)
    v_pk_add_f32 v[{vO}:{vO+1}], v[{vO}:{vO+1}], v[{vK+4}:{vK+5}]
    v_pk_add_f32 v[{vO+2}:{vO+3}], v[{vO+2}:{vO+3}], v[{vK+6}:{vK+7}]
    v_add_f32_dpp v{vL}, v{vL}, v{vL} quad_perm:[1,0,3,2] row_mask:0xf bank_mask:0xf
    s_waitcnt lgkmcnt(5)
    v_pk_add_f32 v[{vO}:{vO+1}], v[{vO}:{vO+1}], v[{vK+8}:{vK+9}]
    v_pk_add_f32 v[{vO+2}:{vO+3}], v[{vO+2}:{vO+3}], v[{vK+10}:{vK+11}]
    v_add_f32_dpp v{vL}, v{vL}, v{vL} quad_perm:[2,3,0,1] row_mask:0xf bank_mask:0xf
    s_waitcnt lgkmcnt(4)
    v_pk_add_f32 v[{vO}:{vO+1}], v[{vO}:{vO+1}], v[{vK+12}:{vK+13}]
    v_pk_add_f32 v[{vO+2}:{vO+3}], v[{vO+2}:{vO+3}], v[{vK+14}:{vK+15}]
    v_add_f32_dpp v{vML+1}, v{vL}, v{vL} row_half_mirror row_mask:0xf bank_mask:0xf""")
    for j in range(4, 8):
        a(f"    s_waitcnt lgkmcnt({7-j})")
        a(f"    v_pk_add_f32 v[{vO}:{vO+1}], v[{vO}:{vO+1}], v[{vK+4*j}:{vK+4*j+1}]")
        a(f"    v_pk_add_f32 v[{vO+2}:{vO+3}], v[{vO+2}:{vO+3}], v[{vK+4*j+2}:{vK+4*j+3}]")
    a(f"""    v_bfi_b32 v{vO}, s{sNc}, v{vN}, v{vO}
    v_bfi_b32 v{vO+1}, s{sNc}, v{vS}, v{vO+1}
    v_bfi_b32 v{vO+2}, s{sNc}, v{vN+1}, v{vO+2}
    v_bfi_b32 v{vO+3}, s{sNc}, v{vS+1}, v{vO+3}
    global_store_dwordx4 v{vPub}, v[{vO}:{vO+3}], s[24:25]
    s_mov_b64 exec, 0x101
    global_store_dwordx4 v{vPm}, v[{vML}:{vML+3}], s[24:25] offset:1024
    s_mov_b64 exec, -1""")
    if stamps:
        stamp(3)
    a(f"""    s_add_u32 s{sTmp}, s24, {BOFF}
    s_addc_u32 s{sTmp+1}, s25, 0
    global_store_dwordx4 v{vPub}, v[{vO}:{vO+3}], s[{sTmp}:{sTmp+1}] sc1
    s_mov_b64 exec, 0x101
    global_store_dwordx4 v{vPm}, v[{vML}:{vML+3}], s[{sTmp}:{sTmp+1}] offset:1024 sc1
    s_mov_b64 exec, -1""")
    stamp(6)
    a(f"""    s_branch L_done
L_waittag:                                           ; rare: the leader had not published yet when the tag was read
    v_mov_b32 v{vTmp+1}, 0
    s_mov_b32 s{sCnt}, 0
L_waittag_loop:
    s_sleep 8
    global_load_dwordx2 v[{vN}:{vN+1}], v{vTmp+1}, s[22:23] sc1
    s_add_u32 s{sCnt}, s{sCnt}, 1
    s_waitcnt vmcnt(0)
    v_and_b32 v{vTmp}, v{vN}, v{vN+1}
    v_lshrrev_b32 v{vS}, 10, v{vN}
    v_readfirstlane_b32 s{sOK}, v{vTmp}
    v_lshrrev_b32 v{vS+1}, 10, v{vN+1}
    s_cmp_gt_u32 s{sCnt}, 20000
    s_cbranch_scc1 L_tagok
    s_cmp_lt_i32 s{sOK}, 0
    s_cbranch_scc0 L_waittag_loop
    s_branch L_tagok""")
    OP, ML, WT, AC = 40, 48, 56, 60
    vA1, vA2 = 1, 2
    sMs, sRo = 40, 44
    a(f"""L_consume:
    s_lshl_b32 s{sIn}, s{sG}, 5
    s_add_u32 s{sIn}, s{sIn}, s{sIdx}
    s_movk_i32 s{sTmp}, {RS}
    v_bfe_u32 v{vA2}, v0, 2, 4
    v_mul_u32_u24 v{vA2}, s{sTmp}, v{vA2}             ; p*RS,  p = l>>2
    v_and_b32 v{vTmp}, 3, v0
    v_lshlrev_b32 v{vTmp}, 4, v{vTmp}                 ; qd*16
    s_and_b32 s{sTmp+1}, s{sIn}, 15
    s_lshl_b32 s{sTmp+2}, s{sTmp+1}, 6
    v_add3_u32 v{vA1}, v{vA2}, v{vTmp}, s{sTmp+2}       ; + k*64 + qd*16
    s_lshr_b32 s{sTmp+2}, s{sTmp+1}, 3
    s_lshl_b32 s{sTmp+2}, s{sTmp+2}, 4
    v_add_u32 v{vA2}, s{sTmp+2}, v{vA2}               ; + h*16 (+1024)
    s_lshr_b32 s{sRo}, s{sIn}, 4
    s_mul_i32 s{sRo}, s{sRo}, {32*RS}
    s_add_u32 s{sRo+1}, s{sRo}, {16*RS}
    s_mov_b32 s8, s24
    s_mov_b32 s9, s25
    s_mov_b32 s10, {BOFF + 512*RS}
    s_mov_b32 s{sCnt}, 0
    s_mov_b64 s[{sMs}:{sMs+1}], -1
    s_mov_b64 s[{sMs+2}:{sMs+3}], -1
    s_branch L_pollA""")

    def poll_loads(tag, fl):
        for kk in range(2):
            a(f"""    s_mov_b64 exec, s[{sMs+2*kk}:{sMs+2*kk+1}]
    s_cbranch_execz L_skip{tag}{kk}
    buffer_load_dwordx4 v[{OP+4*kk}:{OP+4*kk+3}], v{vA1}, s[8:11], s{sRo+kk} offen {fl}
    buffer_load_dwordx4 v[{ML+4*kk}:{ML+4*kk+3}], v{vA2}, s[8:11], s{sRo+kk} offen offset:1024 {fl}
L_skip{tag}{kk}:""")

    a("L_pollB:\n    s_sleep 4")
    poll_loads("b", "sc1")
    a("    s_branch L_issued\nL_pollA:")
    poll_loads("a", "nt")
    a(f"""L_issued:
    s_mov_b64 exec, -1
    s_add_u32 s{sCnt}, s{sCnt}, 1
    s_cmp_gt_u32 s{sCnt}, 20000
    s_cbranch_scc1 L_got
    s_waitcnt vmcnt(0)""")
    for kk in range(2):
        o, m, t = OP + 4 * kk, ML + 4 * kk, 8 + 6 * kk
        a(f"""    v_xor_b32 v{t}, v{o}, v{vN}
    v_xor_b32 v{t+1}, v{o+1}, v{vS}
    v_xor_b32 v{t+2}, v{o+2}, v{vN+1}
    v_xor_b32 v{t+3}, v{o+3}, v{vS+1}
    v_xor_b32 v{t+4}, v{m+2}, v{vN}
    v_xor_b32 v{t+5}, v{m+3}, v{vN+1}""")
    for kk in range(2):
        t = 8 + 6 * kk
        a(f"    v_or3_b32 v{t}, v{t}, v{t+1}, v{t+2}")
    for kk in range(2):
        t = 8 + 6 * kk
        a(f"    v_or_b32 v{t}, v{t}, v{t+3}")
        a(f"    v_or_b32 v{t+4}, v{t+4}, v{t+5}")
    for kk in range(2):
        t = 8 + 6 * kk
        a(f"    v_and_or_b32 v{t}, v{t}, s{sNc}, v{t+4}")
    for kk in range(2):
        t = 8 + 6 * kk
        a(f"    v_cmp_ne_u32_e64 s[{sMs+2*kk}:{sMs+2*kk+1}], 0, v{t}")
    a(f"""    v_max_f32 v{vM}, v{ML}, v{ML+4}
    s_or_b64 s[{sTmp}:{sTmp+1}], s[{sMs}:{sMs+1}], s[{sMs+2}:{sMs+3}]
    s_cbranch_scc0 L_got
    s_cmp_lt_u32 s{sCnt}, {ra}
    s_cbranch_scc1 L_pollA
    s_cmp_lg_u32 s{sCnt}, {ra}
    s_cbranch_scc1 L_pollB
    s_add_u32 s{sRo}, s{sRo}, {BOFF}
    s_add_u32 s{sRo+1}, s{sRo+1}, {BOFF}
    s_branch L_pollB
L_got:""")
    stamp(6)
    a(f"""    ; output byte address: kvhead*512 + (k>>3)*256 + ((4k+qd)&15)*16 + ((k>>2)&1)*8 + component*2
    v_max_f32_dpp v{vM}, v{vM}, v{vM} row_ror:4 row_mask:0xf bank_mask:0xf
    s_lshr_b32 s{sTmp+2}, s{sIn}, 3
    s_lshl_b32 s{sTmp+2}, s{sTmp+2}, 8
    v_max_f32_dpp v{vM}, v{vM}, v{vM} row_ror:8 row_mask:0xf bank_mask:0xf
    s_and_b32 s{sTmp+3}, s{sIn}, 3
    v_mov_b32 v8, v{vM}
    s_lshl_b32 s{sTmp+3}, s{sTmp+3}, 6
    s_add_u32 s{sTmp+2}, s{sTmp+2}, s{sTmp+3}
    v_permlane16_swap_b32 v{vM}, v8
    s_bfe_u32 s{sTmp+3}, s{sIn}, 0x10002
    v_max_f32 v{vM}, v{vM}, v8
    v_mov_b32 v8, v{vM}
    s_lshl3_add_u32 s{sTmp+2}, s{sTmp+3}, s{sTmp+2}
    v_add_u32 v{vTmp}, s{sTmp+2}, v{vTmp}
    v_permlane32_swap_b32 v{vM}, v8
    v_bfe_u32 v9, v0, 4, 1
    v_max_f32 v{vM}, v{vM}, v8
    v_sub_f32 v{WT}, v{ML}, v{vM}
    v_sub_f32 v{WT+1}, v{ML+4}, v{vM}
    v_exp_f32 v{WT}, v{WT}
    v_exp_f32 v{WT+1}, v{WT+1}
    v_lshl_add_u32 v{vTmp}, v9, 2, v{vTmp}
    v_bfe_u32 v9, v0, 5, 1
    v_mul_f32 v{vL}, v{WT}, v{ML+1}
    v_mul_f32 v{AC}, v{WT}, v{OP}
    v_mul_f32 v{AC+1}, v{WT}, v{OP+1}
    v_mul_f32 v{AC+2}, v{WT}, v{OP+2}
    v_mul_f32 v{AC+3}, v{WT}, v{OP+3}
    v_fmac_f32 v{vL}, v{WT+1}, v{ML+5}
    v_fmac_f32 v{AC}, v{WT+1}, v{OP+4}
    v_fmac_f32 v{AC+1}, v{WT+1}, v{OP+5}
    v_fmac_f32 v{AC+2}, v{WT+1}, v{OP+6}
    v_fmac_f32 v{AC+3}, v{WT+1}, v{OP+7}
    v_mov_b32 v8, v{vL}
    v_lshl_add_u32 v{vTmp}, v9, 1, v{vTmp}
    v_permlane32_swap_b32 v{AC}, v{AC+1}
    v_permlane32_swap_b32 v{AC+2}, v{AC+3}
    v_permlane32_swap_b32 v{vL}, v8
    v_add_f32 v{AC}, v{AC}, v{AC+1}
    v_add_f32 v{AC+2}, v{AC+2}, v{AC+3}
    v_add_f32 v{vL}, v{vL}, v8
    v_mov_b32 v8, v{vL}
    s_mov_b32 s{sTmp+1}, 0x{f32bits(TMASK + 256.0):08x}
    v_permlane16_swap_b32 v{AC}, v{AC+2}
    v_cmp_ge_f32 vcc, s{sTmp+1}, v{vM}
    v_permlane16_swap_b32 v{vL}, v8
    v_add_f32 v{AC}, v{AC}, v{AC+2}
    v_add_f32 v{vL}, v{vL}, v8
    s_nop 0
    v_add_f32_dpp v{AC}, v{AC}, v{AC} row_ror:4 row_mask:0xf bank_mask:0xf
    v_add_f32_dpp v{vL}, v{vL}, v{vL} row_ror:4 row_mask:0xf bank_mask:0xf
    s_nop 0
    v_add_f32_dpp v{AC}, v{AC}, v{AC} row_ror:8 row_mask:0xf bank_mask:0xf
    v_add_f32_dpp v{vL}, v{vL}, v{vL} row_ror:8 row_mask:0xf bank_mask:0xf
    s_cbranch_vccnz L_slow
L_fin:
    v_rcp_f32 v{vL}, v{vL}
    s_mov_b32 exec_lo, 0x000f000f
    s_mov_b32 exec_hi, 0x000f000f
    v_mul_f32 v{AC}, v{AC}, v{vL}
    v_cvt_pk_bf16_f32 v{AC}, v{AC}, v{AC}
    global_store_short v{vTmp}, v{AC}, s[20:21]""")
    if timed:
        a("    s_mov_b64 exec, -1\n    s_waitcnt vmcnt(0)")
    stamp(7)
    if diag:
        ka, kb, mult = diag
        a(f"""    s_waitcnt lgkmcnt(0)
    s_sub_u32 s{sTmp}, s{sST+2*kb}, s{sST+2*ka}
    s_mul_i32 s{sTmp}, s{sTmp}, {mult}
    s_min_u32 s{sTmp}, s{sTmp}, 20000
    s_add_u32 s{sTmp}, s{sTmp}, s{sST+14}
L_spin:
    s_memrealtime s[{sTmp+2}:{sTmp+3}]
    s_waitcnt lgkmcnt(0)
    s_sub_u32 s{sTmp+1}, s{sTmp+2}, s{sTmp}
    s_cmp_lt_i32 s{sTmp+1}, 0
    s_cbranch_scc1 L_spin""")
    a("L_done:")
    if stamps:
        a(f"    s_waitcnt lgkmcnt(0) vmcnt(0)")
        a(f"    s_getreg_b32 s{sST+1}, hwreg(HW_REG_XCC_ID)")
        for k in range(8):
            a(f"    v_mov_b32 v{40+k}, s{sST+2*k}")
        a(f"    v_mov_b32 v48, s{sST+1}")
        a(f"    v_mov_b32 v49, s{sCnt}")
        a(f"""    s_lshl_b32 s{sTmp}, s2, 10
    s_lshl_b32 s{sTmp+1}, s{sW}, 6
    s_add_u32 s{sTmp}, s{sTmp}, s{sTmp+1}
    s_add_u32 s{sTmp}, s{sTmp}, 0x400000
    v_mov_b32 v50, s{sTmp}
    s_mov_b64 exec, 1
    global_store_dwordx4 v50, v[40:43], s[24:25]
    global_store_dwordx4 v50, v[44:47], s[24:25] offset:16
    global_store_dwordx2 v50, v[48:49], s[24:25] offset:32""")
    X = 64
    a(f"""L_exit:
    s_endpgm
L_slow:
    s_cmp_ge_u32 s{sNblk}, 512
    s_cbranch_scc1 L_fin
    s_lshr_b32 s{sTmp+1}, s{sIn}, 4
    s_lshl_b32 s{sTmp+1}, s{sTmp+1}, 8
    s_and_b32 s{sTmp}, s{sIn}, 3
    s_lshl_b32 s{sTmp}, s{sTmp}, 6
    s_add_u32 s{sTmp+1}, s{sTmp+1}, s{sTmp}
    s_bfe_u32 s{sTmp}, s{sIn}, 0x10002
    s_lshl3_add_u32 s{sTmp+1}, s{sTmp}, s{sTmp+1}
    v_bfe_u32 v{X}, v0, 2, 4
    v_lshlrev_b32 v{X}, 12, v{X}
    v_and_b32 v{X+1}, 3, v0
    v_lshlrev_b32 v{X+1}, 4, v{X+1}
    v_add3_u32 v{X}, v{X+1}, v{X}, s{sTmp+1}
    v_mov_b32 v{X+4}, 0
    v_mov_b32 v{X+5}, 0
    v_mov_b32 v{X+6}, 0
    v_mov_b32 v{X+7}, 0
    s_mov_b32 s14, 0x2000000
    s_mov_b32 s{sCnt}, s{sNblk}
L_slow_loop:
    s_lshl_b32 s{sTmp}, s{sCnt}, 2
    s_load_dword s{sTmp+2}, s[16:17], s{sTmp}
    s_waitcnt lgkmcnt(0)
    s_and_b32 s{sTmp+2}, s{sTmp+2}, 511
    s_lshl_b32 s{sTmp+2}, s{sTmp+2}, 16
    buffer_load_dwordx2 v[{X+2}:{X+3}], v{X}, s[12:15], s{sTmp+2} offen
    s_waitcnt vmcnt(0)
    v_lshlrev_b32 v{X+1}, 16, v{X+2}
    v_add_f32 v{X+4}, v{X+4}, v{X+1}
    v_and_b32 v{X+1}, 0xffff0000, v{X+2}
    v_add_f32 v{X+5}, v{X+5}, v{X+1}
    v_lshlrev_b32 v{X+1}, 16, v{X+3}
    v_add_f32 v{X+6}, v{X+6}, v{X+1}
    v_and_b32 v{X+1}, 0xffff0000, v{X+3}
    v_add_f32 v{X+7}, v{X+7}, v{X+1}
    s_add_u32 s{sCnt}, s{sCnt}, 1
    s_cmp_lt_u32 s{sCnt}, 512
    s_cbranch_scc1 L_slow_loop
    s_nop 1
    v_permlane32_swap_b32 v{X+4}, v{X+5}
    v_permlane32_swap_b32 v{X+6}, v{X+7}
    s_nop 1
    v_add_f32 v{X+4}, v{X+4}, v{X+5}
    v_add_f32 v{X+6}, v{X+6}, v{X+7}
    s_nop 1
    v_permlane16_swap_b32 v{X+4}, v{X+6}
    s_nop 1
    v_add_f32 v{X+4}, v{X+4}, v{X+6}
    s_nop 1
    v_add_f32_dpp v{X+4}, v{X+4}, v{X+4} row_ror:4 row_mask:0xf bank_mask:0xf
    s_nop 1
    v_add_f32_dpp v{X+4}, v{X+4}, v{X+4} row_ror:8 row_mask:0xf bank_mask:0xf
    v_sub_f32 v{X+1}, 0x{f32bits(TMASK):08x}, v{vM}
    v_exp_f32 v{X+1}, v{X+1}
    s_sub_u32 s{sTmp}, 512, s{sNblk}
    s_lshl_b32 s{sTmp}, s{sTmp}, 4
    v_cvt_f32_u32 v{X+2}, s{sTmp}
    v_fmac_f32 v{vL}, v{X+1}, v{X+2}
    v_fmac_f32 v{AC}, v{X+1}, v{X+4}
    s_branch L_fin""")
    a(descriptor(main, nv, 96))
    return a.text()


if __name__ == "__main__":
    ap = argparse.ArgumentParser()
    ap.add_argument("-o", default="/dev/stdout")
    ap.add_argument("--kv", default="nt")
    ap.add_argument("--stamps", action="store_true")
    ap.add_argument("--diag", default=None)
    ap.add_argument("--ra", type=int, default=48)
    ap.add_argument("--pf", type=int, default=28)
    ap.add_argument("--noeq", action="store_true")
    ap.add_argument("--xp", default="")
    x = ap.parse_args()
    open(x.o, "w").write(gen(kv=x.kv, stamps=x.stamps, ra=x.ra, pf=x.pf, eq=not x.noeq, xp=x.xp,
                             diag=tuple(int(t) for t in x.diag.split(",")) if x.diag else None))
```

```python
import struct, sys, math, argparse
from gen import HEADER, NAME, f32bits, SCALE, TMASK, NEGINF, Asm, descriptor

NQ = 8
RS = 1152
BOFF = 0x100000
LDS_MAX, LDS_L, LDS_O = 0, 512, 1024
LDS_BYTES = LDS_O + 16 * 1024


def gen(kv="nt", stamps=False, diag=None, ra=48, pf=28, eq=True, xp=""):
    a = Asm()
    vKoff, vVoff, vG, vC, vLw, vM, vL = 1, 2, 3, 4, 5, 6, 7
    vQ, vAM, vO = 8, 12, 16
    vMV = 20
    vPub, vPm = 25, 26
    vLr, vOw, vTmp = 28, 29, 30
    vT, vK, vV = 32, 40, 72
    vML = 104
    vN = 106
    vS = 108
    nv = 112
    sW, sC, sIdx, sH256, sB, sCtx, sNblk = 3, 26, 27, 28, 29, 30, 31
    sBT = 32
    sG, sHead, sJ, sR = 36, 37, 38, 39
    sOff = 40
    sB1, sSh, sNR0, sOK = 48, 49, 50, 51
    sNR1 = 52
    sST = 56
    sR1 = 72
    sIn, sNc, sCnt = 73, 74, 76
    sTmp = 80
    sMask = 84
    main = f"{NAME}_kernel"
    timed = stamps or diag

    def stamp(k):
        if timed:
            a(f"    s_memrealtime s[{sST+2*k}:{sST+2*k+1}]")

    st1 = f"    s_memrealtime s[{sST+2}:{sST+3}]"
    st1a = st1 if "st1a" in xp else ""
    st1b = st1 if "st1b" in xp else ""
    pf_code = "" if not pf else f"""    v_cmp_gt_u32 vcc, {pf}, v0
    s_getpc_b64 s[{sTmp+2}:{sTmp+3}]
    v_lshlrev_b32 v{vT+3}, 7, v0
    s_and_saveexec_b64 s[{sMask}:{sMask+1}], vcc
    s_cbranch_execz L_nopf
    global_load_dword v27, v{vT+3}, s[{sTmp+2}:{sTmp+3}]
L_nopf:
    s_mov_b64 exec, -1"""
    a(HEADER.rstrip("\n"))
    a(f"; @launch grid=(256,1,1) block=(1024,1,1) lds={LDS_BYTES}")
    a(f""";
; Split-K decode attention, one launch.  Workgroup id -> group G = id % 8 (kv heads 2G, 2G+1), idx = id / 8.
.amdgcn_target "amdgcn-amd-amdhsa--gfx950"
.text
.globl {main}
.p2align 8
.type {main},@function
{main}:
    s_load_dwordx2 s[8:9], s[0:1], 8             ; K""")
    if timed:
        stamp(0)
    a(f"""    v_and_b32 v{vTmp}, 3, v0
    v_lshlrev_b32 v{vTmp}, 4, v{vTmp}
    v_and_b32 v{vG}, 48, v0
    v_lshl_or_b32 v{vTmp}, v{vG}, 2, v{vTmp}         ; 16-B chunk ((l>>4)*4 + (l&3))
    v_and_b32 v{vKoff}, 12, v0
    v_lshl_or_b32 v{vKoff}, v{vKoff}, 10, v{vTmp}     ; + token ((l>>2)&3)*4096
    v_and_b32 v{vT}, 64, v0
    v_lshl_or_b32 v{vT}, v{vT}, 2, v{vKoff}          ; + c*256
    v_lshrrev_b32 v{vT+1}, 7, v0
    v_lshl_or_b32 v{vT}, v{vT+1}, 21, v{vT}          ; + j*32 blocks
    s_and_b32 s{sG}, s2, 7
    s_lshr_b32 s{sIdx}, s2, 3
    s_lshl_b32 s{sOff}, s{sIdx}, 7
    s_add_u32 s{sOff}, s{sOff}, s{sG}
    s_lshl_b32 s{sOff}, s{sOff}, 9                   ; idx*65536 + 2G*256
    s_lshl_b32 s10, 1, 25
    s_lshl_b32 s11, 1, 17
    s_movk_i32 s{sTmp}, 0x4000
    s_waitcnt lgkmcnt(0)
{st1a}
    buffer_load_dwordx4 v[{vK}:{vK+3}], v{vT}, s[8:11], s{sOff} offen {kv}
    s_add_u32 s{sOff+1}, s{sOff}, s{sTmp}
    buffer_load_dwordx4 v[{vK+4}:{vK+7}], v{vT}, s[8:11], s{sOff+1} offen {kv}
    s_add_u32 s{sOff+2}, s{sOff+1}, s{sTmp}
    buffer_load_dwordx4 v[{vK+8}:{vK+11}], v{vT}, s[8:11], s{sOff+2} offen {kv}
    s_add_u32 s{sOff+3}, s{sOff+2}, s{sTmp}
    buffer_load_dwordx4 v[{vK+12}:{vK+15}], v{vT}, s[8:11], s{sOff+3} offen {kv}
{st1b}
    s_cmpk_ge_u32 s2, 0x100
    s_cbranch_scc1 L_exit
{pf_code}
    s_load_dwordx4 s[16:19], s[0:1], 24
    s_load_dwordx2 s[4:5], s[0:1], 0             ; q
    s_load_dwordx2 s[12:13], s[0:1], 16          ; V
    s_load_dwordx4 s[20:23], s[0:1], 40
    s_load_dwordx2 s[24:25], s[0:1], 56          ; ws
    v_readfirstlane_b32 s{sW}, v0""")
    if "st1" not in xp:
        stamp(1)
    if stamps:
        for k in range(2, 8):
            a(f"    s_mov_b32 s{sST+2*k}, 0")
        a(f"    s_mov_b32 s{sCnt}, 0")
    a(f"""    v_and_b32 v{vVoff}, 8, v0
    v_lshl_or_b32 v{vTmp}, v{vVoff}, 5, v{vTmp}        ; q: + h*256
    v_and_b32 v{vVoff}, 15, v0
    v_lshlrev_b32 v{vVoff}, 4, v{vVoff}
    v_lshl_or_b32 v{vVoff}, v{vG}, 8, v{vVoff}         ; V: (l>>4)*4096 + (l&15)*16
    v_lshrrev_b32 v{vG}, 4, v{vG}                     ; g = l>>4
    s_lshr_b32 s{sW}, s{sW}, 6
    s_and_b32 s{sC}, s{sW}, 1
    s_lshr_b32 s{sJ}, s{sW}, 1
    s_lshl1_add_u32 s{sHead}, s{sG}, s{sC}
    s_lshl_b32 s{sH256}, s{sHead}, 8
    s_lshl_b32 s{sB}, s{sJ}, 5
    s_add_u32 s{sB1}, s{sB}, 256
    s_add_u32 s{sB}, s{sB}, s{sIdx}                  ; b0 = j*32 + idx
    s_lshl4_add_u32 s{sR}, s{sC}, s{sIdx}
    s_and_b32 s{sR}, s{sR}, 31                       ; r = (idx + 16c) % 32
    s_lshl_b32 s{sTmp}, s{sB}, 2
    s_add_u32 s{sTmp+1}, s{sB1}, s{sR}
    s_lshl_b32 s{sTmp+1}, s{sTmp+1}, 2
    s_lshr_b32 s{sTmp+2}, s{sR}, 1
    s_add_u32 s{sTmp+2}, s{sTmp+2}, s{sB1}
    s_lshl_b32 s{sTmp+2}, s{sTmp+2}, 2
    s_lshr_b32 s{sTmp+3}, s{sR}, 2
    s_add_u32 s{sTmp+3}, s{sTmp+3}, s{sB1}
    s_lshl_b32 s{sTmp+3}, s{sTmp+3}, 2
    s_lshl_b32 s{sR1}, s{sHead}, 9
    v_add_u32 v{vTmp}, s{sR1}, v{vTmp}
    s_mov_b32 s15, 0x20000
    s_waitcnt lgkmcnt(0)
    s_load_dword s{sCtx}, s[18:19], 0
    s_load_dword s{sBT}, s[16:17], s{sTmp}
    s_load_dword s{sBT+1}, s[16:17], s{sTmp+1}
    s_load_dword s{sBT+2}, s[16:17], s{sTmp+2}
    s_load_dword s{sBT+3}, s[16:17], s{sTmp+3}
    global_load_dwordx4 v[{vQ}:{vQ+3}], v{vTmp}, s[4:5]""")
    if "tlb" in xp:
        lim = 32 if "tlball" in xp else 2
        a(f"""    s_cmp_lg_u32 s{sW}, 1
    s_cbranch_scc1 L_notlb
    s_cmp_ge_u32 s{sIdx}, {lim}
    s_cbranch_scc1 L_notlb
    v_and_b32 v{vT+3}, 15, v0
    v_lshlrev_b32 v{vT+3}, 21, v{vT+3}
    s_lshl_b32 s{sTmp}, s2, 12
    s_mov_b32 s14, s10
    s_mov_b64 exec, 0xffff
    buffer_load_dword v110, v{vT+3}, s[12:15], s{sTmp} offen nt
    buffer_load_dword v111, v{vT+3}, s[8:11], s{sTmp} offen nt
    s_mov_b64 exec, -1
L_notlb:""")
    a(f"""    s_or_b32 s{sTmp+1}, s2, s{sW}
    s_cmp_lg_u32 s{sTmp+1}, 0
    s_cbranch_scc1 L_nolead
    s_memrealtime s[{sTmp+2}:{sTmp+3}]
    v_mov_b32 v{vT+2}, 0
    s_waitcnt lgkmcnt(0)
    s_lshr_b64 s[{sNc}:{sNc+1}], s[{sTmp+2}:{sTmp+3}], 20
    s_and_b32 s{sTmp+2}, s{sTmp+2}, 0xfffff
    s_and_b32 s{sNc}, s{sNc}, 0xfffff
    s_bitset1_b32 s{sTmp+2}, 31
    s_bitset1_b32 s{sNc}, 31
    v_mov_b32 v{vT}, s{sTmp+2}
    v_mov_b32 v{vT+1}, s{sNc}
    s_mov_b64 exec, 1
    global_store_dwordx2 v{vT+2}, v[{vT}:{vT+1}], s[22:23] sc1
    s_mov_b64 exec, -1
L_nolead:
    s_mov_b32 s{sTmp+2}, 0x{NEGINF:08x}
    s_mov_b32 s{sTmp+3}, 0x{f32bits(TMASK):08x}
    s_waitcnt lgkmcnt(0)
    s_max_i32 s{sCtx}, s{sCtx}, 0
    s_min_i32 s{sCtx}, s{sCtx}, 8192
    s_add_u32 s{sNblk}, s{sCtx}, 15
    s_lshr_b32 s{sNblk}, s{sNblk}, 4
    s_and_b32 s{sBT}, s{sBT}, 511
    s_cmp_lt_u32 s{sB}, s{sNblk}
    s_cselect_b32 s{sNR0}, s10, 0
    s_cselect_b32 s{sTmp}, s{sTmp+3}, s{sTmp+2}
    v_mov_b32 v{vMV}, s{sTmp}
    s_mov_b32 s{sSh}, 0""")
    if eq:
        a(f"""    s_cmp_lg_u32 s{sJ}, 7
    s_cbranch_scc1 L_whole
    s_cmpk_le_u32 s{sNblk}, 496
    s_cselect_b32 s{sSh}, 1, 0
    s_cselect_b32 s{sBT+1}, s{sBT+2}, s{sBT+1}
    s_cmpk_le_u32 s{sNblk}, 488
    s_cselect_b32 s{sSh}, 2, s{sSh}
    s_cselect_b32 s{sBT+1}, s{sBT+3}, s{sBT+1}
L_whole:""")
    a(f"""    s_and_b32 s{sBT+1}, s{sBT+1}, 511
    s_lshr_b32 s{sTmp}, s{sR}, s{sSh}
    s_add_u32 s{sB1}, s{sB1}, s{sTmp}
    s_lshl_b32 s{sTmp}, s{sTmp}, s{sSh}
    s_sub_u32 s{sTmp}, s{sR}, s{sTmp}
    s_lshr_b32 s{sOK}, 4, s{sSh}
    s_mul_i32 s{sTmp}, s{sTmp}, s{sOK}
    s_cmp_lt_u32 s{sB1}, s{sNblk}
    s_cselect_b32 s{sOK}, s{sOK}, 0
    s_lshl_b32 s{sR1}, s{sB1}, 2
    s_add_u32 s{sR1}, s{sR1}, s{sTmp}
    s_lshl_b32 s{sR1}, s{sR1}, 2
    s_sub_i32 s{sR1}, s{sCtx}, s{sR1}
    s_lshl_b32 s{sOff+4}, s{sBT+1}, 2
    s_add_u32 s{sOff+4}, s{sOff+4}, s{sTmp}
    s_lshl_b32 s{sOff+4}, s{sOff+4}, 14
    s_add_u32 s{sOff+4}, s{sOff+4}, s{sH256}
    s_add_u32 s{sOff+5}, s{sOff+4}, 0x4000
    s_add_u32 s{sOff+6}, s{sOff+4}, 0x8000
    s_add_u32 s{sOff+7}, s{sOff+4}, 0xc000
    s_lshl_b32 s{sOff}, s{sBT}, 16
    s_add_u32 s{sOff}, s{sOff}, s{sH256}
    s_add_u32 s{sOff+1}, s{sOff}, 0x4000
    s_add_u32 s{sOff+2}, s{sOff}, 0x8000
    s_add_u32 s{sOff+3}, s{sOff}, 0xc000
    s_cmp_eq_u32 s{sBT}, s{sB}
    s_cbranch_scc1 L_spec_ok
    s_waitcnt vmcnt(0)""")
    for i in range(4):
        a(f"    buffer_load_dwordx4 v[{vK+4*i}:{vK+4*i+3}], v{vKoff}, s[8:11], s{sOff+i} offen {kv}")
    a("L_spec_ok:")
    for i in range(4):
        q = 4 + i
        a(f"""    s_cmp_gt_u32 s{sOK}, {i}
    s_cselect_b32 s{sNR1+i}, 0x2000000, 0
    s_cselect_b32 s{sTmp}, s{sTmp+3}, s{sTmp+2}
    s_mov_b32 s10, s{sNR1+i}
    v_mov_b32 v{vMV+1+i}, s{sTmp}
    buffer_load_dwordx4 v[{vK+4*q}:{vK+4*q+3}], v{vKoff}, s[8:11], s{sOff+q} offen {kv}""")
    a(f"""    v_mov_b32 v{vT+5}, 0
    s_mov_b32 s14, s{sNR0}
    s_barrier
    s_cmp_gt_u32 s{sW}, 2
    s_cbranch_scc1 L_notag
    global_load_dwordx2 v[{vN}:{vN+1}], v{vT+5}, s[22:23] sc1
L_notag:""")
    for q in range(NQ):
        if q >= 4:
            a(f"    s_mov_b32 s14, s{sNR1+q-4}")
        a(f"    buffer_load_dwordx4 v[{vV+4*q}:{vV+4*q+3}], v{vVoff}, s[12:15], s{sOff+q} offen {kv}")
    a(f"""    s_lshl_b32 s{sTmp}, s{sHead}, 5
    s_add_u32 s{sTmp}, s{sTmp}, s{sIdx}
    s_mul_i32 s{sTmp}, s{sTmp}, {RS}
    v_and_b32 v{vPub}, 63, v0
    v_lshl_add_u32 v{vPub}, v{vPub}, 4, s{sTmp}
    v_and_b32 v{vPm}, 8, v0
    v_lshl_add_u32 v{vPm}, v{vPm}, 1, s{sTmp}
    s_cmp_ge_u32 s{sW}, 2
    s_cbranch_scc1 L_nodummy
    v_mov_b32 v{vO}, 0
    v_mov_b32 v{vO+1}, 0
    v_mov_b32 v{vO+2}, 0
    v_mov_b32 v{vO+3}, 0
    global_store_dwordx4 v{vPub}, v[{vO}:{vO+3}], s[24:25]
    s_mov_b64 exec, 0xff
    global_store_dwordx4 v{vPub}, v[{vO}:{vO+3}], s[24:25] offset:1024
    s_mov_b64 exec, -1
L_nodummy:""")
    stamp(2)
    a(f"""    v_mov_b32 v{vC}, 0x{f32bits(SCALE):08x}
    v_and_b32 v{vTmp}, 1, v0
    v_lshlrev_b32 v{vTmp}, 4, v{vTmp}
    s_mov_b32 s{sTmp}, 0xffff
    v_lshlrev_b32_e64 v{vTmp}, v{vTmp}, s{sTmp}        ; 0xffff << 16*(l&1)
    v_bfe_u32 v{vTmp+1}, v0, 1, 2
    v_cmp_eq_u32_e64 s[{sMask}:{sMask+1}], 0, v{vTmp+1}
    v_cmp_eq_u32_e64 s[{sMask+2}:{sMask+3}], 1, v{vTmp+1}
    v_cmp_eq_u32_e64 s[{sMask+4}:{sMask+5}], 2, v{vTmp+1}
    v_cmp_eq_u32_e64 s[{sMask+6}:{sMask+7}], 3, v{vTmp+1}
    v_bfe_u32 v{vLr}, v0, 3, 1
    v_lshlrev_b32 v{vLr}, 7, v{vLr}                   ; h*128
    v_cndmask_b32_e64 v{vAM}, 0, v{vTmp}, s[{sMask}:{sMask+1}]
    v_cndmask_b32_e64 v{vAM+1}, 0, v{vTmp}, s[{sMask+2}:{sMask+3}]
    v_cndmask_b32_e64 v{vAM+2}, 0, v{vTmp}, s[{sMask+4}:{sMask+5}]
    v_cndmask_b32_e64 v{vAM+3}, 0, v{vTmp}, s[{sMask+6}:{sMask+7}]
    s_lshl_b32 s{sTmp}, s{sC}, 8
    v_add_u32 v{vLr}, s{sTmp}, v{vLr}                ; + c*256
    s_lshl_b32 s{sTmp}, s{sJ}, 4
    v_lshl_add_u32 v{vLw}, v{vG}, 2, v{vLr}
    v_add_u32 v{vLw}, s{sTmp}, v{vLw}                ; + (j*4+g)*4
    v_and_b32 v{vTmp}, 7, v0
    v_lshl_add_u32 v{vLr}, v{vTmp}, 4, v{vLr}         ; + e*16
    v_lshlrev_b32 v{vOw}, 4, v0                      ; w*1024 + l*16
    s_movk_i32 s{sNc}, 0x3ff
    s_lshl_b32 s{sTmp}, s{sB}, 4
    s_sub_i32 s{sTmp}, s{sCtx}, s{sTmp}""")
    for u in range(2):
        a(f"    s_waitcnt vmcnt({12 if u == 0 else 8})")
        if u == 0:
            stamp(3)
        for i in range(4):
            q = 4 * u + i
            a(f"    v_mfma_f32_16x16x32_bf16 v[{vK+4*q}:{vK+4*q+3}], v[{vK+4*q}:{vK+4*q+3}], v[{vQ}:{vQ+3}], 0")
        sr = sTmp if u == 0 else sR1
        for i in range(4):
            if u == 1:
                a(f"    s_cmp_gt_u32 s{sOK}, {i}")
                a(f"    s_cselect_b32 s{sTmp}, s{sr}, 0")
                a(f"    v_cmp_gt_i32_e64 s[{sMask+2*i}:{sMask+2*i+1}], s{sTmp}, v{vG}")
            else:
                a(f"    v_cmp_gt_i32_e64 s[{sMask+2*i}:{sMask+2*i+1}], s{sr}, v{vG}")
            if i < 3:
                a(f"    s_sub_i32 s{sr}, s{sr}, 4")
        a("    s_nop 1" if u == 0 else "    s_nop 0")
        for step in range(4):
            for i in range(4):
                q = 4 * u + i
                op = "v_mul_f32_dpp" if step == 0 else "v_fmac_f32_dpp"
                a(f"    {op} v{vT+q}, v{vK+4*q+step}, v{vC} quad_perm:[{step},{step},{step},{step}] row_mask:0xf bank_mask:0xf")
        for i in range(4):
            q = 4 * u + i
            mv = vMV if u == 0 else vMV + 1 + i
            a(f"    v_cndmask_b32_e64 v{vT+q}, v{mv}, v{vT+q}, s[{sMask+2*i}:{sMask+2*i+1}]")
    a(f"    v_max3_f32 v{vM}, v{vT}, v{vT+1}, s{sTmp+3}")
    for q in range(2, NQ, 2):
        a(f"    v_max3_f32 v{vM}, v{vT+q}, v{vT+q+1}, v{vM}")
    a(f"""    ds_write_b32 v{vLw}, v{vM} offset:{LDS_MAX}
    v_and_b32 v{vTmp}, v{vN}, v{vN+1}
    v_lshrrev_b32 v{vS}, 10, v{vN}
    v_readfirstlane_b32 s{sOK}, v{vTmp}
    v_lshrrev_b32 v{vS+1}, 10, v{vN+1}
    s_waitcnt lgkmcnt(0)
    s_barrier""")
    stamp(4)
    a(f"""    ds_read_b128 v[{vK}:{vK+3}], v{vLr} offset:{LDS_MAX}
    s_waitcnt lgkmcnt(0)
    v_max3_f32 v{vM}, v{vK}, v{vK+1}, v{vK+2}
    v_max_f32 v{vM}, v{vM}, v{vK+3}
    s_nop 1
    v_max_f32_dpp v{vM}, v{vM}, v{vM} quad_perm:[1,0,3,2] row_mask:0xf bank_mask:0xf
    s_nop 1
    v_max_f32_dpp v{vM}, v{vM}, v{vM} quad_perm:[2,3,0,1] row_mask:0xf bank_mask:0xf
    s_nop 1
    v_max_f32_dpp v{vM}, v{vM}, v{vM} row_half_mirror row_mask:0xf bank_mask:0xf""")
    for q in range(NQ):
        a(f"    v_sub_f32 v{vT+q}, v{vT+q}, v{vM}")
    for q in range(NQ):
        a(f"    v_exp_f32 v{vT+q}, v{vT+q}")
    a(f"    v_mov_b32 v{vML}, v{vM}")
    a(f"    v_add_f32 v{vL}, v{vT}, v{vT+1}")
    for q in range(2, NQ):
        a(f"    v_add_f32 v{vL}, v{vL}, v{vT+q}")
    a(f"    ds_write_b32 v{vLw}, v{vL} offset:{LDS_L}")
    for q in range(NQ):
        a(f"    v_cvt_pk_bf16_f32 v{vT+q}, v{vT+q}, v{vT+q}")
    for q in range(NQ):
        for r in range(4):
            a(f"    v_and_b32 v{vK+4*q+r}, v{vAM+r}, v{vT+q}")
    a("    s_nop 0")
    for q in range(NQ):
        a(f"    s_waitcnt vmcnt({NQ-1-q})")
        c = "0" if q == 0 else f"v[{vO}:{vO+3}]"
        a(f"    v_mfma_f32_16x16x32_bf16 v[{vO}:{vO+3}], v[{vK+4*q}:{vK+4*q+3}], v[{vV+4*q}:{vV+4*q+3}], {c}")
    stamp(5)
    a(f"""    s_nop 7
    ds_write_b128 v{vOw}, v[{vO}:{vO+3}] offset:{LDS_O}
    s_waitcnt lgkmcnt(0)
    s_barrier
    s_cmp_gt_u32 s{sW}, 2
    s_cbranch_scc1 L_done
    s_cmp_lt_i32 s{sOK}, 0
    s_cbranch_scc0 L_waittag
L_tagok:
    s_cmp_eq_u32 s{sW}, 2
    s_cbranch_scc1 L_consume
    ds_read_b128 v[{vT}:{vT+3}], v{vLr} offset:{LDS_L}""")
    for j in range(1, 8):
        a(f"    ds_read_b128 v[{vK+4*j}:{vK+4*j+3}], v{vOw} offset:{LDS_O+2048*j}")
    a(f"""    s_waitcnt lgkmcnt(7)
    v_add_f32 v{vL}, v{vT}, v{vT+1}
    v_add_f32 v{vT+2}, v{vT+2}, v{vT+3}
    v_add_f32 v{vL}, v{vL}, v{vT+2}
    s_waitcnt lgkmcnt(6)
    v_pk_add_f32 v[{vO}:{vO+1}], v[{vO}:{vO+1}], v[{vK+4}:{vK+5}]
    v_pk_add_f32 v[{vO+2}:{vO+3}], v[{vO+2}:{vO+3}], v[{vK+6}:{vK+7}]
    v_add_f32_dpp v{vL}, v{vL}, v{vL} quad_perm:[1,0,3,2] row_mask:0xf bank_mask:0xf
    s_waitcnt lgkmcnt(5)
    v_pk_add_f32 v[{vO}:{vO+1}], v[{vO}:{vO+1}], v[{vK+8}:{vK+9}]
    v_pk_add_f32 v[{vO+2}:{vO+3}], v[{vO+2}:{vO+3}], v[{vK+10}:{vK+11}]
    v_add_f32_dpp v{vL}, v{vL}, v{vL} quad_perm:[2,3,0,1] row_mask:0xf bank_mask:0xf
    s_waitcnt lgkmcnt(4)
    v_pk_add_f32 v[{vO}:{vO+1}], v[{vO}:{vO+1}], v[{vK+12}:{vK+13}]
    v_pk_add_f32 v[{vO+2}:{vO+3}], v[{vO+2}:{vO+3}], v[{vK+14}:{vK+15}]
    v_add_f32_dpp v{vML+1}, v{vL}, v{vL} row_half_mirror row_mask:0xf bank_mask:0xf""")
    for j in range(4, 8):
        a(f"    s_waitcnt lgkmcnt({7-j})")
        a(f"    v_pk_add_f32 v[{vO}:{vO+1}], v[{vO}:{vO+1}], v[{vK+4*j}:{vK+4*j+1}]")
        a(f"    v_pk_add_f32 v[{vO+2}:{vO+3}], v[{vO+2}:{vO+3}], v[{vK+4*j+2}:{vK+4*j+3}]")
    a(f"""    v_bfi_b32 v{vO}, s{sNc}, v{vN}, v{vO}
    v_bfi_b32 v{vO+1}, s{sNc}, v{vS}, v{vO+1}
    v_bfi_b32 v{vO+2}, s{sNc}, v{vN+1}, v{vO+2}
    v_bfi_b32 v{vO+3}, s{sNc}, v{vS+1}, v{vO+3}
    global_store_dwordx4 v{vPub}, v[{vO}:{vO+3}], s[24:25]
    s_mov_b64 exec, 0x101
    global_store_dwordx4 v{vPm}, v[{vML}:{vML+3}], s[24:25] offset:1024
    s_mov_b64 exec, -1""")
    if stamps:
        stamp(3)
    a(f"""    s_add_u32 s{sTmp}, s24, {BOFF}
    s_addc_u32 s{sTmp+1}, s25, 0
    global_store_dwordx4 v{vPub}, v[{vO}:{vO+3}], s[{sTmp}:{sTmp+1}] sc1
    s_mov_b64 exec, 0x101
    global_store_dwordx4 v{vPm}, v[{vML}:{vML+3}], s[{sTmp}:{sTmp+1}] offset:1024 sc1
    s_mov_b64 exec, -1""")
    stamp(6)
    a(f"""    s_branch L_done
L_waittag:                                           ; rare: the leader had not published yet when the tag was read
    v_mov_b32 v{vTmp+1}, 0
    s_mov_b32 s{sCnt}, 0
L_waittag_loop:
    s_sleep 8
    global_load_dwordx2 v[{vN}:{vN+1}], v{vTmp+1}, s[22:23] sc1
    s_add_u32 s{sCnt}, s{sCnt}, 1
    s_waitcnt vmcnt(0)
    v_and_b32 v{vTmp}, v{vN}, v{vN+1}
    v_lshrrev_b32 v{vS}, 10, v{vN}
    v_readfirstlane_b32 s{sOK}, v{vTmp}
    v_lshrrev_b32 v{vS+1}, 10, v{vN+1}
    s_cmp_gt_u32 s{sCnt}, 20000
    s_cbranch_scc1 L_tagok
    s_cmp_lt_i32 s{sOK}, 0
    s_cbranch_scc0 L_waittag_loop
    s_branch L_tagok""")
    OP, ML, WT, AC = 40, 48, 56, 60
    vA1, vA2 = 1, 2
    sMs, sRo = 40, 44
    a(f"""L_consume:
    s_lshl_b32 s{sIn}, s{sG}, 5
    s_add_u32 s{sIn}, s{sIn}, s{sIdx}
    s_movk_i32 s{sTmp}, {RS}
    v_bfe_u32 v{vA2}, v0, 2, 4
    v_mul_u32_u24 v{vA2}, s{sTmp}, v{vA2}             ; p*RS,  p = l>>2
    v_and_b32 v{vTmp}, 3, v0
    v_lshlrev_b32 v{vTmp}, 4, v{vTmp}                 ; qd*16
    s_and_b32 s{sTmp+1}, s{sIn}, 15
    s_lshl_b32 s{sTmp+2}, s{sTmp+1}, 6
    v_add3_u32 v{vA1}, v{vA2}, v{vTmp}, s{sTmp+2}       ; + k*64 + qd*16
    s_lshr_b32 s{sTmp+2}, s{sTmp+1}, 3
    s_lshl_b32 s{sTmp+2}, s{sTmp+2}, 4
    v_add_u32 v{vA2}, s{sTmp+2}, v{vA2}               ; + h*16 (+1024)
    s_lshr_b32 s{sRo}, s{sIn}, 4
    s_mul_i32 s{sRo}, s{sRo}, {32*RS}
    s_add_u32 s{sRo+1}, s{sRo}, {16*RS}
    s_mov_b32 s8, s24
    s_mov_b32 s9, s25
    s_mov_b32 s10, {BOFF + 512*RS}
    s_mov_b32 s{sCnt}, 0
    s_mov_b64 s[{sMs}:{sMs+1}], -1
    s_mov_b64 s[{sMs+2}:{sMs+3}], -1
    s_branch L_pollA""")

    def poll_loads(tag, fl):
        for kk in range(2):
            a(f"""    s_mov_b64 exec, s[{sMs+2*kk}:{sMs+2*kk+1}]
    s_cbranch_execz L_skip{tag}{kk}
    buffer_load_dwordx4 v[{OP+4*kk}:{OP+4*kk+3}], v{vA1}, s[8:11], s{sRo+kk} offen {fl}
    buffer_load_dwordx4 v[{ML+4*kk}:{ML+4*kk+3}], v{vA2}, s[8:11], s{sRo+kk} offen offset:1024 {fl}
L_skip{tag}{kk}:""")

    a("L_pollB:\n    s_sleep 4")
    poll_loads("b", "sc1")
    a("    s_branch L_issued\nL_pollA:")
    poll_loads("a", "nt")
    a(f"""L_issued:
    s_mov_b64 exec, -1
    s_add_u32 s{sCnt}, s{sCnt}, 1
    s_cmp_gt_u32 s{sCnt}, 20000
    s_cbranch_scc1 L_got
    s_waitcnt vmcnt(0)""")
    for kk in range(2):
        o, m, t = OP + 4 * kk, ML + 4 * kk, 8 + 6 * kk
        a(f"""    v_xor_b32 v{t}, v{o}, v{vN}
    v_xor_b32 v{t+1}, v{o+1}, v{vS}
    v_xor_b32 v{t+2}, v{o+2}, v{vN+1}
    v_xor_b32 v{t+3}, v{o+3}, v{vS+1}
    v_xor_b32 v{t+4}, v{m+2}, v{vN}
    v_xor_b32 v{t+5}, v{m+3}, v{vN+1}""")
    for kk in range(2):
        t = 8 + 6 * kk
        a(f"    v_or3_b32 v{t}, v{t}, v{t+1}, v{t+2}")
    for kk in range(2):
        t = 8 + 6 * kk
        a(f"    v_or_b32 v{t}, v{t}, v{t+3}")
        a(f"    v_or_b32 v{t+4}, v{t+4}, v{t+5}")
    for kk in range(2):
        t = 8 + 6 * kk
        a(f"    v_and_or_b32 v{t}, v{t}, s{sNc}, v{t+4}")
    for kk in range(2):
        t = 8 + 6 * kk
        a(f"    v_cmp_ne_u32_e64 s[{sMs+2*kk}:{sMs+2*kk+1}], 0, v{t}")
    a(f"""    v_max_f32 v{vM}, v{ML}, v{ML+4}
    s_or_b64 s[{sTmp}:{sTmp+1}], s[{sMs}:{sMs+1}], s[{sMs+2}:{sMs+3}]
    s_cbranch_scc0 L_got
    s_cmp_lt_u32 s{sCnt}, {ra}
    s_cbranch_scc1 L_pollA
    s_cmp_lg_u32 s{sCnt}, {ra}
    s_cbranch_scc1 L_pollB
    s_add_u32 s{sRo}, s{sRo}, {BOFF}
    s_add_u32 s{sRo+1}, s{sRo+1}, {BOFF}
    s_branch L_pollB
L_got:""")
    stamp(6)
    a(f"""    ; output byte address: kvhead*512 + (k>>3)*256 + ((4k+qd)&15)*16 + ((k>>2)&1)*8 + component*2
    v_max_f32_dpp v{vM}, v{vM}, v{vM} row_ror:4 row_mask:0xf bank_mask:0xf
    s_lshr_b32 s{sTmp+2}, s{sIn}, 3
    s_lshl_b32 s{sTmp+2}, s{sTmp+2}, 8
    v_max_f32_dpp v{vM}, v{vM}, v{vM} row_ror:8 row_mask:0xf bank_mask:0xf
    s_and_b32 s{sTmp+3}, s{sIn}, 3
    v_mov_b32 v8, v{vM}
    s_lshl_b32 s{sTmp+3}, s{sTmp+3}, 6
    s_add_u32 s{sTmp+2}, s{sTmp+2}, s{sTmp+3}
    v_permlane16_swap_b32 v{vM}, v8
    s_bfe_u32 s{sTmp+3}, s{sIn}, 0x10002
    v_max_f32 v{vM}, v{vM}, v8
    v_mov_b32 v8, v{vM}
    s_lshl3_add_u32 s{sTmp+2}, s{sTmp+3}, s{sTmp+2}
    v_add_u32 v{vTmp}, s{sTmp+2}, v{vTmp}
    v_permlane32_swap_b32 v{vM}, v8
    v_bfe_u32 v9, v0, 4, 1
    v_max_f32 v{vM}, v{vM}, v8
    v_sub_f32 v{WT}, v{ML}, v{vM}
    v_sub_f32 v{WT+1}, v{ML+4}, v{vM}
    v_exp_f32 v{WT}, v{WT}
    v_exp_f32 v{WT+1}, v{WT+1}
    v_lshl_add_u32 v{vTmp}, v9, 2, v{vTmp}
    v_bfe_u32 v9, v0, 5, 1
    v_mul_f32 v{vL}, v{WT}, v{ML+1}
    v_mul_f32 v{AC}, v{WT}, v{OP}
    v_mul_f32 v{AC+1}, v{WT}, v{OP+1}
    v_mul_f32 v{AC+2}, v{WT}, v{OP+2}
    v_mul_f32 v{AC+3}, v{WT}, v{OP+3}
    v_fmac_f32 v{vL}, v{WT+1}, v{ML+5}
    v_fmac_f32 v{AC}, v{WT+1}, v{OP+4}
    v_fmac_f32 v{AC+1}, v{WT+1}, v{OP+5}
    v_fmac_f32 v{AC+2}, v{WT+1}, v{OP+6}
    v_fmac_f32 v{AC+3}, v{WT+1}, v{OP+7}
    v_mov_b32 v8, v{vL}
    v_lshl_add_u32 v{vTmp}, v9, 1, v{vTmp}
    v_permlane32_swap_b32 v{AC}, v{AC+1}
    v_permlane32_swap_b32 v{AC+2}, v{AC+3}
    v_permlane32_swap_b32 v{vL}, v8
    v_add_f32 v{AC}, v{AC}, v{AC+1}
    v_add_f32 v{AC+2}, v{AC+2}, v{AC+3}
    v_add_f32 v{vL}, v{vL}, v8
    v_mov_b32 v8, v{vL}
    s_mov_b32 s{sTmp+1}, 0x{f32bits(TMASK + 256.0):08x}
    v_permlane16_swap_b32 v{AC}, v{AC+2}
    v_cmp_ge_f32 vcc, s{sTmp+1}, v{vM}
    v_permlane16_swap_b32 v{vL}, v8
    v_add_f32 v{AC}, v{AC}, v{AC+2}
    v_add_f32 v{vL}, v{vL}, v8
    s_nop 0
    v_add_f32_dpp v{AC}, v{AC}, v{AC} row_ror:4 row_mask:0xf bank_mask:0xf
    v_add_f32_dpp v{vL}, v{vL}, v{vL} row_ror:4 row_mask:0xf bank_mask:0xf
    s_nop 0
    v_add_f32_dpp v{AC}, v{AC}, v{AC} row_ror:8 row_mask:0xf bank_mask:0xf
    v_add_f32_dpp v{vL}, v{vL}, v{vL} row_ror:8 row_mask:0xf bank_mask:0xf
    s_cbranch_vccnz L_slow
L_fin:
    v_rcp_f32 v{vL}, v{vL}
    s_mov_b32 exec_lo, 0x000f000f
    s_mov_b32 exec_hi, 0x000f000f
    v_mul_f32 v{AC}, v{AC}, v{vL}
    v_cvt_pk_bf16_f32 v{AC}, v{AC}, v{AC}
    global_store_short v{vTmp}, v{AC}, s[20:21]""")
    if timed:
        a("    s_mov_b64 exec, -1\n    s_waitcnt vmcnt(0)")
    stamp(7)
    if diag:
        ka, kb, mult = diag
        a(f"""    s_waitcnt lgkmcnt(0)
    s_sub_u32 s{sTmp}, s{sST+2*kb}, s{sST+2*ka}
    s_mul_i32 s{sTmp}, s{sTmp}, {mult}
    s_min_u32 s{sTmp}, s{sTmp}, 20000
    s_add_u32 s{sTmp}, s{sTmp}, s{sST+14}
L_spin:
    s_memrealtime s[{sTmp+2}:{sTmp+3}]
    s_waitcnt lgkmcnt(0)
    s_sub_u32 s{sTmp+1}, s{sTmp+2}, s{sTmp}
    s_cmp_lt_i32 s{sTmp+1}, 0
    s_cbranch_scc1 L_spin""")
    a("L_done:")
    if stamps:
        a(f"    s_waitcnt lgkmcnt(0) vmcnt(0)")
        a(f"    s_getreg_b32 s{sST+1}, hwreg(HW_REG_XCC_ID)")
        for k in range(8):
            a(f"    v_mov_b32 v{40+k}, s{sST+2*k}")
        a(f"    v_mov_b32 v48, s{sST+1}")
        a(f"    v_mov_b32 v49, s{sCnt}")
        a(f"""    s_lshl_b32 s{sTmp}, s2, 10
    s_lshl_b32 s{sTmp+1}, s{sW}, 6
    s_add_u32 s{sTmp}, s{sTmp}, s{sTmp+1}
    s_add_u32 s{sTmp}, s{sTmp}, 0x400000
    v_mov_b32 v50, s{sTmp}
    s_mov_b64 exec, 1
    global_store_dwordx4 v50, v[40:43], s[24:25]
    global_store_dwordx4 v50, v[44:47], s[24:25] offset:16
    global_store_dwordx2 v50, v[48:49], s[24:25] offset:32""")
    X = 64
    a(f"""L_exit:
    s_endpgm
L_slow:
    s_cmp_ge_u32 s{sNblk}, 512
    s_cbranch_scc1 L_fin
    s_lshr_b32 s{sTmp+1}, s{sIn}, 4
    s_lshl_b32 s{sTmp+1}, s{sTmp+1}, 8
    s_and_b32 s{sTmp}, s{sIn}, 3
    s_lshl_b32 s{sTmp}, s{sTmp}, 6
    s_add_u32 s{sTmp+1}, s{sTmp+1}, s{sTmp}
    s_bfe_u32 s{sTmp}, s{sIn}, 0x10002
    s_lshl3_add_u32 s{sTmp+1}, s{sTmp}, s{sTmp+1}
    v_bfe_u32 v{X}, v0, 2, 4
    v_lshlrev_b32 v{X}, 12, v{X}
    v_and_b32 v{X+1}, 3, v0
    v_lshlrev_b32 v{X+1}, 4, v{X+1}
    v_add3_u32 v{X}, v{X+1}, v{X}, s{sTmp+1}
    v_mov_b32 v{X+4}, 0
    v_mov_b32 v{X+5}, 0
    v_mov_b32 v{X+6}, 0
    v_mov_b32 v{X+7}, 0
    s_mov_b32 s14, 0x2000000
    s_mov_b32 s{sCnt}, s{sNblk}
L_slow_loop:
    s_lshl_b32 s{sTmp}, s{sCnt}, 2
    s_load_dword s{sTmp+2}, s[16:17], s{sTmp}
    s_waitcnt lgkmcnt(0)
    s_and_b32 s{sTmp+2}, s{sTmp+2}, 511
    s_lshl_b32 s{sTmp+2}, s{sTmp+2}, 16
    buffer_load_dwordx2 v[{X+2}:{X+3}], v{X}, s[12:15], s{sTmp+2} offen
    s_waitcnt vmcnt(0)
    v_lshlrev_b32 v{X+1}, 16, v{X+2}
    v_add_f32 v{X+4}, v{X+4}, v{X+1}
    v_and_b32 v{X+1}, 0xffff0000, v{X+2}
    v_add_f32 v{X+5}, v{X+5}, v{X+1}
    v_lshlrev_b32 v{X+1}, 16, v{X+3}
    v_add_f32 v{X+6}, v{X+6}, v{X+1}
    v_and_b32 v{X+1}, 0xffff0000, v{X+3}
    v_add_f32 v{X+7}, v{X+7}, v{X+1}
    s_add_u32 s{sCnt}, s{sCnt}, 1
    s_cmp_lt_u32 s{sCnt}, 512
    s_cbranch_scc1 L_slow_loop
    s_nop 1
    v_permlane32_swap_b32 v{X+4}, v{X+5}
    v_permlane32_swap_b32 v{X+6}, v{X+7}
    s_nop 1
    v_add_f32 v{X+4}, v{X+4}, v{X+5}
    v_add_f32 v{X+6}, v{X+6}, v{X+7}
    s_nop 1
    v_permlane16_swap_b32 v{X+4}, v{X+6}
    s_nop 1
    v_add_f32 v{X+4}, v{X+4}, v{X+6}
    s_nop 1
    v_add_f32_dpp v{X+4}, v{X+4}, v{X+4} row_ror:4 row_mask:0xf bank_mask:0xf
    s_nop 1
    v_add_f32_dpp v{X+4}, v{X+4}, v{X+4} row_ror:8 row_mask:0xf bank_mask:0xf
    v_sub_f32 v{X+1}, 0x{f32bits(TMASK):08x}, v{vM}
    v_exp_f32 v{X+1}, v{X+1}
    s_sub_u32 s{sTmp}, 512, s{sNblk}
    s_lshl_b32 s{sTmp}, s{sTmp}, 4
    v_cvt_f32_u32 v{X+2}, s{sTmp}
    v_fmac_f32 v{vL}, v{X+1}, v{X+2}
    v_fmac_f32 v{AC}, v{X+1}, v{X+4}
    s_branch L_fin""")
    a(descriptor(main, nv, 96))
    return a.text()


if __name__ == "__main__":
    ap = argparse.ArgumentParser()
    ap.add_argument("-o", default="/dev/stdout")
    ap.add_argument("--kv", default="nt")
    ap.add_argument("--stamps", action="store_true")
    ap.add_argument("--diag", default=None)
    ap.add_argument("--ra", type=int, default=48)
    ap.add_argument("--pf", type=int, default=28)
    ap.add_argument("--noeq", action="store_true")
    ap.add_argument("--xp", default="")
    x = ap.parse_args()
    open(x.o, "w").write(gen(kv=x.kv, stamps=x.stamps, ra=x.ra, pf=x.pf, eq=not x.noeq, xp=x.xp,
                             diag=tuple(int(t) for t in x.diag.split(",")) if x.diag else None))
```

```python
import struct, sys, math, argparse
from gen import HEADER, NAME, f32bits, SCALE, TMASK, NEGINF, Asm, descriptor

NQ = 8
RS = 1152
BOFF = 0x100000
LDS_MAX, LDS_L, LDS_O = 0, 512, 1024
LDS_CNT = LDS_O + 16 * 1024
LDS_BYTES = LDS_CNT + 16


def gen(kv="nt", stamps=False, diag=None, ra=48, pf=32, eq=True, xp=""):
    a = Asm()
    vKoff, vVoff, vG, vC, vLw, vM, vL = 1, 2, 3, 4, 5, 6, 7
    vQ, vAM, vO = 8, 12, 16
    vMV = 20
    vPub, vPm = 25, 26
    vLr, vOw, vTmp = 28, 29, 30
    vT, vK, vV = 32, 40, 72
    vML = 104
    vN = 106
    vS = 108
    vCa = 110
    nv = 112
    sW, sC, sIdx, sH256, sB, sCtx, sNblk = 3, 26, 27, 28, 29, 30, 31
    sBT = 32
    sG, sHead, sJ, sR = 36, 37, 38, 39
    sOff = 40
    sB1, sSh, sNR0, sOK = 48, 49, 50, 51
    sNR1 = 52
    sST = 56
    sR1 = 72
    sIn, sNc, sCnt = 73, 74, 76
    sTmp = 80
    sMask = 84
    main = f"{NAME}_kernel"
    timed = stamps or diag

    def stamp(k):
        if timed:
            a(f"    s_memrealtime s[{sST+2*k}:{sST+2*k+1}]")

    st1 = f"    s_memrealtime s[{sST+2}:{sST+3}]"
    st1a = st1 if "st1a" in xp else ""
    st1b = st1 if "st1b" in xp else ""
    pf_code = "" if not pf else f"""    v_cmp_gt_u32 vcc, {pf}, v0
    s_getpc_b64 s[{sTmp+2}:{sTmp+3}]
    v_lshlrev_b32 v{vT+3}, 7, v0
    s_and_saveexec_b64 s[{sMask}:{sMask+1}], vcc
    s_cbranch_execz L_nopf
    global_load_dword v27, v{vT+3}, s[{sTmp+2}:{sTmp+3}]
L_nopf:
    s_mov_b64 exec, -1"""
    a(HEADER.rstrip("\n"))
    a(f"; @launch grid=(256,1,1) block=(1024,1,1) lds={LDS_BYTES}")
    a(f""";
; Split-K decode attention, one launch.  Workgroup id -> group G = id % 8 (kv heads 2G, 2G+1), idx = id / 8.
.amdgcn_target "amdgcn-amd-amdhsa--gfx950"
.text
.globl {main}
.p2align 8
.type {main},@function
{main}:
    s_load_dwordx2 s[8:9], s[0:1], 8             ; K""")
    if timed:
        stamp(0)
    a(f"""    v_and_b32 v{vTmp}, 3, v0
    v_lshlrev_b32 v{vTmp}, 4, v{vTmp}
    v_and_b32 v{vG}, 48, v0
    v_lshl_or_b32 v{vTmp}, v{vG}, 2, v{vTmp}         ; 16-B chunk ((l>>4)*4 + (l&3))
    v_and_b32 v{vKoff}, 12, v0
    v_lshl_or_b32 v{vKoff}, v{vKoff}, 10, v{vTmp}     ; + token ((l>>2)&3)*4096
    v_and_b32 v{vT}, 64, v0
    v_lshl_or_b32 v{vT}, v{vT}, 2, v{vKoff}          ; + c*256
    v_lshrrev_b32 v{vT+1}, 7, v0
    v_lshl_or_b32 v{vT}, v{vT+1}, 21, v{vT}          ; + j*32 blocks
    s_and_b32 s{sG}, s2, 7
    s_lshr_b32 s{sIdx}, s2, 3
    s_lshl_b32 s{sOff}, s{sIdx}, 7
    s_add_u32 s{sOff}, s{sOff}, s{sG}
    s_lshl_b32 s{sOff}, s{sOff}, 9                   ; idx*65536 + 2G*256
    s_lshl_b32 s10, 1, 25
    s_lshl_b32 s11, 1, 17
    s_movk_i32 s{sTmp}, 0x4000
    s_waitcnt lgkmcnt(0)
{st1a}
    buffer_load_dwordx4 v[{vK}:{vK+3}], v{vT}, s[8:11], s{sOff} offen {kv}
    s_add_u32 s{sOff+1}, s{sOff}, s{sTmp}
    buffer_load_dwordx4 v[{vK+4}:{vK+7}], v{vT}, s[8:11], s{sOff+1} offen {kv}
    s_add_u32 s{sOff+2}, s{sOff+1}, s{sTmp}
    buffer_load_dwordx4 v[{vK+8}:{vK+11}], v{vT}, s[8:11], s{sOff+2} offen {kv}
    s_add_u32 s{sOff+3}, s{sOff+2}, s{sTmp}
    buffer_load_dwordx4 v[{vK+12}:{vK+15}], v{vT}, s[8:11], s{sOff+3} offen {kv}
{st1b}
    s_cmpk_ge_u32 s2, 0x100
    s_cbranch_scc1 L_exit
{pf_code}
    s_load_dwordx4 s[16:19], s[0:1], 24
    s_load_dwordx2 s[4:5], s[0:1], 0             ; q
    s_load_dwordx2 s[12:13], s[0:1], 16          ; V
    s_load_dwordx4 s[20:23], s[0:1], 40
    s_load_dwordx2 s[24:25], s[0:1], 56          ; ws
    v_readfirstlane_b32 s{sW}, v0""")
    if "st1" not in xp:
        stamp(1)
    if stamps:
        for k in range(2, 8):
            a(f"    s_mov_b32 s{sST+2*k}, 0")
        a(f"    s_mov_b32 s{sCnt}, 0")
    a(f"""    v_and_b32 v{vVoff}, 8, v0
    v_lshl_or_b32 v{vTmp}, v{vVoff}, 5, v{vTmp}        ; q: + h*256
    v_and_b32 v{vVoff}, 15, v0
    v_lshlrev_b32 v{vVoff}, 4, v{vVoff}
    v_lshl_or_b32 v{vVoff}, v{vG}, 8, v{vVoff}         ; V: (l>>4)*4096 + (l&15)*16
    v_lshrrev_b32 v{vG}, 4, v{vG}                     ; g = l>>4
    s_lshr_b32 s{sW}, s{sW}, 6
    s_and_b32 s{sC}, s{sW}, 1
    s_lshr_b32 s{sJ}, s{sW}, 1
    s_lshl1_add_u32 s{sHead}, s{sG}, s{sC}
    s_lshl_b32 s{sH256}, s{sHead}, 8
    s_lshl_b32 s{sB}, s{sJ}, 5
    s_add_u32 s{sB1}, s{sB}, 256
    s_add_u32 s{sB}, s{sB}, s{sIdx}                  ; b0 = j*32 + idx
    s_lshl4_add_u32 s{sR}, s{sC}, s{sIdx}
    s_and_b32 s{sR}, s{sR}, 31                       ; r = (idx + 16c) % 32
    s_lshl_b32 s{sTmp}, s{sB}, 2
    s_add_u32 s{sTmp+1}, s{sB1}, s{sR}
    s_lshl_b32 s{sTmp+1}, s{sTmp+1}, 2
    s_lshr_b32 s{sTmp+2}, s{sR}, 1
    s_add_u32 s{sTmp+2}, s{sTmp+2}, s{sB1}
    s_lshl_b32 s{sTmp+2}, s{sTmp+2}, 2
    s_lshr_b32 s{sTmp+3}, s{sR}, 2
    s_add_u32 s{sTmp+3}, s{sTmp+3}, s{sB1}
    s_lshl_b32 s{sTmp+3}, s{sTmp+3}, 2
    s_lshl_b32 s{sR1}, s{sHead}, 9
    v_add_u32 v{vTmp}, s{sR1}, v{vTmp}
    s_mov_b32 s15, 0x20000
    s_waitcnt lgkmcnt(0)
    s_load_dword s{sCtx}, s[18:19], 0
    s_load_dword s{sBT}, s[16:17], s{sTmp}
    s_load_dword s{sBT+1}, s[16:17], s{sTmp+1}
    s_load_dword s{sBT+2}, s[16:17], s{sTmp+2}
    s_load_dword s{sBT+3}, s[16:17], s{sTmp+3}
    global_load_dwordx4 v[{vQ}:{vQ+3}], v{vTmp}, s[4:5]""")
    a(f"""    s_or_b32 s{sTmp+1}, s2, s{sW}
    s_cmp_lg_u32 s{sTmp+1}, 0
    s_cbranch_scc1 L_nolead
    s_memrealtime s[{sTmp+2}:{sTmp+3}]
    v_mov_b32 v{vT+2}, 0
    s_waitcnt lgkmcnt(0)
    s_lshr_b64 s[{sNc}:{sNc+1}], s[{sTmp+2}:{sTmp+3}], 20
    s_and_b32 s{sTmp+2}, s{sTmp+2}, 0xfffff
    s_and_b32 s{sNc}, s{sNc}, 0xfffff
    s_bitset1_b32 s{sTmp+2}, 31
    s_bitset1_b32 s{sNc}, 31
    v_mov_b32 v{vT}, s{sTmp+2}
    v_mov_b32 v{vT+1}, s{sNc}
    s_mov_b64 exec, 1
    global_store_dwordx2 v{vT+2}, v[{vT}:{vT+1}], s[22:23] sc1
    s_mov_b64 exec, -1
L_nolead:
    s_mov_b32 s{sTmp+2}, 0x{NEGINF:08x}
    s_mov_b32 s{sTmp+3}, 0x{f32bits(TMASK):08x}
    s_waitcnt lgkmcnt(0)
    s_max_i32 s{sCtx}, s{sCtx}, 0
    s_min_i32 s{sCtx}, s{sCtx}, 8192
    s_add_u32 s{sNblk}, s{sCtx}, 15
    s_lshr_b32 s{sNblk}, s{sNblk}, 4
    s_and_b32 s{sBT}, s{sBT}, 511
    s_cmp_lt_u32 s{sB}, s{sNblk}
    s_cselect_b32 s{sNR0}, s10, 0
    s_cselect_b32 s{sTmp}, s{sTmp+3}, s{sTmp+2}
    v_mov_b32 v{vMV}, s{sTmp}
    s_mov_b32 s{sSh}, 0""")
    if eq:
        a(f"""    s_cmp_lg_u32 s{sJ}, 7
    s_cbranch_scc1 L_whole
    s_cmpk_le_u32 s{sNblk}, 496
    s_cselect_b32 s{sSh}, 1, 0
    s_cselect_b32 s{sBT+1}, s{sBT+2}, s{sBT+1}
    s_cmpk_le_u32 s{sNblk}, 488
    s_cselect_b32 s{sSh}, 2, s{sSh}
    s_cselect_b32 s{sBT+1}, s{sBT+3}, s{sBT+1}
L_whole:""")
    a(f"""    s_and_b32 s{sBT+1}, s{sBT+1}, 511
    s_lshr_b32 s{sTmp}, s{sR}, s{sSh}
    s_add_u32 s{sB1}, s{sB1}, s{sTmp}
    s_lshl_b32 s{sTmp}, s{sTmp}, s{sSh}
    s_sub_u32 s{sTmp}, s{sR}, s{sTmp}
    s_lshr_b32 s{sOK}, 4, s{sSh}
    s_mul_i32 s{sTmp}, s{sTmp}, s{sOK}
    s_cmp_lt_u32 s{sB1}, s{sNblk}
    s_cselect_b32 s{sOK}, s{sOK}, 0
    s_lshl_b32 s{sR1}, s{sB1}, 2
    s_add_u32 s{sR1}, s{sR1}, s{sTmp}
    s_lshl_b32 s{sR1}, s{sR1}, 2
    s_sub_i32 s{sR1}, s{sCtx}, s{sR1}
    s_lshl_b32 s{sOff+4}, s{sBT+1}, 2
    s_add_u32 s{sOff+4}, s{sOff+4}, s{sTmp}
    s_lshl_b32 s{sOff+4}, s{sOff+4}, 14
    s_add_u32 s{sOff+4}, s{sOff+4}, s{sH256}
    s_add_u32 s{sOff+5}, s{sOff+4}, 0x4000
    s_add_u32 s{sOff+6}, s{sOff+4}, 0x8000
    s_add_u32 s{sOff+7}, s{sOff+4}, 0xc000
    s_lshl_b32 s{sOff}, s{sBT}, 16
    s_add_u32 s{sOff}, s{sOff}, s{sH256}
    s_add_u32 s{sOff+1}, s{sOff}, 0x4000
    s_add_u32 s{sOff+2}, s{sOff}, 0x8000
    s_add_u32 s{sOff+3}, s{sOff}, 0xc000
    s_cmp_eq_u32 s{sBT}, s{sB}
    s_cbranch_scc1 L_spec_ok
    s_waitcnt vmcnt(0)""")
    for i in range(4):
        a(f"    buffer_load_dwordx4 v[{vK+4*i}:{vK+4*i+3}], v{vKoff}, s[8:11], s{sOff+i} offen {kv}")
    a("L_spec_ok:")
    for i in range(4):
        q = 4 + i
        a(f"""    s_cmp_gt_u32 s{sOK}, {i}
    s_cselect_b32 s{sNR1+i}, 0x2000000, 0
    s_cselect_b32 s{sTmp}, s{sTmp+3}, s{sTmp+2}
    s_mov_b32 s10, s{sNR1+i}
    v_mov_b32 v{vMV+1+i}, s{sTmp}
    buffer_load_dwordx4 v[{vK+4*q}:{vK+4*q+3}], v{vKoff}, s[8:11], s{sOff+q} offen {kv}""")
    a(f"""    v_mov_b32 v{vT+4}, 0
    v_mov_b32 v{vT+5}, 0
    s_mov_b32 s14, s{sNR0}
    s_mov_b64 exec, 1
    ds_write_b64 v{vT+5}, v[{vT+4}:{vT+5}] offset:{LDS_CNT}
    ds_write_b64 v{vT+5}, v[{vT+4}:{vT+5}] offset:{LDS_CNT+8}
    s_mov_b64 exec, -1
    s_waitcnt lgkmcnt(0)
    s_barrier
    s_cmp_gt_u32 s{sW}, 2
    s_cbranch_scc1 L_notag
    global_load_dwordx2 v[{vN}:{vN+1}], v{vT+5}, s[22:23] sc1
L_notag:""")
    for q in range(NQ):
        if q >= 4:
            a(f"    s_mov_b32 s14, s{sNR1+q-4}")
        a(f"    buffer_load_dwordx4 v[{vV+4*q}:{vV+4*q+3}], v{vVoff}, s[12:15], s{sOff+q} offen {kv}")
    a(f"""    s_lshl_b32 s{sTmp}, s{sHead}, 5
    s_add_u32 s{sTmp}, s{sTmp}, s{sIdx}
    s_mul_i32 s{sTmp}, s{sTmp}, {RS}
    v_and_b32 v{vPub}, 63, v0
    v_lshl_add_u32 v{vPub}, v{vPub}, 4, s{sTmp}
    v_and_b32 v{vPm}, 8, v0
    v_lshl_add_u32 v{vPm}, v{vPm}, 1, s{sTmp}
    s_cmp_ge_u32 s{sW}, 2
    s_cbranch_scc1 L_nodummy
    v_mov_b32 v{vO}, 0
    v_mov_b32 v{vO+1}, 0
    v_mov_b32 v{vO+2}, 0
    v_mov_b32 v{vO+3}, 0
    global_store_dwordx4 v{vPub}, v[{vO}:{vO+3}], s[24:25]
    s_mov_b64 exec, 0xff
    global_store_dwordx4 v{vPub}, v[{vO}:{vO+3}], s[24:25] offset:1024
    s_mov_b64 exec, -1
L_nodummy:""")
    stamp(2)
    a(f"""    v_mov_b32 v{vC}, 0x{f32bits(SCALE):08x}
    v_and_b32 v{vTmp}, 1, v0
    v_lshlrev_b32 v{vTmp}, 4, v{vTmp}
    s_mov_b32 s{sTmp}, 0xffff
    v_lshlrev_b32_e64 v{vTmp}, v{vTmp}, s{sTmp}        ; 0xffff << 16*(l&1)
    v_bfe_u32 v{vTmp+1}, v0, 1, 2
    v_cmp_eq_u32_e64 s[{sMask}:{sMask+1}], 0, v{vTmp+1}
    v_cmp_eq_u32_e64 s[{sMask+2}:{sMask+3}], 1, v{vTmp+1}
    v_cmp_eq_u32_e64 s[{sMask+4}:{sMask+5}], 2, v{vTmp+1}
    v_cmp_eq_u32_e64 s[{sMask+6}:{sMask+7}], 3, v{vTmp+1}
    v_bfe_u32 v{vLr}, v0, 3, 1
    v_lshlrev_b32 v{vLr}, 7, v{vLr}                   ; h*128
    v_cndmask_b32_e64 v{vAM}, 0, v{vTmp}, s[{sMask}:{sMask+1}]
    v_cndmask_b32_e64 v{vAM+1}, 0, v{vTmp}, s[{sMask+2}:{sMask+3}]
    v_cndmask_b32_e64 v{vAM+2}, 0, v{vTmp}, s[{sMask+4}:{sMask+5}]
    v_cndmask_b32_e64 v{vAM+3}, 0, v{vTmp}, s[{sMask+6}:{sMask+7}]
    s_lshl_b32 s{sTmp}, s{sC}, 8
    v_add_u32 v{vLr}, s{sTmp}, v{vLr}                ; + c*256
    s_lshl_b32 s{sTmp}, s{sJ}, 4
    v_lshl_add_u32 v{vLw}, v{vG}, 2, v{vLr}
    v_add_u32 v{vLw}, s{sTmp}, v{vLw}                ; + (j*4+g)*4
    v_and_b32 v{vTmp}, 7, v0
    v_lshl_add_u32 v{vLr}, v{vTmp}, 4, v{vLr}         ; + e*16
    v_lshlrev_b32 v{vOw}, 4, v0                      ; w*1024 + l*16
    s_movk_i32 s{sNc}, 0x3ff
{"    s_setprio 2" if "prio" in xp else ""}
    s_lshl_b32 s{sTmp}, s{sC}, 2
    v_mov_b32 v{vCa}, s{sTmp}
    v_mov_b32 v{vCa+1}, 1
    s_lshl_b32 s{sTmp}, s{sB}, 4
    s_sub_i32 s{sTmp}, s{sCtx}, s{sTmp}""")
    for u in range(2):
        a(f"    s_waitcnt vmcnt({12 if u == 0 else 8})")
        if u == 0:
            stamp(3)
        for i in range(4):
            q = 4 * u + i
            a(f"    v_mfma_f32_16x16x32_bf16 v[{vK+4*q}:{vK+4*q+3}], v[{vK+4*q}:{vK+4*q+3}], v[{vQ}:{vQ+3}], 0")
        sr = sTmp if u == 0 else sR1
        for i in range(4):
            if u == 1:
                a(f"    s_cmp_gt_u32 s{sOK}, {i}")
                a(f"    s_cselect_b32 s{sTmp}, s{sr}, 0")
                a(f"    v_cmp_gt_i32_e64 s[{sMask+2*i}:{sMask+2*i+1}], s{sTmp}, v{vG}")
            else:
                a(f"    v_cmp_gt_i32_e64 s[{sMask+2*i}:{sMask+2*i+1}], s{sr}, v{vG}")
            if i < 3:
                a(f"    s_sub_i32 s{sr}, s{sr}, 4")
        a("    s_nop 1" if u == 0 else "    s_nop 0")
        for step in range(4):
            for i in range(4):
                q = 4 * u + i
                op = "v_mul_f32_dpp" if step == 0 else "v_fmac_f32_dpp"
                a(f"    {op} v{vT+q}, v{vK+4*q+step}, v{vC} quad_perm:[{step},{step},{step},{step}] row_mask:0xf bank_mask:0xf")
        for i in range(4):
            q = 4 * u + i
            mv = vMV if u == 0 else vMV + 1 + i
            a(f"    v_cndmask_b32_e64 v{vT+q}, v{mv}, v{vT+q}, s[{sMask+2*i}:{sMask+2*i+1}]")
    a(f"    v_max3_f32 v{vM}, v{vT}, v{vT+1}, s{sTmp+3}")
    for q in range(2, NQ, 2):
        a(f"    v_max3_f32 v{vM}, v{vT+q}, v{vT+q+1}, v{vM}")
    a(f"""    ds_write_b32 v{vLw}, v{vM} offset:{LDS_MAX}
    v_and_b32 v{vTmp}, v{vN}, v{vN+1}
    v_lshrrev_b32 v{vS}, 10, v{vN}
    v_readfirstlane_b32 s{sOK}, v{vTmp}
    v_lshrrev_b32 v{vS+1}, 10, v{vN+1}
    s_waitcnt lgkmcnt(0)
    s_barrier""")
    stamp(4)
    a(f"""    ds_read_b128 v[{vK}:{vK+3}], v{vLr} offset:{LDS_MAX}
    s_waitcnt lgkmcnt(0)
    v_max3_f32 v{vM}, v{vK}, v{vK+1}, v{vK+2}
    v_max_f32 v{vM}, v{vM}, v{vK+3}
    s_nop 1
    v_max_f32_dpp v{vM}, v{vM}, v{vM} quad_perm:[1,0,3,2] row_mask:0xf bank_mask:0xf
    s_nop 1
    v_max_f32_dpp v{vM}, v{vM}, v{vM} quad_perm:[2,3,0,1] row_mask:0xf bank_mask:0xf
    s_nop 1
    v_max_f32_dpp v{vM}, v{vM}, v{vM} row_half_mirror row_mask:0xf bank_mask:0xf""")
    for q in range(NQ):
        a(f"    v_sub_f32 v{vT+q}, v{vT+q}, v{vM}")
    for q in range(NQ):
        a(f"    v_exp_f32 v{vT+q}, v{vT+q}")
    a(f"    v_mov_b32 v{vML}, v{vM}")
    a(f"    v_add_f32 v{vL}, v{vT}, v{vT+1}")
    for q in range(2, NQ):
        a(f"    v_add_f32 v{vL}, v{vL}, v{vT+q}")
    a(f"""    ds_write_b32 v{vLw}, v{vL} offset:{LDS_L}
    s_mov_b64 exec, 1
    ds_add_u32 v{vCa}, v{vCa+1} offset:{LDS_CNT+8}
    s_mov_b64 exec, -1""")
    for q in range(NQ):
        a(f"    v_cvt_pk_bf16_f32 v{vT+q}, v{vT+q}, v{vT+q}")
    a(f"""    s_cmp_gt_u32 s{sW}, 1
    s_cbranch_scc1 L_noml
{"    s_setprio 0" if "prio" in xp else ""}
L_arrl:
    ds_read_b32 v{vQ}, v{vCa} offset:{LDS_CNT+8}
    s_waitcnt lgkmcnt(0)
    v_readfirstlane_b32 s{sTmp}, v{vQ}
    s_cmp_lt_u32 s{sTmp}, 8
    s_cbranch_scc1 L_arrl
{"    s_setprio 2" if "prio" in xp else ""}
    ds_read_b128 v[{vQ}:{vQ+3}], v{vLr} offset:{LDS_L}
    s_waitcnt lgkmcnt(0)
    v_add_f32 v{vL}, v{vQ}, v{vQ+1}
    v_add_f32 v{vQ+2}, v{vQ+2}, v{vQ+3}
    v_add_f32 v{vL}, v{vL}, v{vQ+2}
    s_nop 1
    v_add_f32_dpp v{vL}, v{vL}, v{vL} quad_perm:[1,0,3,2] row_mask:0xf bank_mask:0xf
    s_nop 1
    v_add_f32_dpp v{vL}, v{vL}, v{vL} quad_perm:[2,3,0,1] row_mask:0xf bank_mask:0xf
    s_nop 1
    v_add_f32_dpp v{vML+1}, v{vL}, v{vL} row_half_mirror row_mask:0xf bank_mask:0xf
    s_mov_b64 exec, 0x101
    global_store_dwordx4 v{vPm}, v[{vML}:{vML+3}], s[24:25] offset:1024
    s_mov_b64 exec, -1""")

    def pv(extra):
        for q in range(NQ):
            for r in range(4):
                a(f"    v_and_b32 v{vK+4*q+r}, v{vAM+r}, v{vT+q}")
        a("    s_nop 0")
        for q in range(NQ):
            a(f"    s_waitcnt vmcnt({NQ-1-q+extra})")
            c = "0" if q == 0 else f"v[{vO}:{vO+3}]"
            a(f"    v_mfma_f32_16x16x32_bf16 v[{vO}:{vO+3}], v[{vK+4*q}:{vK+4*q+3}], v[{vV+4*q}:{vV+4*q+3}], {c}")
    pv(3)
    stamp(5)
    a("    s_branch L_tagchk\nL_noml:")
    pv(0)
    stamp(5)
    a(f"""    s_nop 7
    ds_write_b128 v{vOw}, v[{vO}:{vO+3}] offset:{LDS_O}
    s_mov_b64 exec, 1
    ds_add_u32 v{vCa}, v{vCa+1} offset:{LDS_CNT}
    s_mov_b64 exec, -1
    s_cmp_gt_u32 s{sW}, 2
    s_waitcnt lgkmcnt(0)
    s_cbranch_scc1 L_done
L_tagchk:
{"    s_setprio 0" if "prio" in xp else ""}
    s_cmp_lt_i32 s{sOK}, 0
    s_cbranch_scc0 L_waittag
L_tagok:
    s_cmp_eq_u32 s{sW}, 2
    s_cbranch_scc1 L_consume
L_arrive:
    ds_read_b32 v{vTmp+1}, v{vCa} offset:{LDS_CNT}
    s_waitcnt lgkmcnt(0)
    v_readfirstlane_b32 s{sTmp}, v{vTmp+1}
    s_cmp_lt_u32 s{sTmp}, 7
    s_cbranch_scc1 L_arrive
{"    s_setprio 3" if "prio" in xp else ""}
    ; ---- producer (wave c): sum the 8 waves of head c, publish""")
    for j in range(1, 8):
        a(f"    ds_read_b128 v[{vK+4*j}:{vK+4*j+3}], v{vOw} offset:{LDS_O+2048*j}")
    for j in range(1, 8):
        a(f"    s_waitcnt lgkmcnt({7-j})")
        a(f"    v_pk_add_f32 v[{vO}:{vO+1}], v[{vO}:{vO+1}], v[{vK+4*j}:{vK+4*j+1}]")
        a(f"    v_pk_add_f32 v[{vO+2}:{vO+3}], v[{vO+2}:{vO+3}], v[{vK+4*j+2}:{vK+4*j+3}]")
    a(f"""    v_bfi_b32 v{vO}, s{sNc}, v{vN}, v{vO}
    v_bfi_b32 v{vO+1}, s{sNc}, v{vS}, v{vO+1}
    v_bfi_b32 v{vO+2}, s{sNc}, v{vN+1}, v{vO+2}
    v_bfi_b32 v{vO+3}, s{sNc}, v{vS+1}, v{vO+3}
    global_store_dwordx4 v{vPub}, v[{vO}:{vO+3}], s[24:25]
    s_mov_b64 exec, 0x101
    global_store_dwordx4 v{vPm}, v[{vML}:{vML+3}], s[24:25] offset:1024
    s_mov_b64 exec, -1""")
    if stamps:
        stamp(3)
    a(f"""    s_add_u32 s{sTmp}, s24, {BOFF}
    s_addc_u32 s{sTmp+1}, s25, 0
    global_store_dwordx4 v{vPub}, v[{vO}:{vO+3}], s[{sTmp}:{sTmp+1}] sc1
    s_mov_b64 exec, 0x101
    global_store_dwordx4 v{vPm}, v[{vML}:{vML+3}], s[{sTmp}:{sTmp+1}] offset:1024 sc1
    s_mov_b64 exec, -1""")
    stamp(6)
    a(f"""    s_branch L_done
L_waittag:                                           ; rare: the leader had not published yet when the tag was read
    v_mov_b32 v{vTmp+1}, 0
    s_mov_b32 s{sCnt}, 0
L_waittag_loop:
    s_sleep 8
    global_load_dwordx2 v[{vN}:{vN+1}], v{vTmp+1}, s[22:23] sc1
    s_add_u32 s{sCnt}, s{sCnt}, 1
    s_waitcnt vmcnt(0)
    v_and_b32 v{vTmp}, v{vN}, v{vN+1}
    v_lshrrev_b32 v{vS}, 10, v{vN}
    v_readfirstlane_b32 s{sOK}, v{vTmp}
    v_lshrrev_b32 v{vS+1}, 10, v{vN+1}
    s_cmp_gt_u32 s{sCnt}, 20000
    s_cbranch_scc1 L_tagok
    s_cmp_lt_i32 s{sOK}, 0
    s_cbranch_scc0 L_waittag_loop
    s_branch L_tagok""")
    OP, ML, WT, AC, XO, TG = 40, 48, 56, 60, 72, 80
    vA1, vA2 = 1, 2
    sMs, sRo, sMm, sWd = 40, 44, 46, 50
    XS = 58
    a(f"""L_consume:
    s_lshl_b32 s{sIn}, s{sG}, 5
    s_add_u32 s{sIn}, s{sIn}, s{sIdx}
    s_movk_i32 s{sTmp}, {RS}
    v_bfe_u32 v{vA2}, v0, 2, 4
    v_mul_u32_u24 v{vA2}, s{sTmp}, v{vA2}             ; p*RS,  p = l>>2
    v_and_b32 v{vTmp}, 3, v0
    v_lshlrev_b32 v{vTmp}, 4, v{vTmp}                 ; qd*16
    s_and_b32 s{sTmp+1}, s{sIn}, 15
    s_lshl_b32 s{sTmp+2}, s{sTmp+1}, 6
    v_add3_u32 v{vA1}, v{vA2}, v{vTmp}, s{sTmp+2}       ; + k*64 + qd*16
    s_lshr_b32 s{sTmp+2}, s{sTmp+1}, 3
    s_lshl_b32 s{sTmp+2}, s{sTmp+2}, 4
    v_add_u32 v{vA2}, s{sTmp+2}, v{vA2}               ; + h*16 (+1024)
    s_lshr_b32 s{sRo}, s{sIn}, 4
    s_mul_i32 s{sRo}, s{sRo}, {32*RS}
    s_add_u32 s{sRo+1}, s{sRo}, {16*RS}
    s_mov_b32 s8, s24
    s_mov_b32 s9, s25
    s_mov_b32 s10, {BOFF + 512*RS}
    v_and_b32 v{TG}, 0x3ff, v{vN}
    v_and_b32 v{TG+1}, 0x3ff, v{vS}
    v_and_b32 v{TG+2}, 0x3ff, v{vN+1}
    v_and_b32 v{TG+3}, 0x3ff, v{vS+1}
    s_lshr_b32 s{sTmp+2}, s{sIn}, 3
    s_lshl_b32 s{sTmp+2}, s{sTmp+2}, 8
    s_and_b32 s{sTmp+3}, s{sIn}, 3
    s_lshl_b32 s{sTmp+3}, s{sTmp+3}, 6
    s_add_u32 s{sTmp+2}, s{sTmp+2}, s{sTmp+3}
    s_bfe_u32 s{sTmp+3}, s{sIn}, 0x10002
    s_lshl3_add_u32 s{sTmp+2}, s{sTmp+3}, s{sTmp+2}
    v_add_u32 v{vTmp}, s{sTmp+2}, v{vTmp}
    v_bfe_u32 v9, v0, 4, 1
    v_lshl_add_u32 v{vTmp}, v9, 2, v{vTmp}
    v_bfe_u32 v9, v0, 5, 1
    v_lshl_add_u32 v{vTmp}, v9, 1, v{vTmp}
    s_mov_b32 s{sCnt}, 0
    s_mov_b64 s[{sMs}:{sMs+1}], -1
    s_mov_b64 s[{sMs+2}:{sMs+3}], -1
    s_mov_b64 s[{sMm}:{sMm+1}], -1
    s_mov_b64 s[{sMm+2}:{sMm+3}], -1
    s_mov_b32 s{sWd}, 0
    s_branch L_pollA""")

    def poll_loads(tag, fl):
        for kk in range(2):
            a(f"""    s_mov_b64 exec, s[{sMs+2*kk}:{sMs+2*kk+1}]
    s_cbranch_execz L_skip{tag}{kk}
    buffer_load_dwordx4 v[{OP+4*kk}:{OP+4*kk+3}], v{vA1}, s[8:11], s{sRo+kk} offen {fl}
L_skip{tag}{kk}:
    s_mov_b64 exec, s[{sMm+2*kk}:{sMm+2*kk+1}]
    s_cbranch_execz L_skipm{tag}{kk}
    buffer_load_dwordx4 v[{ML+4*kk}:{ML+4*kk+3}], v{vA2}, s[8:11], s{sRo+kk} offen offset:1024 {fl}
L_skipm{tag}{kk}:""")

    a("L_pollB:\n    s_sleep 4")
    poll_loads("b", "sc1")
    a("    s_branch L_issued\nL_pollA:")
    poll_loads("a", "nt")
    a(f"""L_issued:
    s_mov_b64 exec, -1
    s_add_u32 s{sCnt}, s{sCnt}, 1
    s_cmp_gt_u32 s{sCnt}, 20000
    s_cbranch_scc1 L_got
    s_cmp_lg_u32 s{sWd}, 0
    s_waitcnt vmcnt(0)
    s_cbranch_scc1 L_chkO
    v_xor_b32 v8, v{ML+2}, v{vN}
    v_xor_b32 v9, v{ML+3}, v{vN+1}
    v_xor_b32 v10, v{ML+6}, v{vN}
    v_xor_b32 v11, v{ML+7}, v{vN+1}
    v_or_b32 v8, v8, v9
    v_or_b32 v10, v10, v11
    v_cmp_ne_u32_e64 s[{sMm}:{sMm+1}], 0, v8
    v_cmp_ne_u32_e64 s[{sMm+2}:{sMm+3}], 0, v10
    v_max_f32 v{vM}, v{ML}, v{ML+4}
    s_or_b64 s[{sTmp}:{sTmp+1}], s[{sMm}:{sMm+1}], s[{sMm+2}:{sMm+3}]
    s_cbranch_scc1 L_chkO
    s_mov_b32 s{sWd}, 1
    v_max_f32_dpp v{vM}, v{vM}, v{vM} row_ror:4 row_mask:0xf bank_mask:0xf
    s_nop 1
    v_max_f32_dpp v{vM}, v{vM}, v{vM} row_ror:8 row_mask:0xf bank_mask:0xf
    s_nop 0
    v_mov_b32 v8, v{vM}
    s_nop 1
    v_permlane16_swap_b32 v{vM}, v8
    s_nop 0
    v_max_f32 v{vM}, v{vM}, v8
    v_mov_b32 v8, v{vM}
    s_nop 1
    v_permlane32_swap_b32 v{vM}, v8
    s_nop 0
    v_max_f32 v{vM}, v{vM}, v8
    v_sub_f32 v{WT}, v{ML}, v{vM}
    v_sub_f32 v{WT+1}, v{ML+4}, v{vM}
    v_exp_f32 v{WT}, v{WT}
    v_exp_f32 v{WT+1}, v{WT+1}
    s_mov_b32 s{sTmp+1}, 0x{f32bits(TMASK + 256.0):08x}
    v_mul_f32 v{vL}, v{WT}, v{ML+1}
    v_fmac_f32 v{vL}, v{WT+1}, v{ML+5}
    v_cmp_ge_f32 vcc, s{sTmp+1}, v{vM}
    v_mov_b32 v8, v{vL}
    s_nop 1
    v_permlane32_swap_b32 v{vL}, v8
    s_nop 0
    v_add_f32 v{vL}, v{vL}, v8
    v_mov_b32 v8, v{vL}
    s_nop 1
    v_permlane16_swap_b32 v{vL}, v8
    s_nop 0
    v_add_f32 v{vL}, v{vL}, v8
    s_nop 1
    v_add_f32_dpp v{vL}, v{vL}, v{vL} row_ror:4 row_mask:0xf bank_mask:0xf
    s_nop 1
    v_add_f32_dpp v{vL}, v{vL}, v{vL} row_ror:8 row_mask:0xf bank_mask:0xf
    v_mov_b32 v{XS}, 0
    s_cbranch_vccnz L_slow
L_slow_ret:
    v_rcp_f32 v{vL}, v{vL}
    s_nop 0
    v_mul_f32 v{WT}, v{WT}, v{vL}
    v_mul_f32 v{WT+1}, v{WT+1}, v{vL}
    v_mul_f32 v{XS}, v{XS}, v{vL}
L_chkO:""")
    for kk in range(2):
        o, x = OP + 4 * kk, XO + 4 * kk
        for r in range(4):
            a(f"    v_xor_b32 v{x+r}, v{o+r}, v{TG+r}")
    a(f"""    v_or3_b32 v8, v{XO}, v{XO+1}, v{XO+2}
    v_or3_b32 v9, v{XO+4}, v{XO+5}, v{XO+6}
    v_or_b32 v8, v8, v{XO+3}
    v_or_b32 v9, v9, v{XO+7}
    v_and_b32 v8, 0x3ff, v8
    v_and_b32 v9, 0x3ff, v9
    v_cmp_ne_u32_e64 s[{sMs}:{sMs+1}], 0, v8
    v_cmp_ne_u32_e64 s[{sMs+2}:{sMs+3}], 0, v9
    v_mul_f32 v{AC}, v{WT}, v{XO}
    v_mul_f32 v{AC+1}, v{WT}, v{XO+1}
    s_or_b64 s[{sTmp}:{sTmp+1}], s[{sMs}:{sMs+1}], s[{sMs+2}:{sMs+3}]
    s_cbranch_scc1 L_again
    s_cmp_lg_u32 s{sWd}, 0
    s_cbranch_scc1 L_got
L_again:
    s_cmp_lt_u32 s{sCnt}, {ra}
    s_cbranch_scc1 L_pollA
    s_cmp_lg_u32 s{sCnt}, {ra}
    s_cbranch_scc1 L_pollB
    s_add_u32 s{sRo}, s{sRo}, {BOFF}
    s_add_u32 s{sRo+1}, s{sRo+1}, {BOFF}
    s_branch L_pollB
L_got:""")
    stamp(6)
    a(f"""    v_mul_f32 v{AC+2}, v{WT}, v{XO+2}
    v_mul_f32 v{AC+3}, v{WT}, v{XO+3}
    v_fmac_f32 v{AC}, v{WT+1}, v{XO+4}
    v_fmac_f32 v{AC+1}, v{WT+1}, v{XO+5}
    v_fmac_f32 v{AC+2}, v{WT+1}, v{XO+6}
    v_fmac_f32 v{AC+3}, v{WT+1}, v{XO+7}
    s_nop 0
    v_permlane32_swap_b32 v{AC}, v{AC+1}
    v_permlane32_swap_b32 v{AC+2}, v{AC+3}
    v_add_f32 v{AC}, v{AC}, v{AC+1}
    v_add_f32 v{AC+2}, v{AC+2}, v{AC+3}
    s_nop 1
    v_permlane16_swap_b32 v{AC}, v{AC+2}
    v_add_f32 v{AC}, v{AC}, v{AC+2}
    s_nop 1
    v_add_f32_dpp v{AC}, v{AC}, v{AC} row_ror:4 row_mask:0xf bank_mask:0xf
    s_nop 1
    v_add_f32_dpp v{AC}, v{AC}, v{AC} row_ror:8 row_mask:0xf bank_mask:0xf
    s_mov_b32 exec_lo, 0x000f000f
    s_mov_b32 exec_hi, 0x000f000f
    v_add_f32 v{AC}, v{AC}, v{XS}
    v_cvt_pk_bf16_f32 v{AC}, v{AC}, v{AC}
    global_store_short v{vTmp}, v{AC}, s[20:21]""")
    if timed:
        a("    s_mov_b64 exec, -1\n    s_waitcnt vmcnt(0)")
    stamp(7)
    if diag:
        ka, kb, mult = diag
        a(f"""    s_waitcnt lgkmcnt(0)
    s_sub_u32 s{sTmp}, s{sST+2*kb}, s{sST+2*ka}
    s_mul_i32 s{sTmp}, s{sTmp}, {mult}
    s_min_u32 s{sTmp}, s{sTmp}, 20000
    s_add_u32 s{sTmp}, s{sTmp}, s{sST+14}
L_spin:
    s_memrealtime s[{sTmp+2}:{sTmp+3}]
    s_waitcnt lgkmcnt(0)
    s_sub_u32 s{sTmp+1}, s{sTmp+2}, s{sTmp}
    s_cmp_lt_i32 s{sTmp+1}, 0
    s_cbranch_scc1 L_spin""")
    a("L_done:")
    if stamps:
        a(f"    s_waitcnt lgkmcnt(0) vmcnt(0)")
        a(f"    s_getreg_b32 s{sST+1}, hwreg(HW_REG_XCC_ID)")
        for k in range(8):
            a(f"    v_mov_b32 v{40+k}, s{sST+2*k}")
        a(f"    v_mov_b32 v48, s{sST+1}")
        a(f"    v_mov_b32 v49, s{sCnt}")
        a(f"""    s_lshl_b32 s{sTmp}, s2, 10
    s_lshl_b32 s{sTmp+1}, s{sW}, 6
    s_add_u32 s{sTmp}, s{sTmp}, s{sTmp+1}
    s_add_u32 s{sTmp}, s{sTmp}, 0x400000
    v_mov_b32 v50, s{sTmp}
    s_mov_b64 exec, 1
    global_store_dwordx4 v50, v[40:43], s[24:25]
    global_store_dwordx4 v50, v[44:47], s[24:25] offset:16
    global_store_dwordx2 v50, v[48:49], s[24:25] offset:32""")
    X = 88
    a(f"""L_exit:
    s_endpgm
L_slow:
    s_cmp_ge_u32 s{sNblk}, 512
    s_cbranch_scc1 L_slow_ret
    s_lshr_b32 s{sTmp+1}, s{sIn}, 4
    s_lshl_b32 s{sTmp+1}, s{sTmp+1}, 8
    s_and_b32 s{sTmp}, s{sIn}, 3
    s_lshl_b32 s{sTmp}, s{sTmp}, 6
    s_add_u32 s{sTmp+1}, s{sTmp+1}, s{sTmp}
    s_bfe_u32 s{sTmp}, s{sIn}, 0x10002
    s_lshl3_add_u32 s{sTmp+1}, s{sTmp}, s{sTmp+1}
    v_bfe_u32 v{X}, v0, 2, 4
    v_lshlrev_b32 v{X}, 12, v{X}
    v_and_b32 v{X+1}, 3, v0
    v_lshlrev_b32 v{X+1}, 4, v{X+1}
    v_add3_u32 v{X}, v{X+1}, v{X}, s{sTmp+1}
    v_mov_b32 v{X+4}, 0
    v_mov_b32 v{X+5}, 0
    v_mov_b32 v{X+6}, 0
    v_mov_b32 v{X+7}, 0
    s_mov_b32 s14, 0x2000000
    s_mov_b32 s{sOK}, s{sNblk}
L_slow_loop:
    s_lshl_b32 s{sTmp}, s{sOK}, 2
    s_load_dword s{sTmp+2}, s[16:17], s{sTmp}
    s_waitcnt lgkmcnt(0)
    s_and_b32 s{sTmp+2}, s{sTmp+2}, 511
    s_lshl_b32 s{sTmp+2}, s{sTmp+2}, 16
    buffer_load_dwordx2 v[{X+2}:{X+3}], v{X}, s[12:15], s{sTmp+2} offen
    s_waitcnt vmcnt(0)
    v_lshlrev_b32 v{X+1}, 16, v{X+2}
    v_add_f32 v{X+4}, v{X+4}, v{X+1}
    v_and_b32 v{X+1}, 0xffff0000, v{X+2}
    v_add_f32 v{X+5}, v{X+5}, v{X+1}
    v_lshlrev_b32 v{X+1}, 16, v{X+3}
    v_add_f32 v{X+6}, v{X+6}, v{X+1}
    v_and_b32 v{X+1}, 0xffff0000, v{X+3}
    v_add_f32 v{X+7}, v{X+7}, v{X+1}
    s_add_u32 s{sOK}, s{sOK}, 1
    s_cmp_lt_u32 s{sOK}, 512
    s_cbranch_scc1 L_slow_loop
    s_nop 1
    v_permlane32_swap_b32 v{X+4}, v{X+5}
    v_permlane32_swap_b32 v{X+6}, v{X+7}
    s_nop 1
    v_add_f32 v{X+4}, v{X+4}, v{X+5}
    v_add_f32 v{X+6}, v{X+6}, v{X+7}
    s_nop 1
    v_permlane16_swap_b32 v{X+4}, v{X+6}
    s_nop 1
    v_add_f32 v{X+4}, v{X+4}, v{X+6}
    s_nop 1
    v_add_f32_dpp v{X+4}, v{X+4}, v{X+4} row_ror:4 row_mask:0xf bank_mask:0xf
    s_nop 1
    v_add_f32_dpp v{X+4}, v{X+4}, v{X+4} row_ror:8 row_mask:0xf bank_mask:0xf
    v_sub_f32 v{X+1}, 0x{f32bits(TMASK):08x}, v{vM}
    v_exp_f32 v{X+1}, v{X+1}
    s_sub_u32 s{sTmp}, 512, s{sNblk}
    s_lshl_b32 s{sTmp}, s{sTmp}, 4
    v_cvt_f32_u32 v{X+2}, s{sTmp}
    v_fmac_f32 v{vL}, v{X+1}, v{X+2}
    v_mul_f32 v{XS}, v{X+1}, v{X+4}
    s_branch L_slow_ret""")
    a(descriptor(main, nv, 96))
    return a.text()


if __name__ == "__main__":
    ap = argparse.ArgumentParser()
    ap.add_argument("-o", default="/dev/stdout")
    ap.add_argument("--kv", default="nt")
    ap.add_argument("--stamps", action="store_true")
    ap.add_argument("--diag", default=None)
    ap.add_argument("--ra", type=int, default=48)
    ap.add_argument("--pf", type=int, default=32)
    ap.add_argument("--noeq", action="store_true")
    ap.add_argument("--xp", default="")
    x = ap.parse_args()
    open(x.o, "w").write(gen(kv=x.kv, stamps=x.stamps, ra=x.ra, pf=x.pf, eq=not x.noeq, xp=x.xp,
                             diag=tuple(int(t) for t in x.diag.split(",")) if x.diag else None))
```

```python
import struct, sys, math, argparse
from gen import HEADER, NAME, f32bits, SCALE, TMASK, NEGINF, Asm, descriptor

NQ = 8
RS = 1152
BOFF = 0x100000
LDS_MAX, LDS_L, LDS_O = 0, 512, 1024
LDS_BYTES = LDS_O + 16 * 1024


def gen(kv="nt", stamps=False, diag=None, ra=48, pf=28, eq=True, xp=""):
    a = Asm()
    vKoff, vVoff, vG, vC, vLw, vM, vL = 1, 2, 3, 4, 5, 6, 7
    vQ, vAM, vO = 8, 12, 16
    vMV = 20
    vPub, vPm = 25, 26
    vLr, vOw, vTmp = 28, 29, 30
    vT, vK, vV = 32, 40, 72
    vML = 104
    vN = 106
    vS = 108
    nv = 112
    sW, sC, sIdx, sH256, sB, sCtx, sNblk = 3, 26, 27, 28, 29, 30, 31
    sBT = 32
    sG, sHead, sJ, sR = 36, 37, 38, 39
    sOff = 40
    sB1, sSh, sNR0, sOK = 48, 49, 50, 51
    sNR1 = 52
    sST = 56
    sR1 = 72
    sIn, sNc, sCnt = 73, 74, 76
    sTmp = 80
    sMask = 84
    main = f"{NAME}_kernel"
    timed = stamps or diag

    def stamp(k):
        if timed:
            a(f"    s_memrealtime s[{sST+2*k}:{sST+2*k+1}]")

    st1 = f"    s_memrealtime s[{sST+2}:{sST+3}]"
    st1a = st1 if "st1a" in xp else ""
    st1b = st1 if "st1b" in xp else ""
    pf_code = "" if not pf else f"""    v_cmp_gt_u32 vcc, {pf}, v0
    s_getpc_b64 s[{sTmp+2}:{sTmp+3}]
    v_lshlrev_b32 v{vT+3}, 7, v0
    s_and_saveexec_b64 s[{sMask}:{sMask+1}], vcc
    s_cbranch_execz L_nopf
    global_load_dword v27, v{vT+3}, s[{sTmp+2}:{sTmp+3}]
L_nopf:
    s_mov_b64 exec, -1"""
    a(HEADER.rstrip("\n"))
    a(f"; @launch grid=(256,1,1) block=(1024,1,1) lds={LDS_BYTES}")
    a(f""";
; Split-K decode attention, one launch.  Workgroup id -> group G = id % 8 (kv heads 2G, 2G+1), idx = id / 8.
.amdgcn_target "amdgcn-amd-amdhsa--gfx950"
.text
.globl {main}
.p2align 8
.type {main},@function
{main}:
    s_load_dwordx2 s[8:9], s[0:1], 8             ; K""")
    if timed:
        stamp(0)
    a(f"""    v_and_b32 v{vTmp}, 3, v0
    v_lshlrev_b32 v{vTmp}, 4, v{vTmp}
    v_and_b32 v{vG}, 48, v0
    v_lshl_or_b32 v{vTmp}, v{vG}, 2, v{vTmp}         ; 16-B chunk ((l>>4)*4 + (l&3))
    v_and_b32 v{vKoff}, 12, v0
    v_lshl_or_b32 v{vKoff}, v{vKoff}, 10, v{vTmp}     ; + token ((l>>2)&3)*4096
    v_and_b32 v{vT}, 64, v0
    v_lshl_or_b32 v{vT}, v{vT}, 2, v{vKoff}          ; + c*256
    v_lshrrev_b32 v{vT+1}, 7, v0
    v_lshl_or_b32 v{vT}, v{vT+1}, 21, v{vT}          ; + j*32 blocks
    s_and_b32 s{sG}, s2, 7
    s_lshr_b32 s{sIdx}, s2, 3
    s_lshl_b32 s{sOff}, s{sIdx}, 7
    s_add_u32 s{sOff}, s{sOff}, s{sG}
    s_lshl_b32 s{sOff}, s{sOff}, 9                   ; idx*65536 + 2G*256
    s_lshl_b32 s10, 1, 25
    s_lshl_b32 s11, 1, 17
    s_movk_i32 s{sTmp}, 0x4000
    s_waitcnt lgkmcnt(0)
{st1a}
    buffer_load_dwordx4 v[{vK}:{vK+3}], v{vT}, s[8:11], s{sOff} offen {kv}
    s_add_u32 s{sOff+1}, s{sOff}, s{sTmp}
    buffer_load_dwordx4 v[{vK+4}:{vK+7}], v{vT}, s[8:11], s{sOff+1} offen {kv}
    s_add_u32 s{sOff+2}, s{sOff+1}, s{sTmp}
    buffer_load_dwordx4 v[{vK+8}:{vK+11}], v{vT}, s[8:11], s{sOff+2} offen {kv}
    s_add_u32 s{sOff+3}, s{sOff+2}, s{sTmp}
    buffer_load_dwordx4 v[{vK+12}:{vK+15}], v{vT}, s[8:11], s{sOff+3} offen {kv}
{st1b}
    s_cmpk_ge_u32 s2, 0x100
    s_cbranch_scc1 L_exit
{pf_code}
    s_load_dwordx4 s[16:19], s[0:1], 24
    s_load_dwordx2 s[4:5], s[0:1], 0             ; q
    s_load_dwordx2 s[12:13], s[0:1], 16          ; V
    s_load_dwordx4 s[20:23], s[0:1], 40
    s_load_dwordx2 s[24:25], s[0:1], 56          ; ws
    v_readfirstlane_b32 s{sW}, v0""")
    if "st1" not in xp:
        stamp(1)
    if stamps:
        for k in range(2, 8):
            a(f"    s_mov_b32 s{sST+2*k}, 0")
        a(f"    s_mov_b32 s{sCnt}, 0")
    a(f"""    v_and_b32 v{vVoff}, 8, v0
    v_lshl_or_b32 v{vTmp}, v{vVoff}, 5, v{vTmp}        ; q: + h*256
    v_and_b32 v{vVoff}, 15, v0
    v_lshlrev_b32 v{vVoff}, 4, v{vVoff}
    v_lshl_or_b32 v{vVoff}, v{vG}, 8, v{vVoff}         ; V: (l>>4)*4096 + (l&15)*16
    v_lshrrev_b32 v{vG}, 4, v{vG}                     ; g = l>>4
    s_lshr_b32 s{sW}, s{sW}, 6
    s_and_b32 s{sC}, s{sW}, 1
    s_lshr_b32 s{sJ}, s{sW}, 1
    s_lshl1_add_u32 s{sHead}, s{sG}, s{sC}
    s_lshl_b32 s{sH256}, s{sHead}, 8
    s_lshl_b32 s{sB}, s{sJ}, 5
    s_add_u32 s{sB1}, s{sB}, 256
    s_add_u32 s{sB}, s{sB}, s{sIdx}                  ; b0 = j*32 + idx
    s_lshl4_add_u32 s{sR}, s{sC}, s{sIdx}
    s_and_b32 s{sR}, s{sR}, 31                       ; r = (idx + 16c) % 32
    s_lshl_b32 s{sTmp}, s{sB}, 2
    s_add_u32 s{sTmp+1}, s{sB1}, s{sR}
    s_lshl_b32 s{sTmp+1}, s{sTmp+1}, 2
    s_lshr_b32 s{sTmp+2}, s{sR}, 1
    s_add_u32 s{sTmp+2}, s{sTmp+2}, s{sB1}
    s_lshl_b32 s{sTmp+2}, s{sTmp+2}, 2
    s_lshr_b32 s{sTmp+3}, s{sR}, 2
    s_add_u32 s{sTmp+3}, s{sTmp+3}, s{sB1}
    s_lshl_b32 s{sTmp+3}, s{sTmp+3}, 2
    s_lshl_b32 s{sR1}, s{sHead}, 9
    v_add_u32 v{vTmp}, s{sR1}, v{vTmp}
    s_mov_b32 s15, 0x20000
    s_waitcnt lgkmcnt(0)
    s_load_dword s{sCtx}, s[18:19], 0
    s_load_dword s{sBT}, s[16:17], s{sTmp}
    s_load_dword s{sBT+1}, s[16:17], s{sTmp+1}
    s_load_dword s{sBT+2}, s[16:17], s{sTmp+2}
    s_load_dword s{sBT+3}, s[16:17], s{sTmp+3}
    global_load_dwordx4 v[{vQ}:{vQ+3}], v{vTmp}, s[4:5]""")
    if "tlb" in xp:
        lim = 32 if "tlball" in xp else 2
        a(f"""    s_cmp_lg_u32 s{sW}, 1
    s_cbranch_scc1 L_notlb
    s_cmp_ge_u32 s{sIdx}, {lim}
    s_cbranch_scc1 L_notlb
    v_and_b32 v{vT+3}, 15, v0
    v_lshlrev_b32 v{vT+3}, 21, v{vT+3}
    s_lshl_b32 s{sTmp}, s2, 12
    s_mov_b32 s14, s10
    s_mov_b64 exec, 0xffff
    buffer_load_dword v110, v{vT+3}, s[12:15], s{sTmp} offen nt
    buffer_load_dword v111, v{vT+3}, s[8:11], s{sTmp} offen nt
    s_mov_b64 exec, -1
L_notlb:""")
    a(f"""    s_or_b32 s{sTmp+1}, s2, s{sW}
    s_cmp_lg_u32 s{sTmp+1}, 0
    s_cbranch_scc1 L_nolead
    s_memrealtime s[{sTmp+2}:{sTmp+3}]
    v_mov_b32 v{vT+2}, 0
    s_waitcnt lgkmcnt(0)
    s_lshr_b64 s[{sNc}:{sNc+1}], s[{sTmp+2}:{sTmp+3}], 20
    s_and_b32 s{sTmp+2}, s{sTmp+2}, 0xfffff
    s_and_b32 s{sNc}, s{sNc}, 0xfffff
    s_bitset1_b32 s{sTmp+2}, 31
    s_bitset1_b32 s{sNc}, 31
    v_mov_b32 v{vT}, s{sTmp+2}
    v_mov_b32 v{vT+1}, s{sNc}
    s_mov_b64 exec, 1
    global_store_dwordx2 v{vT+2}, v[{vT}:{vT+1}], s[22:23] sc1
    s_mov_b64 exec, -1
L_nolead:
    s_mov_b32 s{sTmp+2}, 0x{NEGINF:08x}
    s_mov_b32 s{sTmp+3}, 0x{f32bits(TMASK):08x}
    s_waitcnt lgkmcnt(0)
    s_max_i32 s{sCtx}, s{sCtx}, 0
    s_min_i32 s{sCtx}, s{sCtx}, 8192
    s_add_u32 s{sNblk}, s{sCtx}, 15
    s_lshr_b32 s{sNblk}, s{sNblk}, 4
    s_and_b32 s{sBT}, s{sBT}, 511
    s_cmp_lt_u32 s{sB}, s{sNblk}
    s_cselect_b32 s{sNR0}, s10, 0
    s_cselect_b32 s{sTmp}, s{sTmp+3}, s{sTmp+2}
    v_mov_b32 v{vMV}, s{sTmp}
    s_mov_b32 s{sSh}, 0""")
    if eq:
        a(f"""    s_cmp_lg_u32 s{sJ}, 7
    s_cbranch_scc1 L_whole
    s_cmpk_le_u32 s{sNblk}, 496
    s_cselect_b32 s{sSh}, 1, 0
    s_cselect_b32 s{sBT+1}, s{sBT+2}, s{sBT+1}
    s_cmpk_le_u32 s{sNblk}, 488
    s_cselect_b32 s{sSh}, 2, s{sSh}
    s_cselect_b32 s{sBT+1}, s{sBT+3}, s{sBT+1}
L_whole:""")
    a(f"""    s_and_b32 s{sBT+1}, s{sBT+1}, 511
    s_lshr_b32 s{sTmp}, s{sR}, s{sSh}
    s_add_u32 s{sB1}, s{sB1}, s{sTmp}
    s_lshl_b32 s{sTmp}, s{sTmp}, s{sSh}
    s_sub_u32 s{sTmp}, s{sR}, s{sTmp}
    s_lshr_b32 s{sOK}, 4, s{sSh}
    s_mul_i32 s{sTmp}, s{sTmp}, s{sOK}
    s_cmp_lt_u32 s{sB1}, s{sNblk}
    s_cselect_b32 s{sOK}, s{sOK}, 0
    s_lshl_b32 s{sR1}, s{sB1}, 2
    s_add_u32 s{sR1}, s{sR1}, s{sTmp}
    s_lshl_b32 s{sR1}, s{sR1}, 2
    s_sub_i32 s{sR1}, s{sCtx}, s{sR1}
    s_lshl_b32 s{sOff+4}, s{sBT+1}, 2
    s_add_u32 s{sOff+4}, s{sOff+4}, s{sTmp}
    s_lshl_b32 s{sOff+4}, s{sOff+4}, 14
    s_add_u32 s{sOff+4}, s{sOff+4}, s{sH256}
    s_add_u32 s{sOff+5}, s{sOff+4}, 0x4000
    s_add_u32 s{sOff+6}, s{sOff+4}, 0x8000
    s_add_u32 s{sOff+7}, s{sOff+4}, 0xc000
    s_lshl_b32 s{sOff}, s{sBT}, 16
    s_add_u32 s{sOff}, s{sOff}, s{sH256}
    s_add_u32 s{sOff+1}, s{sOff}, 0x4000
    s_add_u32 s{sOff+2}, s{sOff}, 0x8000
    s_add_u32 s{sOff+3}, s{sOff}, 0xc000
    s_cmp_eq_u32 s{sBT}, s{sB}
    s_cbranch_scc1 L_spec_ok
    s_waitcnt vmcnt(0)""")
    for i in range(4):
        a(f"    buffer_load_dwordx4 v[{vK+4*i}:{vK+4*i+3}], v{vKoff}, s[8:11], s{sOff+i} offen {kv}")
    a("L_spec_ok:")
    for i in range(4):
        q = 4 + i
        a(f"""    s_cmp_gt_u32 s{sOK}, {i}
    s_cselect_b32 s{sNR1+i}, 0x2000000, 0
    s_cselect_b32 s{sTmp}, s{sTmp+3}, s{sTmp+2}
    s_mov_b32 s10, s{sNR1+i}
    v_mov_b32 v{vMV+1+i}, s{sTmp}
    buffer_load_dwordx4 v[{vK+4*q}:{vK+4*q+3}], v{vKoff}, s[8:11], s{sOff+q} offen {kv}""")
    a(f"""    v_mov_b32 v{vT+5}, 0
    s_mov_b32 s14, s{sNR0}
    s_barrier
    s_cmp_gt_u32 s{sW}, 2
    s_cbranch_scc1 L_notag
    global_load_dwordx2 v[{vN}:{vN+1}], v{vT+5}, s[22:23] sc1
L_notag:""")
    for q in range(NQ):
        if q >= 4:
            a(f"    s_mov_b32 s14, s{sNR1+q-4}")
        a(f"    buffer_load_dwordx4 v[{vV+4*q}:{vV+4*q+3}], v{vVoff}, s[12:15], s{sOff+q} offen {kv}")
    a(f"""    s_lshl_b32 s{sTmp}, s{sHead}, 5
    s_add_u32 s{sTmp}, s{sTmp}, s{sIdx}
    s_mul_i32 s{sTmp}, s{sTmp}, {RS}
    v_and_b32 v{vPub}, 63, v0
    v_lshl_add_u32 v{vPub}, v{vPub}, 4, s{sTmp}
    v_and_b32 v{vPm}, 8, v0
    v_lshl_add_u32 v{vPm}, v{vPm}, 1, s{sTmp}
    s_cmp_ge_u32 s{sW}, 2
    s_cbranch_scc1 L_nodummy
    v_mov_b32 v{vO}, 0
    v_mov_b32 v{vO+1}, 0
    v_mov_b32 v{vO+2}, 0
    v_mov_b32 v{vO+3}, 0
    global_store_dwordx4 v{vPub}, v[{vO}:{vO+3}], s[24:25]
    s_mov_b64 exec, 0xff
    global_store_dwordx4 v{vPub}, v[{vO}:{vO+3}], s[24:25] offset:1024
    s_mov_b64 exec, -1
L_nodummy:""")
    stamp(2)
    a(f"""    v_mov_b32 v{vC}, 0x{f32bits(SCALE):08x}
    v_and_b32 v{vTmp}, 1, v0
    v_lshlrev_b32 v{vTmp}, 4, v{vTmp}
    s_mov_b32 s{sTmp}, 0xffff
    v_lshlrev_b32_e64 v{vTmp}, v{vTmp}, s{sTmp}        ; 0xffff << 16*(l&1)
    v_bfe_u32 v{vTmp+1}, v0, 1, 2
    v_cmp_eq_u32_e64 s[{sMask}:{sMask+1}], 0, v{vTmp+1}
    v_cmp_eq_u32_e64 s[{sMask+2}:{sMask+3}], 1, v{vTmp+1}
    v_cmp_eq_u32_e64 s[{sMask+4}:{sMask+5}], 2, v{vTmp+1}
    v_cmp_eq_u32_e64 s[{sMask+6}:{sMask+7}], 3, v{vTmp+1}
    v_bfe_u32 v{vLr}, v0, 3, 1
    v_lshlrev_b32 v{vLr}, 7, v{vLr}                   ; h*128
    v_cndmask_b32_e64 v{vAM}, 0, v{vTmp}, s[{sMask}:{sMask+1}]
    v_cndmask_b32_e64 v{vAM+1}, 0, v{vTmp}, s[{sMask+2}:{sMask+3}]
    v_cndmask_b32_e64 v{vAM+2}, 0, v{vTmp}, s[{sMask+4}:{sMask+5}]
    v_cndmask_b32_e64 v{vAM+3}, 0, v{vTmp}, s[{sMask+6}:{sMask+7}]
    s_lshl_b32 s{sTmp}, s{sC}, 8
    v_add_u32 v{vLr}, s{sTmp}, v{vLr}                ; + c*256
    s_lshl_b32 s{sTmp}, s{sJ}, 4
    v_lshl_add_u32 v{vLw}, v{vG}, 2, v{vLr}
    v_add_u32 v{vLw}, s{sTmp}, v{vLw}                ; + (j*4+g)*4
    v_and_b32 v{vTmp}, 7, v0
    v_lshl_add_u32 v{vLr}, v{vTmp}, 4, v{vLr}         ; + e*16
    v_lshlrev_b32 v{vOw}, 4, v0                      ; w*1024 + l*16
    s_movk_i32 s{sNc}, 0x3ff
    s_lshl_b32 s{sTmp}, s{sB}, 4
    s_sub_i32 s{sTmp}, s{sCtx}, s{sTmp}""")
    for u in range(2):
        a(f"    s_waitcnt vmcnt({12 if u == 0 else 8})")
        if u == 0:
            stamp(3)
        for i in range(4):
            q = 4 * u + i
            a(f"    v_mfma_f32_16x16x32_bf16 v[{vK+4*q}:{vK+4*q+3}], v[{vK+4*q}:{vK+4*q+3}], v[{vQ}:{vQ+3}], 0")
        sr = sTmp if u == 0 else sR1
        for i in range(4):
            if u == 1:
                a(f"    s_cmp_gt_u32 s{sOK}, {i}")
                a(f"    s_cselect_b32 s{sTmp}, s{sr}, 0")
                a(f"    v_cmp_gt_i32_e64 s[{sMask+2*i}:{sMask+2*i+1}], s{sTmp}, v{vG}")
            else:
                a(f"    v_cmp_gt_i32_e64 s[{sMask+2*i}:{sMask+2*i+1}], s{sr}, v{vG}")
            if i < 3:
                a(f"    s_sub_i32 s{sr}, s{sr}, 4")
        a("    s_nop 1" if u == 0 else "    s_nop 0")
        for step in range(4):
            for i in range(4):
                q = 4 * u + i
                op = "v_mul_f32_dpp" if step == 0 else "v_fmac_f32_dpp"
                a(f"    {op} v{vT+q}, v{vK+4*q+step}, v{vC} quad_perm:[{step},{step},{step},{step}] row_mask:0xf bank_mask:0xf")
        for i in range(4):
            q = 4 * u + i
            mv = vMV if u == 0 else vMV + 1 + i
            a(f"    v_cndmask_b32_e64 v{vT+q}, v{mv}, v{vT+q}, s[{sMask+2*i}:{sMask+2*i+1}]")
    a(f"    v_max3_f32 v{vM}, v{vT}, v{vT+1}, s{sTmp+3}")
    for q in range(2, NQ, 2):
        a(f"    v_max3_f32 v{vM}, v{vT+q}, v{vT+q+1}, v{vM}")
    a(f"""    ds_write_b32 v{vLw}, v{vM} offset:{LDS_MAX}
    v_and_b32 v{vTmp}, v{vN}, v{vN+1}
    v_lshrrev_b32 v{vS}, 10, v{vN}
    v_readfirstlane_b32 s{sOK}, v{vTmp}
    v_lshrrev_b32 v{vS+1}, 10, v{vN+1}
    s_waitcnt lgkmcnt(0)
    s_barrier""")
    stamp(4)
    a(f"""    ds_read_b128 v[{vK}:{vK+3}], v{vLr} offset:{LDS_MAX}
    s_waitcnt lgkmcnt(0)
    v_max3_f32 v{vM}, v{vK}, v{vK+1}, v{vK+2}
    v_max_f32 v{vM}, v{vM}, v{vK+3}
    s_nop 1
    v_max_f32_dpp v{vM}, v{vM}, v{vM} quad_perm:[1,0,3,2] row_mask:0xf bank_mask:0xf
    s_nop 1
    v_max_f32_dpp v{vM}, v{vM}, v{vM} quad_perm:[2,3,0,1] row_mask:0xf bank_mask:0xf
    s_nop 1
    v_max_f32_dpp v{vM}, v{vM}, v{vM} row_half_mirror row_mask:0xf bank_mask:0xf""")
    for q in range(NQ):
        a(f"    v_sub_f32 v{vT+q}, v{vT+q}, v{vM}")
    for q in range(NQ):
        a(f"    v_exp_f32 v{vT+q}, v{vT+q}")
    a(f"    v_mov_b32 v{vML}, v{vM}")
    a(f"    v_add_f32 v{vL}, v{vT}, v{vT+1}")
    for q in range(2, NQ):
        a(f"    v_add_f32 v{vL}, v{vL}, v{vT+q}")
    a(f"    ds_write_b32 v{vLw}, v{vL} offset:{LDS_L}")
    for q in range(NQ):
        a(f"    v_cvt_pk_bf16_f32 v{vT+q}, v{vT+q}, v{vT+q}")
    for q in range(NQ):
        for r in range(4):
            a(f"    v_and_b32 v{vK+4*q+r}, v{vAM+r}, v{vT+q}")
    a("    s_nop 0")
    for q in range(NQ):
        a(f"    s_waitcnt vmcnt({NQ-1-q})")
        c = "0" if q == 0 else f"v[{vO}:{vO+3}]"
        a(f"    v_mfma_f32_16x16x32_bf16 v[{vO}:{vO+3}], v[{vK+4*q}:{vK+4*q+3}], v[{vV+4*q}:{vV+4*q+3}], {c}")
    stamp(5)
    a(f"""    s_nop 7
    ds_write_b128 v{vOw}, v[{vO}:{vO+3}] offset:{LDS_O}
    s_waitcnt lgkmcnt(0)
    s_barrier
    s_cmp_gt_u32 s{sW}, 2
    s_cbranch_scc1 L_done
    s_cmp_lt_i32 s{sOK}, 0
    s_cbranch_scc0 L_waittag
L_tagok:
    s_cmp_eq_u32 s{sW}, 2
    s_cbranch_scc1 L_consume
    ds_read_b128 v[{vT}:{vT+3}], v{vLr} offset:{LDS_L}""")
    for j in range(1, 8):
        a(f"    ds_read_b128 v[{vK+4*j}:{vK+4*j+3}], v{vOw} offset:{LDS_O+2048*j}")
    a(f"""    s_waitcnt lgkmcnt(7)
    v_add_f32 v{vL}, v{vT}, v{vT+1}
    v_add_f32 v{vT+2}, v{vT+2}, v{vT+3}
    v_add_f32 v{vL}, v{vL}, v{vT+2}
    s_waitcnt lgkmcnt(6)
    v_pk_add_f32 v[{vO}:{vO+1}], v[{vO}:{vO+1}], v[{vK+4}:{vK+5}]
    v_pk_add_f32 v[{vO+2}:{vO+3}], v[{vO+2}:{vO+3}], v[{vK+6}:{vK+7}]
    v_add_f32_dpp v{vL}, v{vL}, v{vL} quad_perm:[1,0,3,2] row_mask:0xf bank_mask:0xf
    s_waitcnt lgkmcnt(5)
    v_pk_add_f32 v[{vO}:{vO+1}], v[{vO}:{vO+1}], v[{vK+8}:{vK+9}]
    v_pk_add_f32 v[{vO+2}:{vO+3}], v[{vO+2}:{vO+3}], v[{vK+10}:{vK+11}]
    v_add_f32_dpp v{vL}, v{vL}, v{vL} quad_perm:[2,3,0,1] row_mask:0xf bank_mask:0xf
    s_waitcnt lgkmcnt(4)
    v_pk_add_f32 v[{vO}:{vO+1}], v[{vO}:{vO+1}], v[{vK+12}:{vK+13}]
    v_pk_add_f32 v[{vO+2}:{vO+3}], v[{vO+2}:{vO+3}], v[{vK+14}:{vK+15}]
    v_add_f32_dpp v{vML+1}, v{vL}, v{vL} row_half_mirror row_mask:0xf bank_mask:0xf""")
    for j in range(4, 8):
        a(f"    s_waitcnt lgkmcnt({7-j})")
        a(f"    v_pk_add_f32 v[{vO}:{vO+1}], v[{vO}:{vO+1}], v[{vK+4*j}:{vK+4*j+1}]")
        a(f"    v_pk_add_f32 v[{vO+2}:{vO+3}], v[{vO+2}:{vO+3}], v[{vK+4*j+2}:{vK+4*j+3}]")
    a(f"""    v_bfi_b32 v{vO}, s{sNc}, v{vN}, v{vO}
    v_bfi_b32 v{vO+1}, s{sNc}, v{vS}, v{vO+1}
    v_bfi_b32 v{vO+2}, s{sNc}, v{vN+1}, v{vO+2}
    v_bfi_b32 v{vO+3}, s{sNc}, v{vS+1}, v{vO+3}
    global_store_dwordx4 v{vPub}, v[{vO}:{vO+3}], s[24:25]
    s_mov_b64 exec, 0x101
    global_store_dwordx4 v{vPm}, v[{vML}:{vML+3}], s[24:25] offset:1024
    s_mov_b64 exec, -1""")
    if stamps:
        stamp(3)
    a(f"""    s_add_u32 s{sTmp}, s24, {BOFF}
    s_addc_u32 s{sTmp+1}, s25, 0
    global_store_dwordx4 v{vPub}, v[{vO}:{vO+3}], s[{sTmp}:{sTmp+1}] sc1
    s_mov_b64 exec, 0x101
    global_store_dwordx4 v{vPm}, v[{vML}:{vML+3}], s[{sTmp}:{sTmp+1}] offset:1024 sc1
    s_mov_b64 exec, -1""")
    stamp(6)
    a(f"""    s_branch L_done
L_waittag:                                           ; rare: the leader had not published yet when the tag was read
    v_mov_b32 v{vTmp+1}, 0
    s_mov_b32 s{sCnt}, 0
L_waittag_loop:
    s_sleep 8
    global_load_dwordx2 v[{vN}:{vN+1}], v{vTmp+1}, s[22:23] sc1
    s_add_u32 s{sCnt}, s{sCnt}, 1
    s_waitcnt vmcnt(0)
    v_and_b32 v{vTmp}, v{vN}, v{vN+1}
    v_lshrrev_b32 v{vS}, 10, v{vN}
    v_readfirstlane_b32 s{sOK}, v{vTmp}
    v_lshrrev_b32 v{vS+1}, 10, v{vN+1}
    s_cmp_gt_u32 s{sCnt}, 20000
    s_cbranch_scc1 L_tagok
    s_cmp_lt_i32 s{sOK}, 0
    s_cbranch_scc0 L_waittag_loop
    s_branch L_tagok""")
    OP, ML, WT, AC, XO, TG = 40, 48, 56, 60, 72, 80
    vA1, vA2 = 1, 2
    sMs, sRo = 40, 44
    a(f"""L_consume:
    s_lshl_b32 s{sIn}, s{sG}, 5
    s_add_u32 s{sIn}, s{sIn}, s{sIdx}
    s_movk_i32 s{sTmp}, {RS}
    v_bfe_u32 v{vA2}, v0, 2, 4
    v_mul_u32_u24 v{vA2}, s{sTmp}, v{vA2}             ; p*RS,  p = l>>2
    v_and_b32 v{vTmp}, 3, v0
    v_lshlrev_b32 v{vTmp}, 4, v{vTmp}                 ; qd*16
    s_and_b32 s{sTmp+1}, s{sIn}, 15
    s_lshl_b32 s{sTmp+2}, s{sTmp+1}, 6
    v_add3_u32 v{vA1}, v{vA2}, v{vTmp}, s{sTmp+2}       ; + k*64 + qd*16
    s_lshr_b32 s{sTmp+2}, s{sTmp+1}, 3
    s_lshl_b32 s{sTmp+2}, s{sTmp+2}, 4
    v_add_u32 v{vA2}, s{sTmp+2}, v{vA2}               ; + h*16 (+1024)
    s_lshr_b32 s{sRo}, s{sIn}, 4
    s_mul_i32 s{sRo}, s{sRo}, {32*RS}
    s_add_u32 s{sRo+1}, s{sRo}, {16*RS}
    s_mov_b32 s8, s24
    s_mov_b32 s9, s25
    s_mov_b32 s10, {BOFF + 512*RS}
    v_and_b32 v{TG}, 0x3ff, v{vN}
    v_and_b32 v{TG+1}, 0x3ff, v{vS}
    v_and_b32 v{TG+2}, 0x3ff, v{vN+1}
    v_and_b32 v{TG+3}, 0x3ff, v{vS+1}
    s_mov_b32 s{sCnt}, 0
    s_mov_b64 s[{sMs}:{sMs+1}], -1
    s_mov_b64 s[{sMs+2}:{sMs+3}], -1
    s_branch L_pollA""")

    def poll_loads(tag, fl):
        for kk in range(2):
            a(f"""    s_mov_b64 exec, s[{sMs+2*kk}:{sMs+2*kk+1}]
    s_cbranch_execz L_skip{tag}{kk}
    buffer_load_dwordx4 v[{OP+4*kk}:{OP+4*kk+3}], v{vA1}, s[8:11], s{sRo+kk} offen {fl}
    buffer_load_dwordx4 v[{ML+4*kk}:{ML+4*kk+3}], v{vA2}, s[8:11], s{sRo+kk} offen offset:1024 {fl}
L_skip{tag}{kk}:""")

    a("L_pollB:\n    s_sleep 4")
    poll_loads("b", "sc1")
    a("    s_branch L_issued\nL_pollA:")
    poll_loads("a", "nt")
    a(f"""L_issued:
    s_mov_b64 exec, -1
    s_add_u32 s{sCnt}, s{sCnt}, 1
    s_cmp_gt_u32 s{sCnt}, 20000
    s_cbranch_scc1 L_got
    s_waitcnt vmcnt(0)""")
    for kk in range(2):
        o, m, x, t = OP + 4 * kk, ML + 4 * kk, XO + 4 * kk, 8 + 4 * kk
        for r in range(4):
            a(f"    v_xor_b32 v{x+r}, v{o+r}, v{TG+r}")
        a(f"    v_xor_b32 v{t+1}, v{m+2}, v{vN}")
        a(f"    v_xor_b32 v{t+2}, v{m+3}, v{vN+1}")
    for kk in range(2):
        x, t = XO + 4 * kk, 8 + 4 * kk
        a(f"    v_or3_b32 v{t}, v{x}, v{x+1}, v{x+2}")
    for kk in range(2):
        x, t = XO + 4 * kk, 8 + 4 * kk
        a(f"    v_or_b32 v{t}, v{t}, v{x+3}")
        a(f"    v_or_b32 v{t+1}, v{t+1}, v{t+2}")
    for kk in range(2):
        t = 8 + 4 * kk
        a(f"    v_and_or_b32 v{t}, v{t}, s{sNc}, v{t+1}")
    for kk in range(2):
        t = 8 + 4 * kk
        a(f"    v_cmp_ne_u32_e64 s[{sMs+2*kk}:{sMs+2*kk+1}], 0, v{t}")
    OP = XO
    a(f"""    v_max_f32 v{vM}, v{ML}, v{ML+4}
    s_or_b64 s[{sTmp}:{sTmp+1}], s[{sMs}:{sMs+1}], s[{sMs+2}:{sMs+3}]
    s_cbranch_scc0 L_got
    s_cmp_lt_u32 s{sCnt}, {ra}
    s_cbranch_scc1 L_pollA
    s_cmp_lg_u32 s{sCnt}, {ra}
    s_cbranch_scc1 L_pollB
    s_add_u32 s{sRo}, s{sRo}, {BOFF}
    s_add_u32 s{sRo+1}, s{sRo+1}, {BOFF}
    s_branch L_pollB
L_got:""")
    stamp(6)
    a(f"""    ; output byte address: kvhead*512 + (k>>3)*256 + ((4k+qd)&15)*16 + ((k>>2)&1)*8 + component*2
    v_max_f32_dpp v{vM}, v{vM}, v{vM} row_ror:4 row_mask:0xf bank_mask:0xf
    s_lshr_b32 s{sTmp+2}, s{sIn}, 3
    s_lshl_b32 s{sTmp+2}, s{sTmp+2}, 8
    v_max_f32_dpp v{vM}, v{vM}, v{vM} row_ror:8 row_mask:0xf bank_mask:0xf
    s_and_b32 s{sTmp+3}, s{sIn}, 3
    v_mov_b32 v8, v{vM}
    s_lshl_b32 s{sTmp+3}, s{sTmp+3}, 6
    s_add_u32 s{sTmp+2}, s{sTmp+2}, s{sTmp+3}
    v_permlane16_swap_b32 v{vM}, v8
    s_bfe_u32 s{sTmp+3}, s{sIn}, 0x10002
    v_max_f32 v{vM}, v{vM}, v8
    v_mov_b32 v8, v{vM}
    s_lshl3_add_u32 s{sTmp+2}, s{sTmp+3}, s{sTmp+2}
    v_add_u32 v{vTmp}, s{sTmp+2}, v{vTmp}
    v_permlane32_swap_b32 v{vM}, v8
    v_bfe_u32 v9, v0, 4, 1
    v_max_f32 v{vM}, v{vM}, v8
    v_sub_f32 v{WT}, v{ML}, v{vM}
    v_sub_f32 v{WT+1}, v{ML+4}, v{vM}
    v_exp_f32 v{WT}, v{WT}
    v_exp_f32 v{WT+1}, v{WT+1}
    v_lshl_add_u32 v{vTmp}, v9, 2, v{vTmp}
    v_bfe_u32 v9, v0, 5, 1
    v_mul_f32 v{vL}, v{WT}, v{ML+1}
    v_mul_f32 v{AC}, v{WT}, v{OP}
    v_mul_f32 v{AC+1}, v{WT}, v{OP+1}
    v_mul_f32 v{AC+2}, v{WT}, v{OP+2}
    v_mul_f32 v{AC+3}, v{WT}, v{OP+3}
    v_fmac_f32 v{vL}, v{WT+1}, v{ML+5}
    v_fmac_f32 v{AC}, v{WT+1}, v{OP+4}
    v_fmac_f32 v{AC+1}, v{WT+1}, v{OP+5}
    v_fmac_f32 v{AC+2}, v{WT+1}, v{OP+6}
    v_fmac_f32 v{AC+3}, v{WT+1}, v{OP+7}
    v_mov_b32 v8, v{vL}
    v_lshl_add_u32 v{vTmp}, v9, 1, v{vTmp}
    v_permlane32_swap_b32 v{AC}, v{AC+1}
    v_permlane32_swap_b32 v{AC+2}, v{AC+3}
    v_permlane32_swap_b32 v{vL}, v8
    v_add_f32 v{AC}, v{AC}, v{AC+1}
    v_add_f32 v{AC+2}, v{AC+2}, v{AC+3}
    v_add_f32 v{vL}, v{vL}, v8
    v_mov_b32 v8, v{vL}
    s_mov_b32 s{sTmp+1}, 0x{f32bits(TMASK + 256.0):08x}
    v_permlane16_swap_b32 v{AC}, v{AC+2}
    v_cmp_ge_f32 vcc, s{sTmp+1}, v{vM}
    v_permlane16_swap_b32 v{vL}, v8
    v_add_f32 v{AC}, v{AC}, v{AC+2}
    v_add_f32 v{vL}, v{vL}, v8
    s_nop 0
    v_add_f32_dpp v{AC}, v{AC}, v{AC} row_ror:4 row_mask:0xf bank_mask:0xf
    v_add_f32_dpp v{vL}, v{vL}, v{vL} row_ror:4 row_mask:0xf bank_mask:0xf
    s_nop 0
    v_add_f32_dpp v{AC}, v{AC}, v{AC} row_ror:8 row_mask:0xf bank_mask:0xf
    v_add_f32_dpp v{vL}, v{vL}, v{vL} row_ror:8 row_mask:0xf bank_mask:0xf
    s_cbranch_vccnz L_slow
L_fin:
    v_rcp_f32 v{vL}, v{vL}
    s_mov_b32 exec_lo, 0x000f000f
    s_mov_b32 exec_hi, 0x000f000f
    v_mul_f32 v{AC}, v{AC}, v{vL}
    v_cvt_pk_bf16_f32 v{AC}, v{AC}, v{AC}
    global_store_short v{vTmp}, v{AC}, s[20:21]""")
    if timed:
        a("    s_mov_b64 exec, -1\n    s_waitcnt vmcnt(0)")
    stamp(7)
    if diag:
        ka, kb, mult = diag
        a(f"""    s_waitcnt lgkmcnt(0)
    s_sub_u32 s{sTmp}, s{sST+2*kb}, s{sST+2*ka}
    s_mul_i32 s{sTmp}, s{sTmp}, {mult}
    s_min_u32 s{sTmp}, s{sTmp}, 20000
    s_add_u32 s{sTmp}, s{sTmp}, s{sST+14}
L_spin:
    s_memrealtime s[{sTmp+2}:{sTmp+3}]
    s_waitcnt lgkmcnt(0)
    s_sub_u32 s{sTmp+1}, s{sTmp+2}, s{sTmp}
    s_cmp_lt_i32 s{sTmp+1}, 0
    s_cbranch_scc1 L_spin""")
    a("L_done:")
    if stamps:
        a(f"    s_waitcnt lgkmcnt(0) vmcnt(0)")
        a(f"    s_getreg_b32 s{sST+1}, hwreg(HW_REG_XCC_ID)")
        for k in range(8):
            a(f"    v_mov_b32 v{40+k}, s{sST+2*k}")
        a(f"    v_mov_b32 v48, s{sST+1}")
        a(f"    v_mov_b32 v49, s{sCnt}")
        a(f"""    s_lshl_b32 s{sTmp}, s2, 10
    s_lshl_b32 s{sTmp+1}, s{sW}, 6
    s_add_u32 s{sTmp}, s{sTmp}, s{sTmp+1}
    s_add_u32 s{sTmp}, s{sTmp}, 0x400000
    v_mov_b32 v50, s{sTmp}
    s_mov_b64 exec, 1
    global_store_dwordx4 v50, v[40:43], s[24:25]
    global_store_dwordx4 v50, v[44:47], s[24:25] offset:16
    global_store_dwordx2 v50, v[48:49], s[24:25] offset:32""")
    X = 88
    a(f"""L_exit:
    s_endpgm
L_slow:
    s_cmp_ge_u32 s{sNblk}, 512
    s_cbranch_scc1 L_fin
    s_lshr_b32 s{sTmp+1}, s{sIn}, 4
    s_lshl_b32 s{sTmp+1}, s{sTmp+1}, 8
    s_and_b32 s{sTmp}, s{sIn}, 3
    s_lshl_b32 s{sTmp}, s{sTmp}, 6
    s_add_u32 s{sTmp+1}, s{sTmp+1}, s{sTmp}
    s_bfe_u32 s{sTmp}, s{sIn}, 0x10002
    s_lshl3_add_u32 s{sTmp+1}, s{sTmp}, s{sTmp+1}
    v_bfe_u32 v{X}, v0, 2, 4
    v_lshlrev_b32 v{X}, 12, v{X}
    v_and_b32 v{X+1}, 3, v0
    v_lshlrev_b32 v{X+1}, 4, v{X+1}
    v_add3_u32 v{X}, v{X+1}, v{X}, s{sTmp+1}
    v_mov_b32 v{X+4}, 0
    v_mov_b32 v{X+5}, 0
    v_mov_b32 v{X+6}, 0
    v_mov_b32 v{X+7}, 0
    s_mov_b32 s14, 0x2000000
    s_mov_b32 s{sCnt}, s{sNblk}
L_slow_loop:
    s_lshl_b32 s{sTmp}, s{sCnt}, 2
    s_load_dword s{sTmp+2}, s[16:17], s{sTmp}
    s_waitcnt lgkmcnt(0)
    s_and_b32 s{sTmp+2}, s{sTmp+2}, 511
    s_lshl_b32 s{sTmp+2}, s{sTmp+2}, 16
    buffer_load_dwordx2 v[{X+2}:{X+3}], v{X}, s[12:15], s{sTmp+2} offen
    s_waitcnt vmcnt(0)
    v_lshlrev_b32 v{X+1}, 16, v{X+2}
    v_add_f32 v{X+4}, v{X+4}, v{X+1}
    v_and_b32 v{X+1}, 0xffff0000, v{X+2}
    v_add_f32 v{X+5}, v{X+5}, v{X+1}
    v_lshlrev_b32 v{X+1}, 16, v{X+3}
    v_add_f32 v{X+6}, v{X+6}, v{X+1}
    v_and_b32 v{X+1}, 0xffff0000, v{X+3}
    v_add_f32 v{X+7}, v{X+7}, v{X+1}
    s_add_u32 s{sCnt}, s{sCnt}, 1
    s_cmp_lt_u32 s{sCnt}, 512
    s_cbranch_scc1 L_slow_loop
    s_nop 1
    v_permlane32_swap_b32 v{X+4}, v{X+5}
    v_permlane32_swap_b32 v{X+6}, v{X+7}
    s_nop 1
    v_add_f32 v{X+4}, v{X+4}, v{X+5}
    v_add_f32 v{X+6}, v{X+6}, v{X+7}
    s_nop 1
    v_permlane16_swap_b32 v{X+4}, v{X+6}
    s_nop 1
    v_add_f32 v{X+4}, v{X+4}, v{X+6}
    s_nop 1
    v_add_f32_dpp v{X+4}, v{X+4}, v{X+4} row_ror:4 row_mask:0xf bank_mask:0xf
    s_nop 1
    v_add_f32_dpp v{X+4}, v{X+4}, v{X+4} row_ror:8 row_mask:0xf bank_mask:0xf
    v_sub_f32 v{X+1}, 0x{f32bits(TMASK):08x}, v{vM}
    v_exp_f32 v{X+1}, v{X+1}
    s_sub_u32 s{sTmp}, 512, s{sNblk}
    s_lshl_b32 s{sTmp}, s{sTmp}, 4
    v_cvt_f32_u32 v{X+2}, s{sTmp}
    v_fmac_f32 v{vL}, v{X+1}, v{X+2}
    v_fmac_f32 v{AC}, v{X+1}, v{X+4}
    s_branch L_fin""")
    a(descriptor(main, nv, 96))
    return a.text()


if __name__ == "__main__":
    ap = argparse.ArgumentParser()
    ap.add_argument("-o", default="/dev/stdout")
    ap.add_argument("--kv", default="nt")
    ap.add_argument("--stamps", action="store_true")
    ap.add_argument("--diag", default=None)
    ap.add_argument("--ra", type=int, default=48)
    ap.add_argument("--pf", type=int, default=28)
    ap.add_argument("--noeq", action="store_true")
    ap.add_argument("--xp", default="")
    x = ap.parse_args()
    open(x.o, "w").write(gen(kv=x.kv, stamps=x.stamps, ra=x.ra, pf=x.pf, eq=not x.noeq, xp=x.xp,
                             diag=tuple(int(t) for t in x.diag.split(",")) if x.diag else None))
```

```python
import struct, sys, math, argparse
from gen import HEADER, NAME, f32bits, SCALE, TMASK, NEGINF, Asm, descriptor

NQ = 8
RS = 1152
BOFF = 0x100000
LDS_MAX, LDS_L, LDS_O = 0, 512, 1024
LDS_BYTES = LDS_O + 16 * 1024


def gen(kv="nt", stamps=False, diag=None, ra=24, pf=29, eq=True, xp="", E=8):
    a = Asm()
    vKoff, vVoff, vG, vC, vLw, vM, vL = 1, 2, 3, 4, 5, 6, 7
    vQ, vAM, vO = 8, 12, 16
    vMV = 20
    vPub, vPm = 25, 26
    vLr, vOw, vTmp = 28, 29, 30
    vT, vK, vV = 32, 40, 72
    vML = 104
    vN = 106
    vS = 108
    nv = 112
    sW, sC, sIdx, sH256, sB, sCtx, sNblk = 3, 26, 27, 28, 29, 30, 31
    sBT = 32
    sG, sHead, sJ, sR = 36, 37, 38, 39
    sOff = 40
    sB1, sSh, sNR0, sOK = 48, 49, 50, 51
    sNR1 = 52
    sST = 56
    sR1 = 72
    sIn, sNc, sCnt = 73, 74, 76
    sTmp = 80
    sMask = 84
    main = f"{NAME}_kernel"
    timed = stamps or diag

    def stamp(k):
        if timed:
            a(f"    s_memrealtime s[{sST+2*k}:{sST+2*k+1}]")

    st1 = f"    s_memrealtime s[{sST+2}:{sST+3}]"
    st1a = st1 if "st1a" in xp else ""
    st1b = st1 if "st1b" in xp else ""
    pf_code = "" if not pf else f"""    v_cmp_gt_u32 vcc, {pf}, v0
    s_getpc_b64 s[{sTmp+2}:{sTmp+3}]
    v_lshlrev_b32 v{vT+3}, 7, v0
    s_and_saveexec_b64 s[{sMask}:{sMask+1}], vcc
    s_cbranch_execz L_nopf
    global_load_dword v27, v{vT+3}, s[{sTmp+2}:{sTmp+3}]
L_nopf:
    s_mov_b64 exec, -1"""
    a(HEADER.rstrip("\n"))
    a(f"; @launch grid=(256,1,1) block=(1024,1,1) lds={LDS_BYTES}")
    a(f""";
; Split-K decode attention, one launch.  Workgroup id -> group G = id % 8 (kv heads 2G, 2G+1), idx = id / 8.
.amdgcn_target "amdgcn-amd-amdhsa--gfx950"
.text
.globl {main}
.p2align 8
.type {main},@function
{main}:
    s_load_dwordx2 s[8:9], s[0:1], 8             ; K""")
    if timed:
        stamp(0)
    a(f"""    v_and_b32 v{vTmp}, 3, v0
    v_lshlrev_b32 v{vTmp}, 4, v{vTmp}
    v_and_b32 v{vG}, 48, v0
    v_lshl_or_b32 v{vTmp}, v{vG}, 2, v{vTmp}         ; 16-B chunk ((l>>4)*4 + (l&3))
    v_and_b32 v{vKoff}, 12, v0
    v_lshl_or_b32 v{vKoff}, v{vKoff}, 10, v{vTmp}     ; + token ((l>>2)&3)*4096
    v_and_b32 v{vT}, 64, v0
    v_lshl_or_b32 v{vT}, v{vT}, 2, v{vKoff}          ; + c*256
    v_lshrrev_b32 v{vT+1}, 7, v0
    v_lshl_or_b32 v{vT}, v{vT+1}, 21, v{vT}          ; + j*32 blocks
    s_and_b32 s{sG}, s2, 7
    s_lshr_b32 s{sIdx}, s2, 3
    s_lshl_b32 s{sOff}, s{sIdx}, 7
    s_add_u32 s{sOff}, s{sOff}, s{sG}
    s_lshl_b32 s{sOff}, s{sOff}, 9                   ; idx*65536 + 2G*256
    s_lshl_b32 s10, 1, 25
    s_lshl_b32 s11, 1, 17
    s_movk_i32 s{sTmp}, 0x4000
    s_waitcnt lgkmcnt(0)
{st1a}
    buffer_load_dwordx4 v[{vK}:{vK+3}], v{vT}, s[8:11], s{sOff} offen {kv}
    s_add_u32 s{sOff+1}, s{sOff}, s{sTmp}
    buffer_load_dwordx4 v[{vK+4}:{vK+7}], v{vT}, s[8:11], s{sOff+1} offen {kv}
    s_add_u32 s{sOff+2}, s{sOff+1}, s{sTmp}
    buffer_load_dwordx4 v[{vK+8}:{vK+11}], v{vT}, s[8:11], s{sOff+2} offen {kv}
    s_add_u32 s{sOff+3}, s{sOff+2}, s{sTmp}
    buffer_load_dwordx4 v[{vK+12}:{vK+15}], v{vT}, s[8:11], s{sOff+3} offen {kv}
{st1b}
    s_cmpk_ge_u32 s2, 0x100
    s_cbranch_scc1 L_exit
{pf_code}
    s_load_dwordx4 s[16:19], s[0:1], 24
    s_load_dwordx2 s[4:5], s[0:1], 0             ; q
    s_load_dwordx2 s[12:13], s[0:1], 16          ; V
    s_load_dwordx4 s[20:23], s[0:1], 40
    s_load_dwordx2 s[24:25], s[0:1], 56          ; ws
    v_readfirstlane_b32 s{sW}, v0""")
    if "st1" not in xp:
        stamp(1)
    if stamps:
        for k in range(2, 8):
            a(f"    s_mov_b32 s{sST+2*k}, 0")
        a(f"    s_mov_b32 s{sCnt}, 0")
    a(f"""    v_and_b32 v{vVoff}, 8, v0
    v_lshl_or_b32 v{vTmp}, v{vVoff}, 5, v{vTmp}        ; q: + h*256
    v_and_b32 v{vVoff}, 15, v0
    v_lshlrev_b32 v{vVoff}, 4, v{vVoff}
    v_lshl_or_b32 v{vVoff}, v{vG}, 8, v{vVoff}         ; V: (l>>4)*4096 + (l&15)*16
    v_lshrrev_b32 v{vG}, 4, v{vG}                     ; g = l>>4
    s_lshr_b32 s{sW}, s{sW}, 6
    s_and_b32 s{sC}, s{sW}, 1
    s_lshr_b32 s{sJ}, s{sW}, 1
    s_lshl1_add_u32 s{sHead}, s{sG}, s{sC}
    s_lshl_b32 s{sH256}, s{sHead}, 8
    s_lshl_b32 s{sB}, s{sJ}, 5
    s_add_u32 s{sB1}, s{sB}, 256
    s_add_u32 s{sB}, s{sB}, s{sIdx}                  ; b0 = j*32 + idx
    s_lshl4_add_u32 s{sR}, s{sC}, s{sIdx}
    s_and_b32 s{sR}, s{sR}, 31                       ; r = (idx + 16c) % 32
    s_lshl_b32 s{sTmp}, s{sB}, 2
    s_add_u32 s{sTmp+1}, s{sB1}, s{sR}
    s_lshl_b32 s{sTmp+1}, s{sTmp+1}, 2
    s_lshr_b32 s{sTmp+2}, s{sR}, 1
    s_add_u32 s{sTmp+2}, s{sTmp+2}, s{sB1}
    s_lshl_b32 s{sTmp+2}, s{sTmp+2}, 2
    s_lshr_b32 s{sTmp+3}, s{sR}, 2
    s_add_u32 s{sTmp+3}, s{sTmp+3}, s{sB1}
    s_lshl_b32 s{sTmp+3}, s{sTmp+3}, 2
    s_lshl_b32 s{sR1}, s{sHead}, 9
    v_add_u32 v{vTmp}, s{sR1}, v{vTmp}
    s_mov_b32 s15, 0x20000
    s_waitcnt lgkmcnt(0)
    s_load_dword s{sCtx}, s[18:19], 0
    s_load_dword s{sBT}, s[16:17], s{sTmp}
    s_load_dword s{sBT+1}, s[16:17], s{sTmp+1}
    s_load_dword s{sBT+2}, s[16:17], s{sTmp+2}
    s_load_dword s{sBT+3}, s[16:17], s{sTmp+3}
    global_load_dwordx4 v[{vQ}:{vQ+3}], v{vTmp}, s[4:5]""")
    if "tlb" in xp:
        lim = 32 if "tlball" in xp else 2
        a(f"""    s_cmp_lg_u32 s{sW}, 1
    s_cbranch_scc1 L_notlb
    s_cmp_ge_u32 s{sIdx}, {lim}
    s_cbranch_scc1 L_notlb
    v_and_b32 v{vT+3}, 15, v0
    v_lshlrev_b32 v{vT+3}, 21, v{vT+3}
    s_lshl_b32 s{sTmp}, s2, 12
    s_mov_b32 s14, s10
    s_mov_b64 exec, 0xffff
    buffer_load_dword v110, v{vT+3}, s[12:15], s{sTmp} offen nt
    buffer_load_dword v111, v{vT+3}, s[8:11], s{sTmp} offen nt
    s_mov_b64 exec, -1
L_notlb:""")
    a(f"""    s_or_b32 s{sTmp+1}, s2, s{sW}
    s_cmp_lg_u32 s{sTmp+1}, 0
    s_cbranch_scc1 L_nolead
    s_memrealtime s[{sTmp+2}:{sTmp+3}]
    v_mov_b32 v{vT+2}, 0
    s_waitcnt lgkmcnt(0)
    s_lshr_b64 s[{sNc}:{sNc+1}], s[{sTmp+2}:{sTmp+3}], 20
    s_and_b32 s{sTmp+2}, s{sTmp+2}, 0xfffff
    s_and_b32 s{sNc}, s{sNc}, 0xfffff
    s_bitset1_b32 s{sTmp+2}, 31
    s_bitset1_b32 s{sNc}, 31
    v_mov_b32 v{vT}, s{sTmp+2}
    v_mov_b32 v{vT+1}, s{sNc}
    s_mov_b64 exec, 1
    global_store_dwordx2 v{vT+2}, v[{vT}:{vT+1}], s[22:23] sc1
    s_mov_b64 exec, -1
L_nolead:
    s_mov_b32 s{sTmp+2}, 0x{NEGINF:08x}
    s_mov_b32 s{sTmp+3}, 0x{f32bits(TMASK):08x}
    s_waitcnt lgkmcnt(0)
    s_max_i32 s{sCtx}, s{sCtx}, 0
    s_min_i32 s{sCtx}, s{sCtx}, 8192
    s_add_u32 s{sNblk}, s{sCtx}, 15
    s_lshr_b32 s{sNblk}, s{sNblk}, 4
    s_and_b32 s{sBT}, s{sBT}, 511
    s_cmp_lt_u32 s{sB}, s{sNblk}
    s_cselect_b32 s{sNR0}, s10, 0
    s_cselect_b32 s{sTmp}, s{sTmp+3}, s{sTmp+2}
    v_mov_b32 v{vMV}, s{sTmp}
    s_mov_b32 s{sSh}, 0""")
    if eq:
        a(f"""    s_cmp_lg_u32 s{sJ}, 7
    s_cbranch_scc1 L_whole
    s_cmpk_le_u32 s{sNblk}, 496
    s_cselect_b32 s{sSh}, 1, 0
    s_cselect_b32 s{sBT+1}, s{sBT+2}, s{sBT+1}
    s_cmpk_le_u32 s{sNblk}, 488
    s_cselect_b32 s{sSh}, 2, s{sSh}
    s_cselect_b32 s{sBT+1}, s{sBT+3}, s{sBT+1}
L_whole:""")
    a(f"""    s_and_b32 s{sBT+1}, s{sBT+1}, 511
    s_lshr_b32 s{sTmp}, s{sR}, s{sSh}
    s_add_u32 s{sB1}, s{sB1}, s{sTmp}
    s_lshl_b32 s{sTmp}, s{sTmp}, s{sSh}
    s_sub_u32 s{sTmp}, s{sR}, s{sTmp}
    s_lshr_b32 s{sOK}, 4, s{sSh}
    s_mul_i32 s{sTmp}, s{sTmp}, s{sOK}
    s_cmp_lt_u32 s{sB1}, s{sNblk}
    s_cselect_b32 s{sOK}, s{sOK}, 0
    s_lshl_b32 s{sR1}, s{sB1}, 2
    s_add_u32 s{sR1}, s{sR1}, s{sTmp}
    s_lshl_b32 s{sR1}, s{sR1}, 2
    s_sub_i32 s{sR1}, s{sCtx}, s{sR1}
    s_lshl_b32 s{sOff+4}, s{sBT+1}, 2
    s_add_u32 s{sOff+4}, s{sOff+4}, s{sTmp}
    s_lshl_b32 s{sOff+4}, s{sOff+4}, 14
    s_add_u32 s{sOff+4}, s{sOff+4}, s{sH256}
    s_add_u32 s{sOff+5}, s{sOff+4}, 0x4000
    s_add_u32 s{sOff+6}, s{sOff+4}, 0x8000
    s_add_u32 s{sOff+7}, s{sOff+4}, 0xc000
    s_lshl_b32 s{sOff}, s{sBT}, 16
    s_add_u32 s{sOff}, s{sOff}, s{sH256}
    s_add_u32 s{sOff+1}, s{sOff}, 0x4000
    s_add_u32 s{sOff+2}, s{sOff}, 0x8000
    s_add_u32 s{sOff+3}, s{sOff}, 0xc000
    s_cmp_eq_u32 s{sBT}, s{sB}
    s_cbranch_scc1 L_spec_ok
    s_waitcnt vmcnt(0)""")
    for i in range(4):
        a(f"    buffer_load_dwordx4 v[{vK+4*i}:{vK+4*i+3}], v{vKoff}, s[8:11], s{sOff+i} offen {kv}")
    a("L_spec_ok:")
    for i in range(4):
        q = 4 + i
        a(f"""    s_cmp_gt_u32 s{sOK}, {i}
    s_cselect_b32 s{sNR1+i}, 0x2000000, 0
    s_cselect_b32 s{sTmp}, s{sTmp+3}, s{sTmp+2}
    s_mov_b32 s10, s{sNR1+i}
    v_mov_b32 v{vMV+1+i}, s{sTmp}
    buffer_load_dwordx4 v[{vK+4*q}:{vK+4*q+3}], v{vKoff}, s[8:11], s{sOff+q} offen {kv}""")
    a(f"""    v_mov_b32 v{vT+5}, 0
    s_mov_b32 s14, s{sNR0}
    s_barrier
    s_cmp_gt_u32 s{sW}, 2
    s_cbranch_scc1 L_notag
    global_load_dwordx2 v[{vN}:{vN+1}], v{vT+5}, s[22:23] sc1
L_notag:""")
    def vloads():
        for q in range(NQ):
            if q >= 4:
                a(f"    s_mov_b32 s14, s{sNR1+q-4}")
            a(f"    buffer_load_dwordx4 v[{vV+4*q}:{vV+4*q+3}], v{vVoff}, s[12:15], s{sOff+q} offen {kv}")
    if E < 16:
        a(f"""    s_cmp_ge_u32 s{sW}, {E}
    s_cbranch_scc1 L_vlater""")
    vloads()
    if E < 16:
        a("L_vlater:")
    a(f"""    s_lshl_b32 s{sTmp}, s{sHead}, 5
    s_add_u32 s{sTmp}, s{sTmp}, s{sIdx}
    s_mul_i32 s{sTmp}, s{sTmp}, {RS}
    v_and_b32 v{vPub}, 63, v0
    v_lshl_add_u32 v{vPub}, v{vPub}, 4, s{sTmp}
    v_and_b32 v{vPm}, 8, v0
    v_lshl_add_u32 v{vPm}, v{vPm}, 1, s{sTmp}
    s_cmp_ge_u32 s{sW}, 2
    s_cbranch_scc1 L_nodummy
    v_mov_b32 v{vO}, 0
    v_mov_b32 v{vO+1}, 0
    v_mov_b32 v{vO+2}, 0
    v_mov_b32 v{vO+3}, 0
    global_store_dwordx4 v{vPub}, v[{vO}:{vO+3}], s[24:25]
    s_mov_b64 exec, 0xff
    global_store_dwordx4 v{vPub}, v[{vO}:{vO+3}], s[24:25] offset:1024
    s_mov_b64 exec, -1
L_nodummy:""")
    stamp(2)
    a(f"""    v_mov_b32 v{vC}, 0x{f32bits(SCALE):08x}
    v_and_b32 v{vTmp}, 1, v0
    v_lshlrev_b32 v{vTmp}, 4, v{vTmp}
    s_mov_b32 s{sTmp}, 0xffff
    v_lshlrev_b32_e64 v{vTmp}, v{vTmp}, s{sTmp}        ; 0xffff << 16*(l&1)
    v_bfe_u32 v{vTmp+1}, v0, 1, 2
    v_cmp_eq_u32_e64 s[{sMask}:{sMask+1}], 0, v{vTmp+1}
    v_cmp_eq_u32_e64 s[{sMask+2}:{sMask+3}], 1, v{vTmp+1}
    v_cmp_eq_u32_e64 s[{sMask+4}:{sMask+5}], 2, v{vTmp+1}
    v_cmp_eq_u32_e64 s[{sMask+6}:{sMask+7}], 3, v{vTmp+1}
    v_bfe_u32 v{vLr}, v0, 3, 1
    v_lshlrev_b32 v{vLr}, 7, v{vLr}                   ; h*128
    v_cndmask_b32_e64 v{vAM}, 0, v{vTmp}, s[{sMask}:{sMask+1}]
    v_cndmask_b32_e64 v{vAM+1}, 0, v{vTmp}, s[{sMask+2}:{sMask+3}]
    v_cndmask_b32_e64 v{vAM+2}, 0, v{vTmp}, s[{sMask+4}:{sMask+5}]
    v_cndmask_b32_e64 v{vAM+3}, 0, v{vTmp}, s[{sMask+6}:{sMask+7}]
    s_lshl_b32 s{sTmp}, s{sC}, 8
    v_add_u32 v{vLr}, s{sTmp}, v{vLr}                ; + c*256
    s_lshl_b32 s{sTmp}, s{sJ}, 4
    v_lshl_add_u32 v{vLw}, v{vG}, 2, v{vLr}
    v_add_u32 v{vLw}, s{sTmp}, v{vLw}                ; + (j*4+g)*4
    v_and_b32 v{vTmp}, 7, v0
    v_lshl_add_u32 v{vLr}, v{vTmp}, 4, v{vLr}         ; + e*16
    v_lshlrev_b32 v{vOw}, 4, v0                      ; w*1024 + l*16
    s_movk_i32 s{sNc}, 0x3ff
    s_lshl_b32 s{sTmp}, s{sB}, 4
    s_sub_i32 s{sTmp}, s{sCtx}, s{sTmp}""")
    for u in range(2):
        if E < 16:
            a(f"""    s_cmp_lt_u32 s{sW}, {E}
    s_cbranch_scc1 L_kw{u}
    s_waitcnt vmcnt({4 if u == 0 else 0})
L_kw{u}:""")
        a(f"    s_waitcnt vmcnt({12 if u == 0 else 8})")
        if u == 0:
            stamp(3)
        for i in range(4):
            q = 4 * u + i
            a(f"    v_mfma_f32_16x16x32_bf16 v[{vK+4*q}:{vK+4*q+3}], v[{vK+4*q}:{vK+4*q+3}], v[{vQ}:{vQ+3}], 0")
        sr = sTmp if u == 0 else sR1
        for i in range(4):
            if u == 1:
                a(f"    s_cmp_gt_u32 s{sOK}, {i}")
                a(f"    s_cselect_b32 s{sTmp}, s{sr}, 0")
                a(f"    v_cmp_gt_i32_e64 s[{sMask+2*i}:{sMask+2*i+1}], s{sTmp}, v{vG}")
            else:
                a(f"    v_cmp_gt_i32_e64 s[{sMask+2*i}:{sMask+2*i+1}], s{sr}, v{vG}")
            if i < 3:
                a(f"    s_sub_i32 s{sr}, s{sr}, 4")
        a("    s_nop 1" if u == 0 else "    s_nop 0")
        for step in range(4):
            for i in range(4):
                q = 4 * u + i
                op = "v_mul_f32_dpp" if step == 0 else "v_fmac_f32_dpp"
                a(f"    {op} v{vT+q}, v{vK+4*q+step}, v{vC} quad_perm:[{step},{step},{step},{step}] row_mask:0xf bank_mask:0xf")
        for i in range(4):
            q = 4 * u + i
            mv = vMV if u == 0 else vMV + 1 + i
            a(f"    v_cndmask_b32_e64 v{vT+q}, v{mv}, v{vT+q}, s[{sMask+2*i}:{sMask+2*i+1}]")
    a(f"    v_max3_f32 v{vM}, v{vT}, v{vT+1}, s{sTmp+3}")
    for q in range(2, NQ, 2):
        a(f"    v_max3_f32 v{vM}, v{vT+q}, v{vT+q+1}, v{vM}")
    a(f"""    ds_write_b32 v{vLw}, v{vM} offset:{LDS_MAX}
    v_and_b32 v{vTmp}, v{vN}, v{vN+1}
    v_lshrrev_b32 v{vS}, 10, v{vN}
    v_readfirstlane_b32 s{sOK}, v{vTmp}
    v_lshrrev_b32 v{vS+1}, 10, v{vN+1}
    s_waitcnt lgkmcnt(0)
    s_barrier""")
    stamp(4)
    if E < 16:
        a(f"""    s_cmp_lt_u32 s{sW}, {E}
    s_cbranch_scc1 L_vdone""")
        vloads()
        a("L_vdone:")
    a(f"""    ds_read_b128 v[{vK}:{vK+3}], v{vLr} offset:{LDS_MAX}
    s_waitcnt lgkmcnt(0)
    v_max3_f32 v{vM}, v{vK}, v{vK+1}, v{vK+2}
    v_max_f32 v{vM}, v{vM}, v{vK+3}
    s_nop 1
    v_max_f32_dpp v{vM}, v{vM}, v{vM} quad_perm:[1,0,3,2] row_mask:0xf bank_mask:0xf
    s_nop 1
    v_max_f32_dpp v{vM}, v{vM}, v{vM} quad_perm:[2,3,0,1] row_mask:0xf bank_mask:0xf
    s_nop 1
    v_max_f32_dpp v{vM}, v{vM}, v{vM} row_half_mirror row_mask:0xf bank_mask:0xf""")
    for q in range(NQ):
        a(f"    v_sub_f32 v{vT+q}, v{vT+q}, v{vM}")
    for q in range(NQ):
        a(f"    v_exp_f32 v{vT+q}, v{vT+q}")
    a(f"    v_mov_b32 v{vML}, v{vM}")
    a(f"    v_add_f32 v{vL}, v{vT}, v{vT+1}")
    for q in range(2, NQ):
        a(f"    v_add_f32 v{vL}, v{vL}, v{vT+q}")
    a(f"    ds_write_b32 v{vLw}, v{vL} offset:{LDS_L}")
    for q in range(NQ):
        a(f"    v_cvt_pk_bf16_f32 v{vT+q}, v{vT+q}, v{vT+q}")
    for q in range(NQ):
        for r in range(4):
            a(f"    v_and_b32 v{vK+4*q+r}, v{vAM+r}, v{vT+q}")
    a("    s_nop 0")
    for q in range(NQ):
        a(f"    s_waitcnt vmcnt({NQ-1-q})")
        c = "0" if q == 0 else f"v[{vO}:{vO+3}]"
        a(f"    v_mfma_f32_16x16x32_bf16 v[{vO}:{vO+3}], v[{vK+4*q}:{vK+4*q+3}], v[{vV+4*q}:{vV+4*q+3}], {c}")
    stamp(5)
    a(f"""    s_nop 7
    ds_write_b128 v{vOw}, v[{vO}:{vO+3}] offset:{LDS_O}
    s_waitcnt lgkmcnt(0)
    s_barrier
    s_cmp_gt_u32 s{sW}, 2
    s_cbranch_scc1 L_done
    s_cmp_lt_i32 s{sOK}, 0
    s_cbranch_scc0 L_waittag
L_tagok:
    s_cmp_eq_u32 s{sW}, 2
    s_cbranch_scc1 L_consume
    ds_read_b128 v[{vT}:{vT+3}], v{vLr} offset:{LDS_L}""")
    for j in range(1, 8):
        a(f"    ds_read_b128 v[{vK+4*j}:{vK+4*j+3}], v{vOw} offset:{LDS_O+2048*j}")
    a(f"""    s_waitcnt lgkmcnt(7)
    v_add_f32 v{vL}, v{vT}, v{vT+1}
    v_add_f32 v{vT+2}, v{vT+2}, v{vT+3}
    v_add_f32 v{vL}, v{vL}, v{vT+2}
    s_waitcnt lgkmcnt(6)
    v_pk_add_f32 v[{vO}:{vO+1}], v[{vO}:{vO+1}], v[{vK+4}:{vK+5}]
    v_pk_add_f32 v[{vO+2}:{vO+3}], v[{vO+2}:{vO+3}], v[{vK+6}:{vK+7}]
    v_add_f32_dpp v{vL}, v{vL}, v{vL} quad_perm:[1,0,3,2] row_mask:0xf bank_mask:0xf
    s_waitcnt lgkmcnt(5)
    v_pk_add_f32 v[{vO}:{vO+1}], v[{vO}:{vO+1}], v[{vK+8}:{vK+9}]
    v_pk_add_f32 v[{vO+2}:{vO+3}], v[{vO+2}:{vO+3}], v[{vK+10}:{vK+11}]
    v_add_f32_dpp v{vL}, v{vL}, v{vL} quad_perm:[2,3,0,1] row_mask:0xf bank_mask:0xf
    s_waitcnt lgkmcnt(4)
    v_pk_add_f32 v[{vO}:{vO+1}], v[{vO}:{vO+1}], v[{vK+12}:{vK+13}]
    v_pk_add_f32 v[{vO+2}:{vO+3}], v[{vO+2}:{vO+3}], v[{vK+14}:{vK+15}]
    v_add_f32_dpp v{vML+1}, v{vL}, v{vL} row_half_mirror row_mask:0xf bank_mask:0xf""")
    for j in range(4, 8):
        a(f"    s_waitcnt lgkmcnt({7-j})")
        a(f"    v_pk_add_f32 v[{vO}:{vO+1}], v[{vO}:{vO+1}], v[{vK+4*j}:{vK+4*j+1}]")
        a(f"    v_pk_add_f32 v[{vO+2}:{vO+3}], v[{vO+2}:{vO+3}], v[{vK+4*j+2}:{vK+4*j+3}]")
    a(f"""    v_bfi_b32 v{vO}, s{sNc}, v{vN}, v{vO}
    v_bfi_b32 v{vO+1}, s{sNc}, v{vS}, v{vO+1}
    v_bfi_b32 v{vO+2}, s{sNc}, v{vN+1}, v{vO+2}
    v_bfi_b32 v{vO+3}, s{sNc}, v{vS+1}, v{vO+3}
    global_store_dwordx4 v{vPub}, v[{vO}:{vO+3}], s[24:25]
    s_mov_b64 exec, 0x101
    global_store_dwordx4 v{vPm}, v[{vML}:{vML+3}], s[24:25] offset:1024
    s_mov_b64 exec, -1""")
    if stamps:
        stamp(3)
    a(f"""    s_add_u32 s{sTmp}, s24, {BOFF}
    s_addc_u32 s{sTmp+1}, s25, 0
    global_store_dwordx4 v{vPub}, v[{vO}:{vO+3}], s[{sTmp}:{sTmp+1}] sc1
    s_mov_b64 exec, 0x101
    global_store_dwordx4 v{vPm}, v[{vML}:{vML+3}], s[{sTmp}:{sTmp+1}] offset:1024 sc1
    s_mov_b64 exec, -1""")
    stamp(6)
    a(f"""    s_branch L_done
L_waittag:                                           ; rare: the leader had not published yet when the tag was read
    v_mov_b32 v{vTmp+1}, 0
    s_mov_b32 s{sCnt}, 0
L_waittag_loop:
    s_sleep 8
    global_load_dwordx2 v[{vN}:{vN+1}], v{vTmp+1}, s[22:23] sc1
    s_add_u32 s{sCnt}, s{sCnt}, 1
    s_waitcnt vmcnt(0)
    v_and_b32 v{vTmp}, v{vN}, v{vN+1}
    v_lshrrev_b32 v{vS}, 10, v{vN}
    v_readfirstlane_b32 s{sOK}, v{vTmp}
    v_lshrrev_b32 v{vS+1}, 10, v{vN+1}
    s_cmp_gt_u32 s{sCnt}, 20000
    s_cbranch_scc1 L_tagok
    s_cmp_lt_i32 s{sOK}, 0
    s_cbranch_scc0 L_waittag_loop
    s_branch L_tagok""")
    OP, ML, WT, AC, XO, TG = 40, 48, 56, 60, 72, 80
    vA1, vA2 = 1, 2
    sMs, sRo = 40, 44
    a(f"""L_consume:
    s_lshl_b32 s{sIn}, s{sG}, 5
    s_add_u32 s{sIn}, s{sIn}, s{sIdx}
    s_movk_i32 s{sTmp}, {RS}
    v_bfe_u32 v{vA2}, v0, 2, 4
    v_mul_u32_u24 v{vA2}, s{sTmp}, v{vA2}             ; p*RS,  p = l>>2
    v_and_b32 v{vTmp}, 3, v0
    v_lshlrev_b32 v{vTmp}, 4, v{vTmp}                 ; qd*16
    s_and_b32 s{sTmp+1}, s{sIn}, 15
    s_lshl_b32 s{sTmp+2}, s{sTmp+1}, 6
    v_add3_u32 v{vA1}, v{vA2}, v{vTmp}, s{sTmp+2}       ; + k*64 + qd*16
    s_lshr_b32 s{sTmp+2}, s{sTmp+1}, 3
    s_lshl_b32 s{sTmp+2}, s{sTmp+2}, 4
    v_add_u32 v{vA2}, s{sTmp+2}, v{vA2}               ; + h*16 (+1024)
    s_lshr_b32 s{sRo}, s{sIn}, 4
    s_mul_i32 s{sRo}, s{sRo}, {32*RS}
    s_add_u32 s{sRo+1}, s{sRo}, {16*RS}
    s_mov_b32 s8, s24
    s_mov_b32 s9, s25
    s_mov_b32 s10, {BOFF + 512*RS}
    v_and_b32 v{TG}, 0x3ff, v{vN}
    v_and_b32 v{TG+1}, 0x3ff, v{vS}
    v_and_b32 v{TG+2}, 0x3ff, v{vN+1}
    v_and_b32 v{TG+3}, 0x3ff, v{vS+1}
    s_mov_b32 s{sCnt}, 0
    s_mov_b64 s[{sMs}:{sMs+1}], -1
    s_mov_b64 s[{sMs+2}:{sMs+3}], -1
    s_branch L_pollA""")

    def poll_loads(tag, fl):
        for kk in range(2):
            a(f"""    s_mov_b64 exec, s[{sMs+2*kk}:{sMs+2*kk+1}]
    s_cbranch_execz L_skip{tag}{kk}
    buffer_load_dwordx4 v[{OP+4*kk}:{OP+4*kk+3}], v{vA1}, s[8:11], s{sRo+kk} offen {fl}
    buffer_load_dwordx4 v[{ML+4*kk}:{ML+4*kk+3}], v{vA2}, s[8:11], s{sRo+kk} offen offset:1024 {fl}
L_skip{tag}{kk}:""")

    a("L_pollB:\n    s_sleep 4")
    poll_loads("b", "sc1")
    a("    s_branch L_issued\nL_pollA:")
    poll_loads("a", "nt")
    a(f"""L_issued:
    s_mov_b64 exec, -1
    s_add_u32 s{sCnt}, s{sCnt}, 1
    s_cmp_gt_u32 s{sCnt}, 20000
    s_cbranch_scc1 L_got
    s_waitcnt vmcnt(0)""")
    for kk in range(2):
        o, m, x, t = OP + 4 * kk, ML + 4 * kk, XO + 4 * kk, 8 + 4 * kk
        for r in range(4):
            a(f"    v_xor_b32 v{x+r}, v{o+r}, v{TG+r}")
        a(f"    v_xor_b32 v{t+1}, v{m+2}, v{vN}")
        a(f"    v_xor_b32 v{t+2}, v{m+3}, v{vN+1}")
    for kk in range(2):
        x, t = XO + 4 * kk, 8 + 4 * kk
        a(f"    v_or3_b32 v{t}, v{x}, v{x+1}, v{x+2}")
    for kk in range(2):
        x, t = XO + 4 * kk, 8 + 4 * kk
        a(f"    v_or_b32 v{t}, v{t}, v{x+3}")
        a(f"    v_or_b32 v{t+1}, v{t+1}, v{t+2}")
    for kk in range(2):
        t = 8 + 4 * kk
        a(f"    v_and_or_b32 v{t}, v{t}, s{sNc}, v{t+1}")
    for kk in range(2):
        t = 8 + 4 * kk
        a(f"    v_cmp_ne_u32_e64 s[{sMs+2*kk}:{sMs+2*kk+1}], 0, v{t}")
    OP = XO
    a(f"""    v_max_f32 v{vM}, v{ML}, v{ML+4}
    s_or_b64 s[{sTmp}:{sTmp+1}], s[{sMs}:{sMs+1}], s[{sMs+2}:{sMs+3}]
    s_cbranch_scc0 L_got
    s_cmp_lt_u32 s{sCnt}, {ra}
    s_cbranch_scc1 L_pollA
    s_cmp_lg_u32 s{sCnt}, {ra}
    s_cbranch_scc1 L_pollB
    s_add_u32 s{sRo}, s{sRo}, {BOFF}
    s_add_u32 s{sRo+1}, s{sRo+1}, {BOFF}
    s_branch L_pollB
L_got:""")
    stamp(6)
    a(f"""    ; output byte address: kvhead*512 + (k>>3)*256 + ((4k+qd)&15)*16 + ((k>>2)&1)*8 + component*2
    v_max_f32_dpp v{vM}, v{vM}, v{vM} row_ror:4 row_mask:0xf bank_mask:0xf
    s_lshr_b32 s{sTmp+2}, s{sIn}, 3
    s_lshl_b32 s{sTmp+2}, s{sTmp+2}, 8
    v_max_f32_dpp v{vM}, v{vM}, v{vM} row_ror:8 row_mask:0xf bank_mask:0xf
    s_and_b32 s{sTmp+3}, s{sIn}, 3
    v_mov_b32 v8, v{vM}
    s_lshl_b32 s{sTmp+3}, s{sTmp+3}, 6
    s_add_u32 s{sTmp+2}, s{sTmp+2}, s{sTmp+3}
    v_permlane16_swap_b32 v{vM}, v8
    s_bfe_u32 s{sTmp+3}, s{sIn}, 0x10002
    v_max_f32 v{vM}, v{vM}, v8
    v_mov_b32 v8, v{vM}
    s_lshl3_add_u32 s{sTmp+2}, s{sTmp+3}, s{sTmp+2}
    v_add_u32 v{vTmp}, s{sTmp+2}, v{vTmp}
    v_permlane32_swap_b32 v{vM}, v8
    v_bfe_u32 v9, v0, 4, 1
    v_max_f32 v{vM}, v{vM}, v8
    v_sub_f32 v{WT}, v{ML}, v{vM}
    v_sub_f32 v{WT+1}, v{ML+4}, v{vM}
    v_exp_f32 v{WT}, v{WT}
    v_exp_f32 v{WT+1}, v{WT+1}
    v_lshl_add_u32 v{vTmp}, v9, 2, v{vTmp}
    v_bfe_u32 v9, v0, 5, 1
    v_mul_f32 v{vL}, v{WT}, v{ML+1}
    v_mul_f32 v{AC}, v{WT}, v{OP}
    v_mul_f32 v{AC+1}, v{WT}, v{OP+1}
    v_mul_f32 v{AC+2}, v{WT}, v{OP+2}
    v_mul_f32 v{AC+3}, v{WT}, v{OP+3}
    v_fmac_f32 v{vL}, v{WT+1}, v{ML+5}
    v_fmac_f32 v{AC}, v{WT+1}, v{OP+4}
    v_fmac_f32 v{AC+1}, v{WT+1}, v{OP+5}
    v_fmac_f32 v{AC+2}, v{WT+1}, v{OP+6}
    v_fmac_f32 v{AC+3}, v{WT+1}, v{OP+7}
    v_mov_b32 v8, v{vL}
    v_lshl_add_u32 v{vTmp}, v9, 1, v{vTmp}
    v_permlane32_swap_b32 v{AC}, v{AC+1}
    v_permlane32_swap_b32 v{AC+2}, v{AC+3}
    v_permlane32_swap_b32 v{vL}, v8
    v_add_f32 v{AC}, v{AC}, v{AC+1}
    v_add_f32 v{AC+2}, v{AC+2}, v{AC+3}
    v_add_f32 v{vL}, v{vL}, v8
    v_mov_b32 v8, v{vL}
    s_mov_b32 s{sTmp+1}, 0x{f32bits(TMASK + 256.0):08x}
    v_permlane16_swap_b32 v{AC}, v{AC+2}
    v_cmp_ge_f32 vcc, s{sTmp+1}, v{vM}
    v_permlane16_swap_b32 v{vL}, v8
    v_add_f32 v{AC}, v{AC}, v{AC+2}
    v_add_f32 v{vL}, v{vL}, v8
    s_nop 0
    v_add_f32_dpp v{AC}, v{AC}, v{AC} row_ror:4 row_mask:0xf bank_mask:0xf
    v_add_f32_dpp v{vL}, v{vL}, v{vL} row_ror:4 row_mask:0xf bank_mask:0xf
    s_nop 0
    v_add_f32_dpp v{AC}, v{AC}, v{AC} row_ror:8 row_mask:0xf bank_mask:0xf
    v_add_f32_dpp v{vL}, v{vL}, v{vL} row_ror:8 row_mask:0xf bank_mask:0xf
    s_cbranch_vccnz L_slow
L_fin:
    v_rcp_f32 v{vL}, v{vL}
    s_mov_b32 exec_lo, 0x000f000f
    s_mov_b32 exec_hi, 0x000f000f
    v_mul_f32 v{AC}, v{AC}, v{vL}
    v_cvt_pk_bf16_f32 v{AC}, v{AC}, v{AC}
    global_store_short v{vTmp}, v{AC}, s[20:21]""")
    if timed:
        a("    s_mov_b64 exec, -1\n    s_waitcnt vmcnt(0)")
    stamp(7)
    if diag:
        ka, kb, mult = diag
        a(f"""    s_waitcnt lgkmcnt(0)
    s_sub_u32 s{sTmp}, s{sST+2*kb}, s{sST+2*ka}
    s_mul_i32 s{sTmp}, s{sTmp}, {mult}
    s_min_u32 s{sTmp}, s{sTmp}, 20000
    s_add_u32 s{sTmp}, s{sTmp}, s{sST+14}
L_spin:
    s_memrealtime s[{sTmp+2}:{sTmp+3}]
    s_waitcnt lgkmcnt(0)
    s_sub_u32 s{sTmp+1}, s{sTmp+2}, s{sTmp}
    s_cmp_lt_i32 s{sTmp+1}, 0
    s_cbranch_scc1 L_spin""")
    a("L_done:")
    if stamps:
        a(f"    s_waitcnt lgkmcnt(0) vmcnt(0)")
        a(f"    s_getreg_b32 s{sST+1}, hwreg(HW_REG_XCC_ID)")
        for k in range(8):
            a(f"    v_mov_b32 v{40+k}, s{sST+2*k}")
        a(f"    v_mov_b32 v48, s{sST+1}")
        a(f"    v_mov_b32 v49, s{sCnt}")
        a(f"""    s_lshl_b32 s{sTmp}, s2, 10
    s_lshl_b32 s{sTmp+1}, s{sW}, 6
    s_add_u32 s{sTmp}, s{sTmp}, s{sTmp+1}
    s_add_u32 s{sTmp}, s{sTmp}, 0x400000
    v_mov_b32 v50, s{sTmp}
    s_mov_b64 exec, 1
    global_store_dwordx4 v50, v[40:43], s[24:25]
    global_store_dwordx4 v50, v[44:47], s[24:25] offset:16
    global_store_dwordx2 v50, v[48:49], s[24:25] offset:32""")
    X = 88
    a(f"""L_exit:
    s_endpgm
L_slow:
    s_cmp_ge_u32 s{sNblk}, 512
    s_cbranch_scc1 L_fin
    s_lshr_b32 s{sTmp+1}, s{sIn}, 4
    s_lshl_b32 s{sTmp+1}, s{sTmp+1}, 8
    s_and_b32 s{sTmp}, s{sIn}, 3
    s_lshl_b32 s{sTmp}, s{sTmp}, 6
    s_add_u32 s{sTmp+1}, s{sTmp+1}, s{sTmp}
    s_bfe_u32 s{sTmp}, s{sIn}, 0x10002
    s_lshl3_add_u32 s{sTmp+1}, s{sTmp}, s{sTmp+1}
    v_bfe_u32 v{X}, v0, 2, 4
    v_lshlrev_b32 v{X}, 12, v{X}
    v_and_b32 v{X+1}, 3, v0
    v_lshlrev_b32 v{X+1}, 4, v{X+1}
    v_add3_u32 v{X}, v{X+1}, v{X}, s{sTmp+1}
    v_mov_b32 v{X+4}, 0
    v_mov_b32 v{X+5}, 0
    v_mov_b32 v{X+6}, 0
    v_mov_b32 v{X+7}, 0
    s_mov_b32 s14, 0x2000000
    s_mov_b32 s{sCnt}, s{sNblk}
L_slow_loop:
    s_lshl_b32 s{sTmp}, s{sCnt}, 2
    s_load_dword s{sTmp+2}, s[16:17], s{sTmp}
    s_waitcnt lgkmcnt(0)
    s_and_b32 s{sTmp+2}, s{sTmp+2}, 511
    s_lshl_b32 s{sTmp+2}, s{sTmp+2}, 16
    buffer_load_dwordx2 v[{X+2}:{X+3}], v{X}, s[12:15], s{sTmp+2} offen
    s_waitcnt vmcnt(0)
    v_lshlrev_b32 v{X+1}, 16, v{X+2}
    v_add_f32 v{X+4}, v{X+4}, v{X+1}
    v_and_b32 v{X+1}, 0xffff0000, v{X+2}
    v_add_f32 v{X+5}, v{X+5}, v{X+1}
    v_lshlrev_b32 v{X+1}, 16, v{X+3}
    v_add_f32 v{X+6}, v{X+6}, v{X+1}
    v_and_b32 v{X+1}, 0xffff0000, v{X+3}
    v_add_f32 v{X+7}, v{X+7}, v{X+1}
    s_add_u32 s{sCnt}, s{sCnt}, 1
    s_cmp_lt_u32 s{sCnt}, 512
    s_cbranch_scc1 L_slow_loop
    s_nop 1
    v_permlane32_swap_b32 v{X+4}, v{X+5}
    v_permlane32_swap_b32 v{X+6}, v{X+7}
    s_nop 1
    v_add_f32 v{X+4}, v{X+4}, v{X+5}
    v_add_f32 v{X+6}, v{X+6}, v{X+7}
    s_nop 1
    v_permlane16_swap_b32 v{X+4}, v{X+6}
    s_nop 1
    v_add_f32 v{X+4}, v{X+4}, v{X+6}
    s_nop 1
    v_add_f32_dpp v{X+4}, v{X+4}, v{X+4} row_ror:4 row_mask:0xf bank_mask:0xf
    s_nop 1
    v_add_f32_dpp v{X+4}, v{X+4}, v{X+4} row_ror:8 row_mask:0xf bank_mask:0xf
    v_sub_f32 v{X+1}, 0x{f32bits(TMASK):08x}, v{vM}
    v_exp_f32 v{X+1}, v{X+1}
    s_sub_u32 s{sTmp}, 512, s{sNblk}
    s_lshl_b32 s{sTmp}, s{sTmp}, 4
    v_cvt_f32_u32 v{X+2}, s{sTmp}
    v_fmac_f32 v{vL}, v{X+1}, v{X+2}
    v_fmac_f32 v{AC}, v{X+1}, v{X+4}
    s_branch L_fin""")
    a(descriptor(main, nv, 96))
    return a.text()


if __name__ == "__main__":
    ap = argparse.ArgumentParser()
    ap.add_argument("-o", default="/dev/stdout")
    ap.add_argument("--kv", default="nt")
    ap.add_argument("--stamps", action="store_true")
    ap.add_argument("--diag", default=None)
    ap.add_argument("--ra", type=int, default=24)
    ap.add_argument("--pf", type=int, default=29)
    ap.add_argument("--noeq", action="store_true")
    ap.add_argument("--xp", default="")
    ap.add_argument("--E", type=int, default=8)
    x = ap.parse_args()
    open(x.o, "w").write(gen(kv=x.kv, stamps=x.stamps, ra=x.ra, pf=x.pf, eq=not x.noeq, xp=x.xp, E=x.E,
                             diag=tuple(int(t) for t in x.diag.split(",")) if x.diag else None))
```

```python
import struct, sys, math, argparse
from gen import HEADER, NAME, f32bits, SCALE, TMASK, NEGINF, Asm, descriptor

NQ = 8
RS = 1152
BOFF = 0x100000
LDS_MAX, LDS_L, LDS_O = 0, 512, 1024
LDS_BYTES = LDS_O + 16 * 1024


def gen(kv="nt", stamps=False, diag=None, ra=24, pf=29, eq=True, xp="", E=8):
    a = Asm()
    vKoff, vVoff, vG, vC, vLw, vM, vL = 1, 2, 3, 4, 5, 6, 7
    vQ, vAM, vO = 8, 12, 16
    vMV = 20
    vPub, vPm = 25, 26
    vLr, vOw, vTmp = 28, 29, 30
    vT, vK, vV = 32, 40, 72
    vML = 104
    vN = 106
    vS = 108
    nv = 112
    sW, sC, sIdx, sH256, sB, sCtx, sNblk = 3, 26, 27, 28, 29, 30, 31
    sBT = 32
    sG, sHead, sJ, sR = 36, 37, 38, 39
    sOff = 40
    sB1, sSh, sNR0, sOK = 48, 49, 50, 51
    sNR1 = 52
    sST = 56
    sR1 = 72
    sIn, sNc, sCnt = 73, 74, 76
    sTmp = 80
    sMask = 84
    main = f"{NAME}_kernel"
    timed = stamps or diag

    def stamp(k):
        if timed:
            a(f"    s_memrealtime s[{sST+2*k}:{sST+2*k+1}]")

    st1 = f"    s_memrealtime s[{sST+2}:{sST+3}]"
    st1a = st1 if "st1a" in xp else ""
    st1b = st1 if "st1b" in xp else ""
    pf_code = "" if not pf else f"""    v_cmp_gt_u32 vcc, {pf}, v0
    s_getpc_b64 s[{sTmp+2}:{sTmp+3}]
    v_lshlrev_b32 v{vT+3}, 7, v0
    s_and_saveexec_b64 s[{sMask}:{sMask+1}], vcc
    s_cbranch_execz L_nopf
    global_load_dword v27, v{vT+3}, s[{sTmp+2}:{sTmp+3}]
L_nopf:
    s_mov_b64 exec, -1"""
    a(HEADER.rstrip("\n"))
    a(f"; @launch grid=(256,1,1) block=(1024,1,1) lds={LDS_BYTES}")
    a(f""";
; Workgroup id -> group G = id % 8 (kv heads 2G, 2G+1), idx = id / 8.
.amdgcn_target "amdgcn-amd-amdhsa--gfx950"
.text
.globl {main}
.p2align 8
.type {main},@function
{main}:
    s_load_dwordx2 s[8:9], s[0:1], 8             ; K""")
    if timed:
        stamp(0)
    a(f"""    v_and_b32 v{vTmp}, 3, v0
    v_lshlrev_b32 v{vTmp}, 4, v{vTmp}
    v_and_b32 v{vG}, 48, v0
    v_lshl_or_b32 v{vTmp}, v{vG}, 2, v{vTmp}         ; 16-B chunk ((l>>4)*4 + (l&3))
    v_and_b32 v{vKoff}, 12, v0
    v_lshl_or_b32 v{vKoff}, v{vKoff}, 10, v{vTmp}     ; + token ((l>>2)&3)*4096
    v_and_b32 v{vT}, 64, v0
    v_lshl_or_b32 v{vT}, v{vT}, 2, v{vKoff}          ; + c*256
    v_lshrrev_b32 v{vT+1}, 7, v0
    v_lshl_or_b32 v{vT}, v{vT+1}, 21, v{vT}          ; + j*32 blocks
    s_and_b32 s{sG}, s2, 7
    s_lshr_b32 s{sIdx}, s2, 3
    s_lshl_b32 s{sOff}, s{sIdx}, 7
    s_add_u32 s{sOff}, s{sOff}, s{sG}
    s_lshl_b32 s{sOff}, s{sOff}, 9                   ; idx*65536 + 2G*256
    s_lshl_b32 s10, 1, 25
    s_lshl_b32 s11, 1, 17
    s_movk_i32 s{sTmp}, 0x4000
    s_waitcnt lgkmcnt(0)
{st1a}
    buffer_load_dwordx4 v[{vK}:{vK+3}], v{vT}, s[8:11], s{sOff} offen {kv}
    s_add_u32 s{sOff+1}, s{sOff}, s{sTmp}
    buffer_load_dwordx4 v[{vK+4}:{vK+7}], v{vT}, s[8:11], s{sOff+1} offen {kv}
    s_add_u32 s{sOff+2}, s{sOff+1}, s{sTmp}
    buffer_load_dwordx4 v[{vK+8}:{vK+11}], v{vT}, s[8:11], s{sOff+2} offen {kv}
    s_add_u32 s{sOff+3}, s{sOff+2}, s{sTmp}
    buffer_load_dwordx4 v[{vK+12}:{vK+15}], v{vT}, s[8:11], s{sOff+3} offen {kv}
{st1b}
    s_cmpk_ge_u32 s2, 0x100
    s_cbranch_scc1 L_exit
{pf_code}
    s_load_dwordx4 s[16:19], s[0:1], 24
    s_load_dwordx2 s[4:5], s[0:1], 0             ; q
    s_load_dwordx2 s[12:13], s[0:1], 16          ; V
    s_load_dwordx4 s[20:23], s[0:1], 40
    s_load_dwordx2 s[24:25], s[0:1], 56          ; ws
    v_readfirstlane_b32 s{sW}, v0""")
    if "st1" not in xp:
        stamp(1)
    if stamps:
        for k in range(2, 8):
            a(f"    s_mov_b32 s{sST+2*k}, 0")
        a(f"    s_mov_b32 s{sCnt}, 0")
    a(f"""    v_and_b32 v{vVoff}, 8, v0
    v_lshl_or_b32 v{vTmp}, v{vVoff}, 5, v{vTmp}        ; q: + h*256
    v_and_b32 v{vVoff}, 15, v0
    v_lshlrev_b32 v{vVoff}, 4, v{vVoff}
    v_lshl_or_b32 v{vVoff}, v{vG}, 8, v{vVoff}         ; V: (l>>4)*4096 + (l&15)*16
    v_lshrrev_b32 v{vG}, 4, v{vG}                     ; g = l>>4
    s_lshr_b32 s{sW}, s{sW}, 6
    s_and_b32 s{sC}, s{sW}, 1
    s_lshr_b32 s{sJ}, s{sW}, 1
    s_lshl1_add_u32 s{sHead}, s{sG}, s{sC}
    s_lshl_b32 s{sH256}, s{sHead}, 8
    s_lshl_b32 s{sB}, s{sJ}, 5
    s_add_u32 s{sB1}, s{sB}, 256
    s_add_u32 s{sB}, s{sB}, s{sIdx}                  ; b0 = j*32 + idx
    s_lshl4_add_u32 s{sR}, s{sC}, s{sIdx}
    s_and_b32 s{sR}, s{sR}, 31                       ; r = (idx + 16c) % 32
    s_lshl_b32 s{sTmp}, s{sB}, 2
    s_add_u32 s{sTmp+1}, s{sB1}, s{sR}
    s_lshl_b32 s{sTmp+1}, s{sTmp+1}, 2
    s_lshr_b32 s{sTmp+2}, s{sR}, 1
    s_add_u32 s{sTmp+2}, s{sTmp+2}, s{sB1}
    s_lshl_b32 s{sTmp+2}, s{sTmp+2}, 2
    s_lshr_b32 s{sTmp+3}, s{sR}, 2
    s_add_u32 s{sTmp+3}, s{sTmp+3}, s{sB1}
    s_lshl_b32 s{sTmp+3}, s{sTmp+3}, 2
    s_lshl_b32 s{sR1}, s{sHead}, 9
    v_add_u32 v{vTmp}, s{sR1}, v{vTmp}
    s_mov_b32 s15, 0x20000
    s_waitcnt lgkmcnt(0)
    s_load_dword s{sCtx}, s[18:19], 0
    s_load_dword s{sBT}, s[16:17], s{sTmp}
    s_load_dword s{sBT+1}, s[16:17], s{sTmp+1}
    s_load_dword s{sBT+2}, s[16:17], s{sTmp+2}
    s_load_dword s{sBT+3}, s[16:17], s{sTmp+3}
    global_load_dwordx4 v[{vQ}:{vQ+3}], v{vTmp}, s[4:5]""")
    if "tlb" in xp:
        lim = 32 if "tlball" in xp else 2
        a(f"""    s_cmp_lg_u32 s{sW}, 1
    s_cbranch_scc1 L_notlb
    s_cmp_ge_u32 s{sIdx}, {lim}
    s_cbranch_scc1 L_notlb
    v_and_b32 v{vT+3}, 15, v0
    v_lshlrev_b32 v{vT+3}, 21, v{vT+3}
    s_lshl_b32 s{sTmp}, s2, 12
    s_mov_b32 s14, s10
    s_mov_b64 exec, 0xffff
    buffer_load_dword v110, v{vT+3}, s[12:15], s{sTmp} offen nt
    buffer_load_dword v111, v{vT+3}, s[8:11], s{sTmp} offen nt
    s_mov_b64 exec, -1
L_notlb:""")
    a(f"""    s_or_b32 s{sTmp+1}, s2, s{sW}
    s_cmp_lg_u32 s{sTmp+1}, 0
    s_cbranch_scc1 L_nolead
    s_memrealtime s[{sTmp+2}:{sTmp+3}]
    v_mov_b32 v{vT+2}, 0
    s_waitcnt lgkmcnt(0)
    s_lshr_b64 s[{sNc}:{sNc+1}], s[{sTmp+2}:{sTmp+3}], 20
    s_and_b32 s{sTmp+2}, s{sTmp+2}, 0xfffff
    s_and_b32 s{sNc}, s{sNc}, 0xfffff
    s_bitset1_b32 s{sTmp+2}, 31
    s_bitset1_b32 s{sNc}, 31
    v_mov_b32 v{vT}, s{sTmp+2}
    v_mov_b32 v{vT+1}, s{sNc}
    s_mov_b64 exec, 1
    global_store_dwordx2 v{vT+2}, v[{vT}:{vT+1}], s[22:23] sc1
    s_mov_b64 exec, -1
L_nolead:
    s_mov_b32 s{sTmp+2}, 0x{NEGINF:08x}
    s_mov_b32 s{sTmp+3}, 0x{f32bits(TMASK):08x}
    s_waitcnt lgkmcnt(0)
    s_max_i32 s{sCtx}, s{sCtx}, 0
    s_min_i32 s{sCtx}, s{sCtx}, 8192
    s_add_u32 s{sNblk}, s{sCtx}, 15
    s_lshr_b32 s{sNblk}, s{sNblk}, 4
    s_and_b32 s{sBT}, s{sBT}, 511
    s_cmp_lt_u32 s{sB}, s{sNblk}
    s_cselect_b32 s{sNR0}, s10, 0
    s_cselect_b32 s{sTmp}, s{sTmp+3}, s{sTmp+2}
    v_mov_b32 v{vMV}, s{sTmp}
    s_mov_b32 s{sSh}, 0""")
    if eq:
        a(f"""    s_cmp_lg_u32 s{sJ}, 7
    s_cbranch_scc1 L_whole
    s_cmpk_le_u32 s{sNblk}, 496
    s_cselect_b32 s{sSh}, 1, 0
    s_cselect_b32 s{sBT+1}, s{sBT+2}, s{sBT+1}
    s_cmpk_le_u32 s{sNblk}, 488
    s_cselect_b32 s{sSh}, 2, s{sSh}
    s_cselect_b32 s{sBT+1}, s{sBT+3}, s{sBT+1}
L_whole:""")
    a(f"""    s_and_b32 s{sBT+1}, s{sBT+1}, 511
    s_lshr_b32 s{sTmp}, s{sR}, s{sSh}
    s_add_u32 s{sB1}, s{sB1}, s{sTmp}
    s_lshl_b32 s{sTmp}, s{sTmp}, s{sSh}
    s_sub_u32 s{sTmp}, s{sR}, s{sTmp}
    s_lshr_b32 s{sOK}, 4, s{sSh}
    s_mul_i32 s{sTmp}, s{sTmp}, s{sOK}
    s_cmp_lt_u32 s{sB1}, s{sNblk}
    s_cselect_b32 s{sOK}, s{sOK}, 0
    s_lshl_b32 s{sR1}, s{sB1}, 2
    s_add_u32 s{sR1}, s{sR1}, s{sTmp}
    s_lshl_b32 s{sR1}, s{sR1}, 2
    s_sub_i32 s{sR1}, s{sCtx}, s{sR1}
    s_lshl_b32 s{sOff+4}, s{sBT+1}, 2
    s_add_u32 s{sOff+4}, s{sOff+4}, s{sTmp}
    s_lshl_b32 s{sOff+4}, s{sOff+4}, 14
    s_add_u32 s{sOff+4}, s{sOff+4}, s{sH256}
    s_add_u32 s{sOff+5}, s{sOff+4}, 0x4000
    s_add_u32 s{sOff+6}, s{sOff+4}, 0x8000
    s_add_u32 s{sOff+7}, s{sOff+4}, 0xc000
    s_lshl_b32 s{sOff}, s{sBT}, 16
    s_add_u32 s{sOff}, s{sOff}, s{sH256}
    s_add_u32 s{sOff+1}, s{sOff}, 0x4000
    s_add_u32 s{sOff+2}, s{sOff}, 0x8000
    s_add_u32 s{sOff+3}, s{sOff}, 0xc000
    s_cmp_eq_u32 s{sBT}, s{sB}
    s_cbranch_scc1 L_spec_ok
    s_waitcnt vmcnt(0)""")
    for i in range(4):
        a(f"    buffer_load_dwordx4 v[{vK+4*i}:{vK+4*i+3}], v{vKoff}, s[8:11], s{sOff+i} offen {kv}")
    a("L_spec_ok:")
    for i in range(4):
        q = 4 + i
        a(f"""    s_cmp_gt_u32 s{sOK}, {i}
    s_cselect_b32 s{sNR1+i}, 0x2000000, 0
    s_cselect_b32 s{sTmp}, s{sTmp+3}, s{sTmp+2}
    s_mov_b32 s10, s{sNR1+i}
    v_mov_b32 v{vMV+1+i}, s{sTmp}
    buffer_load_dwordx4 v[{vK+4*q}:{vK+4*q+3}], v{vKoff}, s[8:11], s{sOff+q} offen {kv}""")
    a(f"""    v_mov_b32 v{vT+5}, 0
    s_mov_b32 s14, s{sNR0}
    s_barrier
    s_cmp_gt_u32 s{sW}, 2
    s_cbranch_scc1 L_notag
    global_load_dwordx2 v[{vN}:{vN+1}], v{vT+5}, s[22:23] sc1
L_notag:""")
    def vloads():
        for q in range(NQ):
            if q >= 4:
                a(f"    s_mov_b32 s14, s{sNR1+q-4}")
            a(f"    buffer_load_dwordx4 v[{vV+4*q}:{vV+4*q+3}], v{vVoff}, s[12:15], s{sOff+q} offen {kv}")
    if E < 16:
        a(f"""    s_cmp_ge_u32 s{sW}, {E}
    s_cbranch_scc1 L_vlater""")
    vloads()
    if E < 16:
        a("L_vlater:")
    a(f"""    s_lshl_b32 s{sTmp}, s{sHead}, 5
    s_add_u32 s{sTmp}, s{sTmp}, s{sIdx}
    s_mul_i32 s{sTmp}, s{sTmp}, {RS}
    v_and_b32 v{vPub}, 63, v0
    v_lshl_add_u32 v{vPub}, v{vPub}, 4, s{sTmp}
    v_and_b32 v{vPm}, 8, v0
    v_lshl_add_u32 v{vPm}, v{vPm}, 1, s{sTmp}
    s_cmp_ge_u32 s{sW}, 2
    s_cbranch_scc1 L_nodummy
    v_mov_b32 v{vO}, 0
    v_mov_b32 v{vO+1}, 0
    v_mov_b32 v{vO+2}, 0
    v_mov_b32 v{vO+3}, 0
    global_store_dwordx4 v{vPub}, v[{vO}:{vO+3}], s[24:25]
    s_mov_b64 exec, 0xff
    global_store_dwordx4 v{vPub}, v[{vO}:{vO+3}], s[24:25] offset:1024
    s_mov_b64 exec, -1
L_nodummy:""")
    stamp(2)
    a(f"""    v_mov_b32 v{vC}, 0x{f32bits(SCALE):08x}
    v_and_b32 v{vTmp}, 1, v0
    v_lshlrev_b32 v{vTmp}, 4, v{vTmp}
    s_mov_b32 s{sTmp}, 0xffff
    v_lshlrev_b32_e64 v{vTmp}, v{vTmp}, s{sTmp}        ; 0xffff << 16*(l&1)
    v_bfe_u32 v{vTmp+1}, v0, 1, 2
    v_cmp_eq_u32_e64 s[{sMask}:{sMask+1}], 0, v{vTmp+1}
    v_cmp_eq_u32_e64 s[{sMask+2}:{sMask+3}], 1, v{vTmp+1}
    v_cmp_eq_u32_e64 s[{sMask+4}:{sMask+5}], 2, v{vTmp+1}
    v_cmp_eq_u32_e64 s[{sMask+6}:{sMask+7}], 3, v{vTmp+1}
    v_bfe_u32 v{vLr}, v0, 3, 1
    v_lshlrev_b32 v{vLr}, 7, v{vLr}                   ; h*128
    v_cndmask_b32_e64 v{vAM}, 0, v{vTmp}, s[{sMask}:{sMask+1}]
    v_cndmask_b32_e64 v{vAM+1}, 0, v{vTmp}, s[{sMask+2}:{sMask+3}]
    v_cndmask_b32_e64 v{vAM+2}, 0, v{vTmp}, s[{sMask+4}:{sMask+5}]
    v_cndmask_b32_e64 v{vAM+3}, 0, v{vTmp}, s[{sMask+6}:{sMask+7}]
    s_lshl_b32 s{sTmp}, s{sC}, 8
    v_add_u32 v{vLr}, s{sTmp}, v{vLr}                ; + c*256
    s_lshl_b32 s{sTmp}, s{sJ}, 4
    v_lshl_add_u32 v{vLw}, v{vG}, 2, v{vLr}
    v_add_u32 v{vLw}, s{sTmp}, v{vLw}                ; + (j*4+g)*4
    v_and_b32 v{vTmp}, 7, v0
    v_lshl_add_u32 v{vLr}, v{vTmp}, 4, v{vLr}         ; + e*16
    v_lshlrev_b32 v{vOw}, 4, v0                      ; w*1024 + l*16
    s_movk_i32 s{sNc}, 0x3ff
    s_lshl_b32 s{sTmp}, s{sB}, 4
    s_sub_i32 s{sTmp}, s{sCtx}, s{sTmp}""")
    for u in range(2):
        if E < 16:
            a(f"""    s_cmp_lt_u32 s{sW}, {E}
    s_cbranch_scc1 L_kw{u}
    s_waitcnt vmcnt({4 if u == 0 else 0})
L_kw{u}:""")
        a(f"    s_waitcnt vmcnt({12 if u == 0 else 8})")
        if u == 0:
            stamp(3)
        for i in range(4):
            q = 4 * u + i
            a(f"    v_mfma_f32_16x16x32_bf16 v[{vK+4*q}:{vK+4*q+3}], v[{vK+4*q}:{vK+4*q+3}], v[{vQ}:{vQ+3}], 0")
        sr = sTmp if u == 0 else sR1
        for i in range(4):
            if u == 1:
                a(f"    s_cmp_gt_u32 s{sOK}, {i}")
                a(f"    s_cselect_b32 s{sTmp}, s{sr}, 0")
                a(f"    v_cmp_gt_i32_e64 s[{sMask+2*i}:{sMask+2*i+1}], s{sTmp}, v{vG}")
            else:
                a(f"    v_cmp_gt_i32_e64 s[{sMask+2*i}:{sMask+2*i+1}], s{sr}, v{vG}")
            if i < 3:
                a(f"    s_sub_i32 s{sr}, s{sr}, 4")
        a("    s_nop 1" if u == 0 else "    s_nop 0")
        for step in range(4):
            for i in range(4):
                q = 4 * u + i
                op = "v_mul_f32_dpp" if step == 0 else "v_fmac_f32_dpp"
                a(f"    {op} v{vT+q}, v{vK+4*q+step}, v{vC} quad_perm:[{step},{step},{step},{step}] row_mask:0xf bank_mask:0xf")
        for i in range(4):
            q = 4 * u + i
            mv = vMV if u == 0 else vMV + 1 + i
            a(f"    v_cndmask_b32_e64 v{vT+q}, v{mv}, v{vT+q}, s[{sMask+2*i}:{sMask+2*i+1}]")
    a(f"    v_max3_f32 v{vM}, v{vT}, v{vT+1}, s{sTmp+3}")
    for q in range(2, NQ, 2):
        a(f"    v_max3_f32 v{vM}, v{vT+q}, v{vT+q+1}, v{vM}")
    a(f"""    ds_write_b32 v{vLw}, v{vM} offset:{LDS_MAX}
    v_and_b32 v{vTmp}, v{vN}, v{vN+1}
    v_lshrrev_b32 v{vS}, 10, v{vN}
    v_readfirstlane_b32 s{sOK}, v{vTmp}
    v_lshrrev_b32 v{vS+1}, 10, v{vN+1}
    s_waitcnt lgkmcnt(0)
    s_barrier""")
    stamp(4)
    if E < 16:
        a(f"""    s_cmp_lt_u32 s{sW}, {E}
    s_cbranch_scc1 L_vdone""")
        vloads()
        if "lst" in xp:
            stamp(2)
        a("L_vdone:")
    a(f"""    ds_read_b128 v[{vK}:{vK+3}], v{vLr} offset:{LDS_MAX}
    s_waitcnt lgkmcnt(0)
    v_max3_f32 v{vM}, v{vK}, v{vK+1}, v{vK+2}
    v_max_f32 v{vM}, v{vM}, v{vK+3}
    s_nop 1
    v_max_f32_dpp v{vM}, v{vM}, v{vM} quad_perm:[1,0,3,2] row_mask:0xf bank_mask:0xf
    s_nop 1
    v_max_f32_dpp v{vM}, v{vM}, v{vM} quad_perm:[2,3,0,1] row_mask:0xf bank_mask:0xf
    s_nop 1
    v_max_f32_dpp v{vM}, v{vM}, v{vM} row_half_mirror row_mask:0xf bank_mask:0xf""")
    for q in range(NQ):
        a(f"    v_sub_f32 v{vT+q}, v{vT+q}, v{vM}")
    for q in range(NQ):
        a(f"    v_exp_f32 v{vT+q}, v{vT+q}")
    a(f"    v_mov_b32 v{vML}, v{vM}")
    a(f"    v_add_f32 v{vL}, v{vT}, v{vT+1}")
    for q in range(2, NQ):
        a(f"    v_add_f32 v{vL}, v{vL}, v{vT+q}")
    a(f"    ds_write_b32 v{vLw}, v{vL} offset:{LDS_L}")
    for q in range(NQ):
        a(f"    v_cvt_pk_bf16_f32 v{vT+q}, v{vT+q}, v{vT+q}")
    for q in range(NQ):
        for r in range(4):
            a(f"    v_and_b32 v{vK+4*q+r}, v{vAM+r}, v{vT+q}")
    a("    s_nop 0")
    if "lst" in xp:
        stamp(1)
    for q in range(NQ):
        a(f"    s_waitcnt vmcnt({NQ-1-q})")
        c = "0" if q == 0 else f"v[{vO}:{vO+3}]"
        a(f"    v_mfma_f32_16x16x32_bf16 v[{vO}:{vO+3}], v[{vK+4*q}:{vK+4*q+3}], v[{vV+4*q}:{vV+4*q+3}], {c}")
    stamp(5)
    a(f"""    s_nop 7
    ds_write_b128 v{vOw}, v[{vO}:{vO+3}] offset:{LDS_O}
    s_waitcnt lgkmcnt(0)
    s_barrier
    s_cmp_gt_u32 s{sW}, 2
    s_cbranch_scc1 L_done
    s_cmp_lt_i32 s{sOK}, 0
    s_cbranch_scc0 L_waittag
L_tagok:
    s_cmp_eq_u32 s{sW}, 2
    s_cbranch_scc1 L_consume
    ds_read_b128 v[{vT}:{vT+3}], v{vLr} offset:{LDS_L}""")
    for j in range(1, 8):
        a(f"    ds_read_b128 v[{vK+4*j}:{vK+4*j+3}], v{vOw} offset:{LDS_O+2048*j}")
    a(f"""    s_waitcnt lgkmcnt(7)
    v_add_f32 v{vL}, v{vT}, v{vT+1}
    v_add_f32 v{vT+2}, v{vT+2}, v{vT+3}
    v_add_f32 v{vL}, v{vL}, v{vT+2}
    s_waitcnt lgkmcnt(6)
    v_pk_add_f32 v[{vO}:{vO+1}], v[{vO}:{vO+1}], v[{vK+4}:{vK+5}]
    v_pk_add_f32 v[{vO+2}:{vO+3}], v[{vO+2}:{vO+3}], v[{vK+6}:{vK+7}]
    v_add_f32_dpp v{vL}, v{vL}, v{vL} quad_perm:[1,0,3,2] row_mask:0xf bank_mask:0xf
    s_waitcnt lgkmcnt(5)
    v_pk_add_f32 v[{vO}:{vO+1}], v[{vO}:{vO+1}], v[{vK+8}:{vK+9}]
    v_pk_add_f32 v[{vO+2}:{vO+3}], v[{vO+2}:{vO+3}], v[{vK+10}:{vK+11}]
    v_add_f32_dpp v{vL}, v{vL}, v{vL} quad_perm:[2,3,0,1] row_mask:0xf bank_mask:0xf
    s_waitcnt lgkmcnt(4)
    v_pk_add_f32 v[{vO}:{vO+1}], v[{vO}:{vO+1}], v[{vK+12}:{vK+13}]
    v_pk_add_f32 v[{vO+2}:{vO+3}], v[{vO+2}:{vO+3}], v[{vK+14}:{vK+15}]
    v_add_f32_dpp v{vML+1}, v{vL}, v{vL} row_half_mirror row_mask:0xf bank_mask:0xf""")
    for j in range(4, 8):
        a(f"    s_waitcnt lgkmcnt({7-j})")
        a(f"    v_pk_add_f32 v[{vO}:{vO+1}], v[{vO}:{vO+1}], v[{vK+4*j}:{vK+4*j+1}]")
        a(f"    v_pk_add_f32 v[{vO+2}:{vO+3}], v[{vO+2}:{vO+3}], v[{vK+4*j+2}:{vK+4*j+3}]")
    a(f"""    v_bfi_b32 v{vO}, s{sNc}, v{vN}, v{vO}
    v_bfi_b32 v{vO+1}, s{sNc}, v{vS}, v{vO+1}
    v_bfi_b32 v{vO+2}, s{sNc}, v{vN+1}, v{vO+2}
    v_bfi_b32 v{vO+3}, s{sNc}, v{vS+1}, v{vO+3}
    global_store_dwordx4 v{vPub}, v[{vO}:{vO+3}], s[24:25]
    s_mov_b64 exec, 0x101
    global_store_dwordx4 v{vPm}, v[{vML}:{vML+3}], s[24:25] offset:1024
    s_mov_b64 exec, -1""")
    if stamps:
        stamp(3)
    if 'noB' not in xp:
        a(f"""    s_add_u32 s{sTmp}, s24, {BOFF}
    s_addc_u32 s{sTmp+1}, s25, 0
    global_store_dwordx4 v{vPub}, v[{vO}:{vO+3}], s[{sTmp}:{sTmp+1}] sc1
    s_mov_b64 exec, 0x101
    global_store_dwordx4 v{vPm}, v[{vML}:{vML+3}], s[{sTmp}:{sTmp+1}] offset:1024 sc1
    s_mov_b64 exec, -1""")
    stamp(6)
    a(f"""    s_branch L_done
L_waittag:                                           ; rare: the leader had not published yet when the tag was read
    v_mov_b32 v{vTmp+1}, 0
    s_mov_b32 s{sCnt}, 0
L_waittag_loop:
    s_sleep 8
    global_load_dwordx2 v[{vN}:{vN+1}], v{vTmp+1}, s[22:23] sc1
    s_add_u32 s{sCnt}, s{sCnt}, 1
    s_waitcnt vmcnt(0)
    v_and_b32 v{vTmp}, v{vN}, v{vN+1}
    v_lshrrev_b32 v{vS}, 10, v{vN}
    v_readfirstlane_b32 s{sOK}, v{vTmp}
    v_lshrrev_b32 v{vS+1}, 10, v{vN+1}
    s_cmp_gt_u32 s{sCnt}, 20000
    s_cbranch_scc1 L_tagok
    s_cmp_lt_i32 s{sOK}, 0
    s_cbranch_scc0 L_waittag_loop
    s_branch L_tagok""")
    OP, ML, WT, AC, XO, TG = 40, 48, 56, 60, 72, 80
    vA1, vA2 = 1, 2
    sMs, sRo = 40, 44
    a(f"""L_consume:
    s_lshl_b32 s{sIn}, s{sG}, 5
    s_add_u32 s{sIn}, s{sIn}, s{sIdx}
    s_movk_i32 s{sTmp}, {RS}
    v_bfe_u32 v{vA2}, v0, 2, 4
    v_mul_u32_u24 v{vA2}, s{sTmp}, v{vA2}             ; p*RS,  p = l>>2
    v_and_b32 v{vTmp}, 3, v0
    v_lshlrev_b32 v{vTmp}, 4, v{vTmp}                 ; qd*16
    s_and_b32 s{sTmp+1}, s{sIn}, 15
    s_lshl_b32 s{sTmp+2}, s{sTmp+1}, 6
    v_add3_u32 v{vA1}, v{vA2}, v{vTmp}, s{sTmp+2}       ; + k*64 + qd*16
    s_lshr_b32 s{sTmp+2}, s{sTmp+1}, 3
    s_lshl_b32 s{sTmp+2}, s{sTmp+2}, 4
    v_add_u32 v{vA2}, s{sTmp+2}, v{vA2}               ; + h*16 (+1024)
    s_lshr_b32 s{sRo}, s{sIn}, 4
    s_mul_i32 s{sRo}, s{sRo}, {32*RS}
    s_add_u32 s{sRo+1}, s{sRo}, {16*RS}
    s_mov_b32 s8, s24
    s_mov_b32 s9, s25
    s_mov_b32 s10, {BOFF + 512*RS}
    v_and_b32 v{TG}, 0x3ff, v{vN}
    v_and_b32 v{TG+1}, 0x3ff, v{vS}
    v_and_b32 v{TG+2}, 0x3ff, v{vN+1}
    v_and_b32 v{TG+3}, 0x3ff, v{vS+1}
    s_mov_b32 s{sCnt}, 0
    s_mov_b64 s[{sMs}:{sMs+1}], -1
    s_mov_b64 s[{sMs+2}:{sMs+3}], -1
    s_branch L_pollA""")

    def poll_loads(tag, fl):
        for kk in range(2):
            a(f"""    s_mov_b64 exec, s[{sMs+2*kk}:{sMs+2*kk+1}]
    s_cbranch_execz L_skip{tag}{kk}
    buffer_load_dwordx4 v[{OP+4*kk}:{OP+4*kk+3}], v{vA1}, s[8:11], s{sRo+kk} offen {fl}
    buffer_load_dwordx4 v[{ML+4*kk}:{ML+4*kk+3}], v{vA2}, s[8:11], s{sRo+kk} offen offset:1024 {fl}
L_skip{tag}{kk}:""")

    a("L_pollB:\n    s_sleep 4")
    poll_loads("b", "sc1")
    a("    s_branch L_issued\nL_pollA:")
    poll_loads("a", "nt")
    a(f"""L_issued:
    s_mov_b64 exec, -1
    s_add_u32 s{sCnt}, s{sCnt}, 1
    s_cmp_gt_u32 s{sCnt}, 20000
    s_cbranch_scc1 L_got
    s_waitcnt vmcnt(0)""")
    for kk in range(2):
        o, m, x, t = OP + 4 * kk, ML + 4 * kk, XO + 4 * kk, 8 + 4 * kk
        for r in range(4):
            a(f"    v_xor_b32 v{x+r}, v{o+r}, v{TG+r}")
        a(f"    v_xor_b32 v{t+1}, v{m+2}, v{vN}")
        a(f"    v_xor_b32 v{t+2}, v{m+3}, v{vN+1}")
    for kk in range(2):
        x, t = XO + 4 * kk, 8 + 4 * kk
        a(f"    v_or3_b32 v{t}, v{x}, v{x+1}, v{x+2}")
    for kk in range(2):
        x, t = XO + 4 * kk, 8 + 4 * kk
        a(f"    v_or_b32 v{t}, v{t}, v{x+3}")
        a(f"    v_or_b32 v{t+1}, v{t+1}, v{t+2}")
    for kk in range(2):
        t = 8 + 4 * kk
        a(f"    v_and_or_b32 v{t}, v{t}, s{sNc}, v{t+1}")
    for kk in range(2):
        t = 8 + 4 * kk
        a(f"    v_cmp_ne_u32_e64 s[{sMs+2*kk}:{sMs+2*kk+1}], 0, v{t}")
    OP = XO
    a(f"""    v_max_f32 v{vM}, v{ML}, v{ML+4}
    s_or_b64 s[{sTmp}:{sTmp+1}], s[{sMs}:{sMs+1}], s[{sMs+2}:{sMs+3}]
    s_cbranch_scc0 L_got
    s_cmp_lt_u32 s{sCnt}, {ra}
    s_cbranch_scc1 L_pollA
    s_cmp_lg_u32 s{sCnt}, {ra}
    s_cbranch_scc1 L_pollB
    s_add_u32 s{sRo}, s{sRo}, {BOFF}
    s_add_u32 s{sRo+1}, s{sRo+1}, {BOFF}
    s_branch L_pollB
L_got:""")
    stamp(6)
    a(f"""    ; output byte address: kvhead*512 + (k>>3)*256 + ((4k+qd)&15)*16 + ((k>>2)&1)*8 + component*2
    v_max_f32_dpp v{vM}, v{vM}, v{vM} row_ror:4 row_mask:0xf bank_mask:0xf
    s_lshr_b32 s{sTmp+2}, s{sIn}, 3
    s_lshl_b32 s{sTmp+2}, s{sTmp+2}, 8
    v_max_f32_dpp v{vM}, v{vM}, v{vM} row_ror:8 row_mask:0xf bank_mask:0xf
    s_and_b32 s{sTmp+3}, s{sIn}, 3
    v_mov_b32 v8, v{vM}
    s_lshl_b32 s{sTmp+3}, s{sTmp+3}, 6
    s_add_u32 s{sTmp+2}, s{sTmp+2}, s{sTmp+3}
    v_permlane16_swap_b32 v{vM}, v8
    s_bfe_u32 s{sTmp+3}, s{sIn}, 0x10002
    v_max_f32 v{vM}, v{vM}, v8
    v_mov_b32 v8, v{vM}
    s_lshl3_add_u32 s{sTmp+2}, s{sTmp+3}, s{sTmp+2}
    v_add_u32 v{vTmp}, s{sTmp+2}, v{vTmp}
    v_permlane32_swap_b32 v{vM}, v8
    v_bfe_u32 v9, v0, 4, 1
    v_max_f32 v{vM}, v{vM}, v8
    v_sub_f32 v{WT}, v{ML}, v{vM}
    v_sub_f32 v{WT+1}, v{ML+4}, v{vM}
    v_exp_f32 v{WT}, v{WT}
    v_exp_f32 v{WT+1}, v{WT+1}
    v_lshl_add_u32 v{vTmp}, v9, 2, v{vTmp}
    v_bfe_u32 v9, v0, 5, 1
    v_mul_f32 v{vL}, v{WT}, v{ML+1}
    v_mul_f32 v{AC}, v{WT}, v{OP}
    v_mul_f32 v{AC+1}, v{WT}, v{OP+1}
    v_mul_f32 v{AC+2}, v{WT}, v{OP+2}
    v_mul_f32 v{AC+3}, v{WT}, v{OP+3}
    v_fmac_f32 v{vL}, v{WT+1}, v{ML+5}
    v_fmac_f32 v{AC}, v{WT+1}, v{OP+4}
    v_fmac_f32 v{AC+1}, v{WT+1}, v{OP+5}
    v_fmac_f32 v{AC+2}, v{WT+1}, v{OP+6}
    v_fmac_f32 v{AC+3}, v{WT+1}, v{OP+7}
    v_mov_b32 v8, v{vL}
    v_lshl_add_u32 v{vTmp}, v9, 1, v{vTmp}
    v_permlane32_swap_b32 v{AC}, v{AC+1}
    v_permlane32_swap_b32 v{AC+2}, v{AC+3}
    v_permlane32_swap_b32 v{vL}, v8
    v_add_f32 v{AC}, v{AC}, v{AC+1}
    v_add_f32 v{AC+2}, v{AC+2}, v{AC+3}
    v_add_f32 v{vL}, v{vL}, v8
    v_mov_b32 v8, v{vL}
    s_mov_b32 s{sTmp+1}, 0x{f32bits(TMASK + 256.0):08x}
    v_permlane16_swap_b32 v{AC}, v{AC+2}
    v_cmp_ge_f32 vcc, s{sTmp+1}, v{vM}
    v_permlane16_swap_b32 v{vL}, v8
    v_add_f32 v{AC}, v{AC}, v{AC+2}
    v_add_f32 v{vL}, v{vL}, v8
    s_nop 0
    v_add_f32_dpp v{AC}, v{AC}, v{AC} row_ror:4 row_mask:0xf bank_mask:0xf
    v_add_f32_dpp v{vL}, v{vL}, v{vL} row_ror:4 row_mask:0xf bank_mask:0xf
    s_nop 0
    v_add_f32_dpp v{AC}, v{AC}, v{AC} row_ror:8 row_mask:0xf bank_mask:0xf
    v_add_f32_dpp v{vL}, v{vL}, v{vL} row_ror:8 row_mask:0xf bank_mask:0xf
    s_cbranch_vccnz L_slow
L_fin:
    v_rcp_f32 v{vL}, v{vL}
    s_mov_b32 exec_lo, 0x000f000f
    s_mov_b32 exec_hi, 0x000f000f
    v_mul_f32 v{AC}, v{AC}, v{vL}
    v_cvt_pk_bf16_f32 v{AC}, v{AC}, v{AC}
    global_store_short v{vTmp}, v{AC}, s[20:21]""")
    if timed:
        a("    s_mov_b64 exec, -1\n    s_waitcnt vmcnt(0)")
    stamp(7)
    if diag:
        ka, kb, mult = diag
        a(f"""    s_waitcnt lgkmcnt(0)
    s_sub_u32 s{sTmp}, s{sST+2*kb}, s{sST+2*ka}
    s_mul_i32 s{sTmp}, s{sTmp}, {mult}
    s_min_u32 s{sTmp}, s{sTmp}, 20000
    s_add_u32 s{sTmp}, s{sTmp}, s{sST+14}
L_spin:
    s_memrealtime s[{sTmp+2}:{sTmp+3}]
    s_waitcnt lgkmcnt(0)
    s_sub_u32 s{sTmp+1}, s{sTmp+2}, s{sTmp}
    s_cmp_lt_i32 s{sTmp+1}, 0
    s_cbranch_scc1 L_spin""")
    a("L_done:")
    if stamps:
        a(f"    s_waitcnt lgkmcnt(0) vmcnt(0)")
        a(f"    s_getreg_b32 s{sST+1}, hwreg(HW_REG_XCC_ID)")
        for k in range(8):
            a(f"    v_mov_b32 v{40+k}, s{sST+2*k}")
        a(f"    v_mov_b32 v48, s{sST+1}")
        a(f"    v_mov_b32 v49, s{sCnt}")
        a(f"""    s_lshl_b32 s{sTmp}, s2, 10
    s_lshl_b32 s{sTmp+1}, s{sW}, 6
    s_add_u32 s{sTmp}, s{sTmp}, s{sTmp+1}
    s_add_u32 s{sTmp}, s{sTmp}, 0x400000
    v_mov_b32 v50, s{sTmp}
    s_mov_b64 exec, 1
    global_store_dwordx4 v50, v[40:43], s[24:25]
    global_store_dwordx4 v50, v[44:47], s[24:25] offset:16
    global_store_dwordx2 v50, v[48:49], s[24:25] offset:32""")
    X = 88
    a(f"""L_exit:
    s_endpgm
L_slow:
    s_cmp_ge_u32 s{sNblk}, 512
    s_cbranch_scc1 L_fin
    s_lshr_b32 s{sTmp+1}, s{sIn}, 4
    s_lshl_b32 s{sTmp+1}, s{sTmp+1}, 8
    s_and_b32 s{sTmp}, s{sIn}, 3
    s_lshl_b32 s{sTmp}, s{sTmp}, 6
    s_add_u32 s{sTmp+1}, s{sTmp+1}, s{sTmp}
    s_bfe_u32 s{sTmp}, s{sIn}, 0x10002
    s_lshl3_add_u32 s{sTmp+1}, s{sTmp}, s{sTmp+1}
    v_bfe_u32 v{X}, v0, 2, 4
    v_lshlrev_b32 v{X}, 12, v{X}
    v_and_b32 v{X+1}, 3, v0
    v_lshlrev_b32 v{X+1}, 4, v{X+1}
    v_add3_u32 v{X}, v{X+1}, v{X}, s{sTmp+1}
    v_mov_b32 v{X+4}, 0
    v_mov_b32 v{X+5}, 0
    v_mov_b32 v{X+6}, 0
    v_mov_b32 v{X+7}, 0
    s_mov_b32 s14, 0x2000000
    s_mov_b32 s{sCnt}, s{sNblk}
L_slow_loop:
    s_lshl_b32 s{sTmp}, s{sCnt}, 2
    s_load_dword s{sTmp+2}, s[16:17], s{sTmp}
    s_waitcnt lgkmcnt(0)
    s_and_b32 s{sTmp+2}, s{sTmp+2}, 511
    s_lshl_b32 s{sTmp+2}, s{sTmp+2}, 16
    buffer_load_dwordx2 v[{X+2}:{X+3}], v{X}, s[12:15], s{sTmp+2} offen
    s_waitcnt vmcnt(0)
    v_lshlrev_b32 v{X+1}, 16, v{X+2}
    v_add_f32 v{X+4}, v{X+4}, v{X+1}
    v_and_b32 v{X+1}, 0xffff0000, v{X+2}
    v_add_f32 v{X+5}, v{X+5}, v{X+1}
    v_lshlrev_b32 v{X+1}, 16, v{X+3}
    v_add_f32 v{X+6}, v{X+6}, v{X+1}
    v_and_b32 v{X+1}, 0xffff0000, v{X+3}
    v_add_f32 v{X+7}, v{X+7}, v{X+1}
    s_add_u32 s{sCnt}, s{sCnt}, 1
    s_cmp_lt_u32 s{sCnt}, 512
    s_cbranch_scc1 L_slow_loop
    s_nop 1
    v_permlane32_swap_b32 v{X+4}, v{X+5}
    v_permlane32_swap_b32 v{X+6}, v{X+7}
    s_nop 1
    v_add_f32 v{X+4}, v{X+4}, v{X+5}
    v_add_f32 v{X+6}, v{X+6}, v{X+7}
    s_nop 1
    v_permlane16_swap_b32 v{X+4}, v{X+6}
    s_nop 1
    v_add_f32 v{X+4}, v{X+4}, v{X+6}
    s_nop 1
    v_add_f32_dpp v{X+4}, v{X+4}, v{X+4} row_ror:4 row_mask:0xf bank_mask:0xf
    s_nop 1
    v_add_f32_dpp v{X+4}, v{X+4}, v{X+4} row_ror:8 row_mask:0xf bank_mask:0xf
    v_sub_f32 v{X+1}, 0x{f32bits(TMASK):08x}, v{vM}
    v_exp_f32 v{X+1}, v{X+1}
    s_sub_u32 s{sTmp}, 512, s{sNblk}
    s_lshl_b32 s{sTmp}, s{sTmp}, 4
    v_cvt_f32_u32 v{X+2}, s{sTmp}
    v_fmac_f32 v{vL}, v{X+1}, v{X+2}
    v_fmac_f32 v{AC}, v{X+1}, v{X+4}
    s_branch L_fin""")
    a(descriptor(main, nv, 96))
    return a.text()


if __name__ == "__main__":
    ap = argparse.ArgumentParser()
    ap.add_argument("-o", default="/dev/stdout")
    ap.add_argument("--kv", default="nt")
    ap.add_argument("--stamps", action="store_true")
    ap.add_argument("--diag", default=None)
    ap.add_argument("--ra", type=int, default=24)
    ap.add_argument("--pf", type=int, default=29)
    ap.add_argument("--noeq", action="store_true")
    ap.add_argument("--xp", default="")
    ap.add_argument("--E", type=int, default=8)
    x = ap.parse_args()
    open(x.o, "w").write(gen(kv=x.kv, stamps=x.stamps, ra=x.ra, pf=x.pf, eq=not x.noeq, xp=x.xp, E=x.E,
                             diag=tuple(int(t) for t in x.diag.split(",")) if x.diag else None))
```
